```python
import torch

def _softmax(x, axis=-1):
    return torch.softmax(x, dim=axis)
def _gelu(x):
    return torch.nn.functional.gelu(x, approximate="tanh")
def _silu(x):
    return torch.nn.functional.silu(x)
def _sigmoid(x):
    return torch.sigmoid(x)
def _layernorm(x, axis=-1, eps=1e-5):
    m = x.mean(dim=axis, keepdim=True)
    v = x.var(dim=axis, keepdim=True, unbiased=False)
    return (x - m) / torch.sqrt(v + eps)
def _scatter_add(tgt, idx, src, axis=0):
    return tgt.clone().index_add_(axis, idx, src)
def _segment_sum(src, seg, n):
    out = torch.zeros((n,) + src.shape[1:], dtype=src.dtype)
    return out.index_add_(0, seg, src)
def _pad(x, pw):
    flat = tuple(v for pair in reversed(pw) for v in pair)
    return torch.nn.functional.pad(x, flat)

kernel_name = 'standalone__mha_block_cached__near_ridge'

def setup_inputs():

    _w = (lambda a: (lambda t: t.to(torch.bfloat16) if t.is_floating_point() else t)(torch.as_tensor(a)))
    B, Sq, D = 16, 128, 640
    H, Sk, Dh = 32, 1024, 128
    return {
        "x": _w((lambda *s: torch.randn(*s, dtype=torch.bfloat16) * 0.8)(B, Sq, D)),
        "k_cache": _w((lambda *s: torch.randn(*s, dtype=torch.bfloat16) * 0.8)(B, H, Sk, Dh)),
        "v_cache": _w((lambda *s: torch.randn(*s, dtype=torch.bfloat16) * 0.05)(B, H, Sk, Dh)),
        "wq": _w((lambda *s: torch.randn(*s, dtype=torch.bfloat16) * 0.8)(D, H * Dh) * (D ** -0.5)),
        "wo": _w((lambda *s: torch.randn(*s, dtype=torch.bfloat16) * 0.05)(H * Dh, D) * ((H * Dh) ** -0.5)),
    }

def reference(x, k_cache, v_cache, wq, wo):
    B, Sq, D = x.shape
    H, Dh = 32, 128
    q = (lambda x, *d: x.permute(*d))((x @ wq).reshape(B, Sq, H, Dh), 0, 2, 1, 3)
    scores = torch.einsum("bhqd,bhkd->bhqk", q, k_cache) * (Dh ** -0.5)
    p = _softmax(scores, axis=-1)
    o = torch.einsum("bhqk,bhkd->bhqd", p, v_cache)
    return (lambda x, *d: x.permute(*d))(o, 0, 2, 1, 3).reshape(B, Sq, H * Dh) @ wo
```

```python
import re

def vr(a, n=1):
    return f"v{a}" if n == 1 else f"v[{a}:{a+n-1}]"
def R(a, n=1):
    return list(range(a, a + n))

class Ins:
    __slots__ = ("text", "kind", "rd", "wr", "passes", "states", "tag", "srcC", "swr", "srd")
    def __init__(s, text, kind, rd=(), wr=(), passes=0, states=1, tag=None, srcC=(), swr=(), srd=()):
        s.text = text; s.kind = kind; s.rd = set(rd); s.wr = set(wr); s.passes = passes
        s.states = states; s.tag = tag; s.srcC = set(srcC); s.swr = set(swr); s.srd = set(srd)

class Prog:
    def __init__(s):
        s.out = []
        s.lg = []
        s.vm = []
        s.nops = 0
    def raw(s, text):
        s.out.append(Ins(text, "raw", states=0))
    def label(s, l):
        s.raw(l + ":")
    def comment(s, c):
        s.raw("; " + c)
    def _hazard_need(s, ins):
        need = 0
        acc = 0
        for p in reversed(s.out):
            if p.kind == "raw":
                if p.text.endswith(":"):
                    pass
                continue
            if acc >= 20: break
            req = 0
            touch_r = ins.rd; touch_w = ins.wr
            if p.kind == "valu" or p.kind == "trans":
                if ins.kind == "mfma" and (p.wr & touch_r): req = max(req, 2)
                if ins.kind == "perm" and (p.wr & touch_r): req = max(req, 2)
                if ins.kind == "rfl" and (p.wr & touch_r): req = max(req, 1)
                if p.kind == "trans" and ins.kind in ("valu", "perm", "rfl") and (p.wr & touch_r): req = max(req, 1)
                if p.swr & ins.srd:
                    if ins.kind in ("vmem", "dma", "store"): req = max(req, 5)
                    elif ins.kind in ("valu", "trans", "mfma"): req = max(req, 2)
                    else: req = max(req, 1)
            if p.kind in ("rfl",):
                if p.swr & ins.srd:
                    if ins.kind in ("vmem", "dma", "store"): req = max(req, 5)
                    elif ins.kind in ("valu", "trans", "mfma"): req = max(req, 2)
                    else: req = max(req, 4)
            if p.kind == "perm":
                if ins.kind == "mfma" and (p.wr & touch_r): req = max(req, 2)
                if ins.kind == "perm" and (p.wr & touch_r): req = max(req, 2)
                if ins.kind == "rfl" and (p.wr & touch_r): req = max(req, 1)
            if p.kind == "mfma":
                big = {4: 8, 8: 12}[p.passes]
                if ins.kind == "mfma":
                    if p.wr & ins.srcC:
                        if not (p.wr == ins.srcC and p.passes == ins.passes): req = max(req, {4: 6, 8: 10}[p.passes])
                    if p.wr & (ins.rd - ins.srcC): req = max(req, big)
                    if (p.wr & ins.wr) and not (p.wr == ins.srcC): req = max(req, big)
                else:
                    if p.wr & (touch_r | touch_w): req = max(req, big)
                    if ins.kind in ("valu", "trans", "perm") and (p.srcC & touch_w): req = max(req, {4: 3, 8: 7}[p.passes])
            if p.kind == "store":
                if p.rd & touch_w and ins.kind in ("valu", "trans", "perm"): req = max(req, 2)
                elif p.rd & touch_w: req = max(req, 1)
            if p.kind == "salu" and "m0" in p.swr and ins.kind == "dma": req = max(req, 1)
            if req > acc: need = max(need, req - acc)
            acc += p.states
        return need
    def _wait_regs(s, ins):
        touch = ins.rd | ins.wr
        idx = -1
        for i, (w, r) in enumerate(s.lg):
            if (w & touch) or (r & ins.wr): idx = i
        if idx >= 0:
            n = len(s.lg) - 1 - idx
            s.wait(lgkm=n)
        idx = -1
        for i, (tag, w) in enumerate(s.vm):
            if w & touch: idx = i
        if idx >= 0:
            n = len(s.vm) - 1 - idx
            s.wait(vm=n)
    def wait(s, vm=None, lgkm=None):
        parts = []
        if vm is not None:
            vm = min(vm, 63)
            if vm < len(s.vm):
                s.vm = s.vm[len(s.vm) - vm:] if vm > 0 else []
            parts.append(f"vmcnt({vm})")
        if lgkm is not None:
            lgkm = min(lgkm, 15)
            if lgkm < len(s.lg):
                s.lg = s.lg[len(s.lg) - lgkm:] if lgkm > 0 else []
            parts.append(f"lgkmcnt({lgkm})")
        s.out.append(Ins("s_waitcnt " + " ".join(parts), "wait"))
    def wait_tag(s, tag):
        idx = -1
        for i, (t, w) in enumerate(s.vm):
            if t == tag: idx = i
        if idx >= 0:
            s.wait(vm=len(s.vm) - 1 - idx)
    def nop(s, n):
        while n > 0:
            k = min(n, 16)
            s.out.append(Ins(f"s_nop {k-1}", "nop", states=k)); n -= k; s.nops += k
    def emit(s, ins):
        s._wait_regs(ins)
        need = s._hazard_need(ins)
        if need > 0: s.nop(need)
        if ins.kind in ("ds_r", "ds_w"):
            if len(s.lg) >= 15: s.wait(lgkm=14)
        s.out.append(ins)
        if ins.kind == "ds_r": s.lg.append((set(ins.wr), set()))
        elif ins.kind == "ds_w": s.lg.append((set(), set()))
        elif ins.kind in ("vmem",): s.vm.append((ins.tag, set(ins.wr)))
        elif ins.kind in ("dma", "store"): s.vm.append((ins.tag, set()))
    def salu(s, text, swr=(), srd=()):
        s.emit(Ins(text, "salu", swr=swr, srd=srd))
    def valu(s, text, wr=(), rd=(), swr=(), srd=()):
        s.emit(Ins(text, "valu", rd=rd, wr=wr, swr=swr, srd=srd))
    def trans(s, text, wr=(), rd=()):
        s.emit(Ins(text, "trans", rd=rd, wr=wr))
    def perm(s, text, regs):
        s.emit(Ins(text, "perm", rd=regs, wr=regs))
    def rfl(s, sdst, vsrc):
        s.emit(Ins(f"v_readfirstlane_b32 {sdst}, v{vsrc}", "rfl", rd=[vsrc], swr=[sdst]))
    def mfma32(s, D, A, B, C=None, czero=False):
        c = "0" if czero else vr(D if C is None else C, 16)
        cr = [] if czero else R(D if C is None else C, 16)
        s.emit(Ins(f"v_mfma_f32_32x32x16_bf16 {vr(D,16)}, {vr(A,4)}, {vr(B,4)}, {c}", "mfma",
                   rd=R(A,4) + R(B,4) + cr, wr=R(D,16), passes=8, srcC=cr))
    def mfma16(s, D, A, B, C=None, czero=False):
        c = "0" if czero else vr(D if C is None else C, 4)
        cr = [] if czero else R(D if C is None else C, 4)
        s.emit(Ins(f"v_mfma_f32_16x16x32_bf16 {vr(D,4)}, {vr(A,4)}, {vr(B,4)}, {c}", "mfma",
                   rd=R(A,4) + R(B,4) + cr, wr=R(D,4), passes=4, srcC=cr))
    def ds_read(s, op, D, n, addr, off=0):
        o = f" offset:{off}" if off else ""
        s.emit(Ins(f"{op} {vr(D,n)}, v{addr}{o}", "ds_r", rd=[addr], wr=R(D,n)))
    def ds_write(s, op, addr, S, n, off=0):
        o = f" offset:{off}" if off else ""
        s.emit(Ins(f"{op} v{addr}, {vr(S,n)}{o}", "ds_w", rd=[addr] + R(S,n)))
    def bload(s, D, n, voff, srd, soff, off=0, flags="", tag=None):
        op = {1: "buffer_load_dword", 2: "buffer_load_dwordx2", 4: "buffer_load_dwordx4"}[n]
        o = f" offset:{off}" if off else ""
        s.emit(Ins(f"{op} {vr(D,n)}, v{voff}, {srd}, {soff} offen{o}{flags}", "vmem", rd=[voff], wr=R(D,n), tag=tag, srd=[soff]))
    def dma(s, voff, srd, soff, off=0, flags="", tag=None):
        o = f" offset:{off}" if off else ""
        s.emit(Ins(f"buffer_load_dwordx4 v{voff}, {srd}, {soff} offen{o}{flags} lds", "dma", rd=[voff], tag=tag, srd=[soff, "m0"]))
    def bstore(s, S, n, voff, srd, soff, off=0, flags="", tag=None):
        op = {1: "buffer_store_dword", 2: "buffer_store_dwordx2", 4: "buffer_store_dwordx4"}[n]
        o = f" offset:{off}" if off else ""
        s.emit(Ins(f"{op} {vr(S,n)}, v{voff}, {srd}, {soff} offen{o}{flags}", "store", rd=[voff] + R(S,n), tag=tag, srd=[soff]))
    def barrier(s):
        s.out.append(Ins("s_barrier", "bar"))
    def branch(s, text):
        s.out.append(Ins(text, "br"))
    def reset_tracking(s, vm=None, lg=None):
        s.vm = list(vm) if vm else []
        s.lg = list(lg) if lg else []
    def text(s):
        return "\n".join(("" if i.kind == "raw" else "    ") + i.text for i in s.out)

KD = """.amdhsa_kernel {name}
  .amdhsa_next_free_vgpr {vgpr}
  .amdhsa_next_free_sgpr {sgpr}
  .amdhsa_accum_offset {acc}
  .amdhsa_group_segment_fixed_size 0
  .amdhsa_kernarg_size 64
  .amdhsa_user_sgpr_count 2
  .amdhsa_user_sgpr_kernarg_segment_ptr 1
  .amdhsa_system_sgpr_workgroup_id_x 1
  .amdhsa_float_denorm_mode_32 3
  .amdhsa_float_denorm_mode_16_64 3
.end_amdhsa_kernel"""
```

```python
import sys
from fw import *

KN = "standalone__mha_block_cached__near_ridge_kernel"
LOG2E = 1.4426950408889634
QSCALE = LOG2E / (128 ** 0.5)
import struct
def f2u(f): return struct.unpack("<I", struct.pack("<f", f))[0]

PRING = 0
KVRING = 65536
HANDOFF = 2 * 16384

def srd(p, dst, ptr, size):
    p.salu(f"s_mov_b32 s{dst}, s{ptr}")
    p.salu(f"s_and_b32 s{dst+1}, s{ptr+1}, 0xffff")
    p.salu(f"s_mov_b32 s{dst+2}, {hex(size)}")
    p.salu(f"s_mov_b32 s{dst+3}, 0x20000")

def gen_k1(opts):
    p = Prog()
    NT = " nt"
    name = opts.get("name", "k1_kernel")
    p.raw(f".globl {name}\n.p2align 8\n.type {name},@function\n{name}:")
    p.salu("s_cmp_ge_u32 s2, 256")
    p.branch(f"s_cbranch_scc1 {name}_done")
    p.salu("s_load_dwordx8 s[36:43], s[0:1], 0")
    p.salu("s_load_dwordx2 s[44:45], s[0:1], 56")
    p.valu("v_lshrrev_b32 v1, 6, v0", wr=[1], rd=[0])
    p.valu("v_and_b32 v0, 63, v0", wr=[0], rd=[0])
    p.rfl("s3", 1)
    p.salu("s_and_b32 s4, s2, 7")
    p.salu("s_lshr_b32 s5, s2, 3")
    p.salu("s_lshr_b32 s6, s4, 1")
    p.salu("s_lshl_b32 s6, s6, 2")
    p.salu("s_and_b32 s7, s5, 3")
    p.salu("s_add_u32 s6, s6, s7")
    p.salu("s_and_b32 s7, s4, 1")
    p.salu("s_lshl_b32 s7, s7, 3")
    p.salu("s_lshr_b32 s5, s5, 2")
    p.salu("s_add_u32 s7, s7, s5")
    p.raw("    s_waitcnt lgkmcnt(0)")
    srd(p, 8, 38, 0x8000000)
    srd(p, 12, 40, 0x8000000)
    srd(p, 16, 42, 640 * 4096 * 2)
    srd(p, 20, 36, 16 * 128 * 640 * 2)
    srd(p, 24, 44, 128 * 128 * 1024)
    p.salu("s_cmp_ge_u32 s3, 4")
    p.branch(f"s_cbranch_scc1 {name}_P")

    O = 64; S0 = 128; S1 = 144; P0 = 160; P1 = 168; KF = 176; VF = 208; Q = 32; C = 16
    aK = 240; aV = 248; voK = 252; voV = 1; L0 = 2; L1 = 3; T = 4
    voO = 15
    p.valu(f"v_lshrrev_b32 v{T}, 4, v0", wr=[T], rd=[0])
    p.valu(f"v_and_b32 v{T+1}, 15, v0", wr=[T+1], rd=[0])
    p.valu(f"v_lshlrev_b32 v{T+2}, 2, v{T}", wr=[T+2], rd=[T])
    p.valu(f"v_xor_b32 v{T+2}, v{T+2}, v{T+1}", wr=[T+2], rd=[T+2, T+1])
    p.valu(f"v_lshlrev_b32 v{T+2}, 4, v{T+2}", wr=[T+2], rd=[T+2])
    p.valu(f"v_lshl_add_u32 v{voV}, v{T}, 8, v{T+2}", wr=[voV], rd=[T, T+2])
    for i in range(4):
        p.valu(f"v_add_u32 v{T+2}, {4*i}, v{T}", wr=[T+2], rd=[T])
        p.valu(f"v_xor_b32 v{T+2}, v{T+2}, v{T+1}", wr=[T+2], rd=[T+2, T+1])
        p.valu(f"v_lshlrev_b32 v{T+2}, 4, v{T+2}", wr=[T+2], rd=[T+2])
        p.valu(f"v_lshl_add_u32 v{voK+i}, v{T}, 8, v{T+2}", wr=[voK+i], rd=[T, T+2])
    p.salu("s_lshl_b32 s28, s7, 5")
    p.salu("s_add_u32 s28, s28, s6")
    p.salu("s_lshl_b32 s28, s28, 18")
    p.salu("s_lshl_b32 s29, s3, 12")
    p.salu("s_add_u32 s28, s28, s29")
    p.salu(f"s_add_u32 s30, s29, {KVRING}")
    def issue_tile():
        p.salu("s_mov_b32 m0, s30", swr=["m0"])
        for i in range(4):
            p.dma(voK + i, "s[8:11]", "s28", off=i * 1024, flags=NT, tag="kv")
        p.salu("s_add_u32 m0, s30, 16384", swr=["m0"])
        for i in range(4):
            p.dma(voV, "s[12:15]", "s28", off=i * 1024, flags=NT, tag="kv")
    def adv_tile():
        p.salu("s_add_u32 s28, s28, 16384")
        p.salu("s_add_u32 s31, s31, 1")
        p.salu("s_cmp_eq_u32 s31, 16")
        p.salu(f"s_cselect_b32 s33, {hex(15 * 262144)}, 0")
        p.salu("s_add_u32 s28, s28, s33")
        p.salu("s_cmp_ge_u32 s31, 32")
        p.salu("s_cselect_b32 s28, 0x8000000, s28")
        p.salu("s_add_u32 s30, s30, 32768")
        p.salu(f"s_cmp_ge_u32 s30, {KVRING + 3*32768}")
        p.salu("s_cselect_b32 s33, 98304, 0")
        p.salu("s_sub_u32 s30, s30, s33")
    p.salu("s_mov_b32 s31, 0")
    for t in range(3):
        issue_tile(); adv_tile()
    p.valu(f"v_and_b32 v{T}, 31, v0", wr=[T], rd=[0])
    p.valu(f"v_lshrrev_b32 v{T+2}, 5, v0", wr=[T+2], rd=[0])
    p.valu(f"v_xor_b32 v{T+3}, v{T+2}, v{T+1}", wr=[T+3], rd=[T+2, T+1])
    p.valu(f"v_lshlrev_b32 v{T+3}, 4, v{T+3}", wr=[T+3], rd=[T+3])
    p.valu(f"v_lshl_add_u32 v{T+3}, v{T}, 8, v{T+3}", wr=[T+3], rd=[T, T+3])
    p.valu(f"v_add_u32 v{T+3}, {KVRING}, v{T+3}", wr=[T+3], rd=[T+3])
    for j in range(8):
        p.valu(f"v_xor_b32 v{aK+j}, {j*32}, v{T+3}", wr=[aK+j], rd=[T+3])
    p.valu(f"v_bfe_u32 v{T+4}, v0, 2, 2", wr=[T+4], rd=[0])
    p.valu(f"v_lshl_add_u32 v{T+5}, v{T+2}, 2, v{T+4}", wr=[T+5], rd=[T+2, T+4])
    p.valu(f"v_lshlrev_b32 v{T+5}, 8, v{T+5}", wr=[T+5], rd=[T+5])
    p.valu(f"v_bfe_u32 v{T+6}, v0, 4, 1", wr=[T+6], rd=[0])
    p.valu(f"v_lshl_add_u32 v{T+5}, v{T+6}, 5, v{T+5}", wr=[T+5], rd=[T+6, T+5])
    p.valu(f"v_and_b32 v{T+6}, 3, v0", wr=[T+6], rd=[0])
    p.valu(f"v_lshl_add_u32 v{T+5}, v{T+6}, 3, v{T+5}", wr=[T+5], rd=[T+6, T+5])
    p.valu(f"v_add_u32 v{T+5}, {KVRING + 16384}, v{T+5}", wr=[T+5], rd=[T+5])
    for b in range(4):
        p.valu(f"v_xor_b32 v{T+6}, {b}, v{T+4}", wr=[T+6], rd=[T+4])
        p.valu(f"v_lshl_add_u32 v{aV+b}, v{T+6}, 6, v{T+5}", wr=[aV+b], rd=[T+6, T+5])
    p.valu(f"v_bfe_u32 v{T+6}, v0, 4, 1", wr=[T+6], rd=[0])
    p.valu(f"v_lshlrev_b32 v{T+6}, 17, v{T+6}", wr=[T+6], rd=[T+6])
    p.valu(f"v_lshl_add_u32 v{T+6}, v{T+1}, 4, v{T+6}", wr=[T+6], rd=[T+1, T+6])
    p.valu(f"v_lshl_add_u32 v{voO}, v{T+2}, 8, v{T+6}", wr=[voO], rd=[T+2, T+6])
    p.salu("s_lshl_b32 s34, s7, 3")
    p.salu("s_lshl_b32 s33, s3, 1")
    p.salu("s_add_u32 s34, s34, s33")
    p.salu("s_lshl_b32 s34, s34, 7")
    p.salu("s_lshl_b32 s33, s6, 2")
    p.salu("s_add_u32 s34, s34, s33")
    p.salu("s_lshl_b32 s34, s34, 10")
    aH = 14
    p.salu("s_lshl_b32 s33, s3, 13")
    p.salu(f"s_add_u32 s33, s33, {HANDOFF}")
    p.valu(f"v_lshlrev_b32 v{aH}, 4, v0", wr=[aH], rd=[0])
    p.valu(f"v_add_u32 v{aH}, s33, v{aH}", wr=[aH], rd=[aH])
    p.salu("s_mov_b32 s49, -65536"); p.salu("s_mov_b32 s50, 32768")
    p.salu("s_mov_b32 s35, 0")
    p.salu("s_mov_b32 s46, 0")
    for i in range(10): p.barrier()

    def step(first):
        p.comment("step top")
        p.raw(f"    s_waitcnt vmcnt({16 if first else 8})")
        p.barrier()
        p.reset_tracking()
        if first:
            for j in range(8):
                p.ds_read("ds_read_b128", Q + 4*j, 4, aH, off=j * 1024)
        for j in range(8):
            p.ds_read("ds_read_b128", KF + 4*j, 4, aK + j)
        if first:
            p.salu("s_cmp_eq_u32 s46, 0")
            p.branch(f"s_cbranch_scc1 {name}_skipissue")
        issue_tile(); adv_tile()
        if first:
            p.label(f"{name}_skipissue")
            for b in range(64):
                p.valu(f"v_mov_b32 v{O+b}, 0", wr=[O+b])
            p.valu(f"v_mov_b32 v{L0}, 0", wr=[L0]); p.valu(f"v_mov_b32 v{L1}, 0", wr=[L1])
        def softmax_ops(S, P):
            ops = []
            for i in range(0, 16, 2):
                ops.append(lambda i=i: p.trans(f"v_exp_f32 v{S+i}, v{S+i}", wr=[S+i], rd=[S+i]))
                ops.append(lambda i=i: p.trans(f"v_exp_f32 v{S+i+1}, v{S+i+1}", wr=[S+i+1], rd=[S+i+1]))
                if i >= 2:
                    k = i - 2
                    ops.append(lambda k=k: p.valu(f"v_add_f32 v{L0}, v{L0}, v{S+k}", wr=[L0], rd=[L0, S+k]))
                    ops.append(lambda k=k: p.valu(f"v_add_f32 v{L1}, v{L1}, v{S+k+1}", wr=[L1], rd=[L1, S+k+1]))
                    ops.append(lambda k=k: p.valu(f"v_cvt_pk_bf16_f32 v{P+k//2}, v{S+k}, v{S+k+1}", wr=[P+k//2], rd=[S+k, S+k+1]))
            k = 14
            ops.append(lambda k=k: p.valu(f"v_add_f32 v{L0}, v{L0}, v{S+k}", wr=[L0], rd=[L0, S+k]))
            ops.append(lambda k=k: p.valu(f"v_add_f32 v{L1}, v{L1}, v{S+k+1}", wr=[L1], rd=[L1, S+k+1]))
            ops.append(lambda k=k: p.valu(f"v_cvt_pk_bf16_f32 v{P+k//2}, v{S+k}, v{S+k+1}", wr=[P+k//2], rd=[S+k, S+k+1]))
            return ops
        def vread(t, ks2, blk):
            d = VF + (ks2 * 4 + blk) * 4
            ks = 2 * t + ks2
            p.ds_read("ds_read_b64_tr_b16", d, 2, aV + blk, off=ks * 4096)
            p.ds_read("ds_read_b64_tr_b16", d + 2, 2, aV + blk, off=ks * 4096 + 2048)
        for j in range(8):
            if j == 0:
                if first: p.mfma32(S0, KF, Q, czero=True)
                else: p.mfma32(S0, KF, Q, C=C)
            else:
                p.mfma32(S0, KF + 4*j, Q + 4*j)
            p.ds_read("ds_read_b128", KF + 4*j, 4, aK + j, off=8192)
        if first:
            p.valu(f"v_max3_f32 v{T}, v{S0}, v{S0+1}, v{S0+2}", wr=[T], rd=[S0, S0+1, S0+2])
            for i in range(3, 15, 2):
                p.valu(f"v_max3_f32 v{T}, v{T}, v{S0+i}, v{S0+i+1}", wr=[T], rd=[T, S0+i, S0+i+1])
            p.valu(f"v_max_f32 v{T}, v{T}, v{S0+15}", wr=[T], rd=[T, S0+15])
            p.valu(f"v_mov_b32 v{T+1}, v{T}", wr=[T+1], rd=[T])
            p.perm(f"v_permlane32_swap_b32 v{T}, v{T+1}", [T, T+1])
            p.valu(f"v_max_f32 v{T}, v{T}, v{T+1}", wr=[T], rd=[T, T+1])
            for i in range(16):
                p.valu(f"v_sub_f32 v{C+i}, 0, v{T}", wr=[C+i], rd=[T])
            for i in range(16):
                p.valu(f"v_sub_f32 v{S0+i}, v{S0+i}, v{T}", wr=[S0+i], rd=[S0+i, T])
        sm = softmax_ops(S0, P0)
        vr_list = [(0, ks2, blk) for ks2 in range(2) for blk in range(4)]
        per = [0, 0, 7, 7, 7, 7, 6, 6]
        for j in range(8):
            if j == 0: p.mfma32(S1, KF, Q, C=C)
            else: p.mfma32(S1, KF + 4*j, Q + 4*j)
            vread(*vr_list[j])
            for _ in range(per[j]):
                if sm: sm.pop(0)()
        while sm: sm.pop(0)()
        sm = softmax_ops(S1, P1)
        n = 0
        for ks2 in range(2):
            for blk in range(4):
                p.mfma32(O + 16*blk, VF + (ks2*4+blk)*4, P0 + 4*ks2)
                vread(1, ks2, blk)
                for _ in range(per[n]):
                    if sm: sm.pop(0)()
                n += 1
        while sm: sm.pop(0)()
        p.salu("s_add_u32 s35, s35, 1")
        p.salu("s_cmp_eq_u32 s35, 3")
        p.salu("s_cselect_b32 s33, s49, s50")
        p.salu("s_cselect_b32 s35, 0, s35")
        for ks2 in range(2):
            for blk in range(4):
                p.mfma32(O + 16*blk, VF + (ks2*4+blk)*4, P1 + 4*ks2)
                if ks2 == 0:
                    p.valu(f"v_add_u32 v{aK+2*blk}, s33, v{aK+2*blk}", wr=[aK+2*blk], rd=[aK+2*blk])
                    p.valu(f"v_add_u32 v{aK+2*blk+1}, s33, v{aK+2*blk+1}", wr=[aK+2*blk+1], rd=[aK+2*blk+1])
                else:
                    p.valu(f"v_add_u32 v{aV+blk}, s33, v{aV+blk}", wr=[aV+blk], rd=[aV+blk])
        p.wait(lgkm=0)

    p.label(f"{name}_Apair")
    step(True)
    p.salu("s_mov_b32 s47, 15")
    p.label(f"{name}_Aloop")
    step(False)
    p.salu("s_sub_u32 s47, s47, 1")
    p.salu("s_cmp_lg_u32 s47, 0")
    p.branch(f"s_cbranch_scc1 {name}_Aloop")
    p.nop(12)
    p.valu(f"v_add_f32 v{L0}, v{L0}, v{L1}", wr=[L0], rd=[L0, L1])
    p.valu(f"v_mov_b32 v{T}, v{L0}", wr=[T], rd=[L0])
    p.perm(f"v_permlane32_swap_b32 v{L0}, v{T}", [L0, T])
    p.valu(f"v_add_f32 v{L0}, v{L0}, v{T}", wr=[L0], rd=[L0, T])
    p.trans(f"v_rcp_f32 v{T}, v{L0}", wr=[T], rd=[L0])
    for blk in range(4):
        for u in range(2):
            for i in range(8):
                r = O + 16*blk + 8*u + i
                p.valu(f"v_mul_f32 v{r}, v{r}, v{T}", wr=[r], rd=[r, T])
            d = S0 + (blk * 2 + u) * 4
            for i in range(4):
                r = O + 16*blk + 8*u + 2*i
                p.valu(f"v_cvt_pk_bf16_f32 v{d+i}, v{r}, v{r+1}", wr=[d+i], rd=[r, r+1])
            p.bstore(d, 4, voO, "s[24:27]", "s34", off=blk * 1024 + u * 512, tag="ost")
    p.salu(f"s_add_u32 s34, s34, {16*4*1024}")
    p.salu("s_add_u32 s46, s46, 1")
    p.salu("s_cmp_lt_u32 s46, 2")
    p.nop(2)
    p.branch(f"s_cbranch_scc1 {name}_Apair")
    p.raw("    s_waitcnt vmcnt(0)")
    p.branch(f"s_branch {name}_done")

    p.label(f"{name}_P")
    p.out.append(Ins("s_nop 4", "nop", states=25))
    p.reset_tracking()
    QA = 64; XS = 128; WF = 192; aW = 240; voW = 1; voX = 2; QP = 32; T = 4; aHW = 3
    p.salu("s_sub_u32 s3, s3, 4")
    p.valu(f"v_lshrrev_b32 v{T}, 4, v0", wr=[T], rd=[0])
    p.valu(f"v_and_b32 v{T+1}, 15, v0", wr=[T+1], rd=[0])
    p.valu(f"v_lshlrev_b32 v{T+2}, 2, v{T}", wr=[T+2], rd=[T])
    p.valu(f"v_xor_b32 v{T+2}, v{T+2}, v{T+1}", wr=[T+2], rd=[T+2, T+1])
    p.valu(f"v_lshlrev_b32 v{T+2}, 4, v{T+2}", wr=[T+2], rd=[T+2])
    p.valu(f"v_lshl_add_u32 v{voW}, v{T}, 13, v{T+2}", wr=[voW], rd=[T, T+2])
    p.valu(f"v_and_b32 v{T}, 31, v0", wr=[T], rd=[0])
    p.salu("s_lshl_b32 s33, s3, 5")
    p.valu(f"v_add_u32 v{T}, s33, v{T}", wr=[T], rd=[T])
    p.valu(f"v_mul_u32_u24 v{T}, 1280, v{T}", wr=[T], rd=[T])
    p.valu(f"v_lshrrev_b32 v{T+2}, 5, v0", wr=[T+2], rd=[0])
    p.valu(f"v_lshl_add_u32 v{voX}, v{T+2}, 4, v{T}", wr=[voX], rd=[T+2, T])
    p.valu(f"v_bfe_u32 v{T+4}, v0, 2, 2", wr=[T+4], rd=[0])
    p.valu(f"v_lshl_add_u32 v{T+5}, v{T+2}, 3, v{T+4}", wr=[T+5], rd=[T+2, T+4])
    p.valu(f"v_lshlrev_b32 v{T+5}, 8, v{T+5}", wr=[T+5], rd=[T+5])
    p.valu(f"v_bfe_u32 v{T+6}, v0, 4, 1", wr=[T+6], rd=[0])
    p.valu(f"v_lshl_add_u32 v{T+5}, v{T+6}, 5, v{T+5}", wr=[T+5], rd=[T+6, T+5])
    p.valu(f"v_and_b32 v{T+6}, 1, v0", wr=[T+6], rd=[0])
    p.valu(f"v_lshl_add_u32 v{T+5}, v{T+6}, 4, v{T+5}", wr=[T+5], rd=[T+6, T+5])
    p.valu(f"v_bfe_u32 v{T+6}, v0, 1, 1", wr=[T+6], rd=[0])
    p.valu(f"v_lshl_add_u32 v{T+5}, v{T+6}, 3, v{T+5}", wr=[T+5], rd=[T+6, T+5])
    for b in range(4):
        p.valu(f"v_xor_b32 v{T+6}, {b}, v{T+4}", wr=[T+6], rd=[T+4])
        p.valu(f"v_lshl_add_u32 v{aW+b}, v{T+6}, 6, v{T+5}", wr=[aW+b], rd=[T+6, T+5])
    p.salu("s_lshl_b32 s33, s3, 13")
    p.salu(f"s_add_u32 s33, s33, {HANDOFF}")
    p.valu(f"v_lshlrev_b32 v{aHW}, 4, v0", wr=[aHW], rd=[0])
    p.valu(f"v_add_u32 v{aHW}, s33, v{aHW}", wr=[aHW], rd=[aHW])
    p.salu("s_lshl_b32 s28, s3, 17")
    p.salu("s_lshl_b32 s33, s6, 8")
    p.salu("s_add_u32 s28, s28, s33")
    p.salu("s_mul_i32 s29, s7, 163840")
    p.salu("s_lshl_b32 s30, s3, 12")
    p.salu("s_mov_b32 s46, 0")
    p.salu(f"s_mov_b32 s48, {hex(f2u(QSCALE))}")
    def p_issue(j):
        slot = j % 4
        for i in range(4):
            p.salu(f"s_add_u32 m0, s30, {PRING + slot*16384 + i*1024}", swr=["m0"])
            p.salu(f"s_add_u32 s33, s28, {(64*j + 4*i) * 8192}")
            p.dma(voW, "s[16:19]", "s33", tag=f"w{j}")
        for ks in range(4):
            p.bload(XS + slot*16 + ks*4, 4, voX, "s[20:23]", "s29", off=j*128 + ks*32, tag=f"x{j}")
    p.label(f"{name}_Ppass")
    p.reset_tracking()
    for j in range(3): p_issue(j)
    for b in range(64):
        p.valu(f"v_mov_b32 v{QA+b}, 0", wr=[QA+b])
    for j in range(10):
        p.comment(f"P step {j}")
        p.wait_tag(f"x{j}")
        p.barrier()
        slot = j % 4
        def wread(ks, blk):
            d = WF + (ks % 2) * 16 + blk * 4
            p.ds_read("ds_read_b64_tr_b16", d, 2, aW + blk, off=slot*16384 + ks*4096)
            p.ds_read("ds_read_b64_tr_b16", d + 2, 2, aW + blk, off=slot*16384 + ks*4096 + 1024)
        for blk in range(4): wread(0, blk)
        if j + 3 < 10: p_issue(j + 3)
        for ks in range(4):
            for blk in range(4):
                if ks + 1 < 4: wread(ks + 1, blk)
                p.mfma32(QA + 16*blk, WF + (ks % 2)*16 + blk*4, XS + slot*16 + ks*4)
    for blk in range(4):
        for u in range(2):
            for i in range(8):
                r = QA + 16*blk + 8*u + i
                p.valu(f"v_mul_f32 v{r}, s48, v{r}", wr=[r], rd=[r])
            d = QP + (blk*2 + u) * 4
            for i in range(4):
                r = QA + 16*blk + 8*u + 2*i
                p.valu(f"v_cvt_pk_bf16_f32 v{d+i}, v{r}, v{r+1}", wr=[d+i], rd=[r, r+1])
            p.ds_write("ds_write_b128", aHW, d, 4, off=(blk*2 + u) * 1024)
    p.wait(lgkm=0)
    p.salu("s_cmp_eq_u32 s46, 1")
    p.branch(f"s_cbranch_scc1 {name}_Pidle")
    p.barrier(); p.barrier()
    p.salu("s_mov_b32 s46, 1")
    p.salu(f"s_add_u32 s28, s28, {16*256}")
    p.branch(f"s_branch {name}_Ppass")
    p.label(f"{name}_Pidle")
    for i in range(20): p.barrier()
    p.label(f"{name}_done")
    p.raw("    s_endpgm")
    return p, name

def gen_k2(opts):
    p = Prog()
    name = opts.get("name", "k2_kernel")
    p.raw(f".globl {name}\n.p2align 8\n.type {name},@function\n{name}:")
    p.salu("s_cmp_ge_u32 s2, 256")
    p.branch(f"s_cbranch_scc1 {name}_done")
    p.salu("s_load_dwordx4 s[36:39], s[0:1], 32")
    p.salu("s_load_dwordx2 s[44:45], s[0:1], 56")
    p.valu("v_lshrrev_b32 v1, 6, v0", wr=[1], rd=[0])
    p.valu("v_and_b32 v0, 63, v0", wr=[0], rd=[0])
    p.rfl("s3", 1)
    p.salu("s_and_b32 s4, s2, 7")
    p.salu("s_lshr_b32 s5, s2, 3")
    p.salu("s_lshr_b32 s6, s4, 1"); p.salu("s_lshl_b32 s6, s6, 3"); p.salu("s_lshr_b32 s7, s5, 2"); p.salu("s_add_u32 s6, s6, s7")
    p.salu("s_and_b32 s7, s4, 1"); p.salu("s_lshl_b32 s7, s7, 2"); p.salu("s_and_b32 s5, s5, 3"); p.salu("s_add_u32 s7, s7, s5")
    p.raw("    s_waitcnt lgkmcnt(0)")
    srd(p, 8, 36, 4096 * 640 * 2)
    srd(p, 12, 38, 2048 * 640 * 2)
    srd(p, 24, 44, 128 * 128 * 1024)
    ACC = 64; BF = 144; AF = 192; voW = 232; aA = 1; voB = 2; T = 4
    p.salu("s_mov_b32 s33, 0x1999999a")
    for i in range(5):
        p.valu(f"v_add_u32 v{T}, {64*i}, v0", wr=[T], rd=[0])
        p.valu(f"v_mul_hi_u32 v{T+1}, v{T}, s33", wr=[T+1], rd=[T])
        p.valu(f"v_mul_u32_u24 v{T+2}, 10, v{T+1}", wr=[T+2], rd=[T+1])
        p.valu(f"v_sub_u32 v{T+2}, v{T}, v{T+2}", wr=[T+2], rd=[T, T+2])
        p.valu(f"v_mul_u32_u24 v{T+1}, 1280, v{T+1}", wr=[T+1], rd=[T+1])
        p.valu(f"v_lshl_add_u32 v{voW+i}, v{T+2}, 4, v{T+1}", wr=[voW+i], rd=[T+2, T+1])
    p.salu("s_mul_i32 s30, s3, 15360")
    p.valu(f"v_lshrrev_b32 v{T}, 5, v0", wr=[T], rd=[0])
    p.valu(f"v_bfe_u32 v{T+1}, v0, 4, 1", wr=[T+1], rd=[0])
    p.valu(f"v_bfe_u32 v{T+2}, v0, 2, 2", wr=[T+2], rd=[0])
    p.valu(f"v_lshl_add_u32 v{T+2}, v{T+1}, 2, v{T+2}", wr=[T+2], rd=[T+1, T+2])
    p.valu(f"v_lshl_add_u32 v{T+2}, v{T}, 4, v{T+2}", wr=[T+2], rd=[T, T+2])
    p.valu(f"v_mul_u32_u24 v{T+2}, 160, v{T+2}", wr=[T+2], rd=[T+2])
    p.valu(f"v_and_b32 v{T+1}, 3, v0", wr=[T+1], rd=[0])
    p.valu(f"v_lshl_add_u32 v{T+2}, v{T+1}, 3, v{T+2}", wr=[T+2], rd=[T+1, T+2])
    p.valu(f"v_add_u32 v{aA}, s30, v{T+2}", wr=[aA], rd=[T+2])
    p.valu(f"v_lshlrev_b32 v{voB}, 4, v0", wr=[voB], rd=[0])
    p.salu(f"s_mul_i32 s28, s3, {32*16*1280}")
    p.salu("s_mul_i32 s33, s7, 160"); p.salu("s_add_u32 s28, s28, s33")
    p.salu("s_lshl_b32 s29, s6, 9"); p.salu("s_lshl_b32 s33, s3, 4"); p.salu("s_add_u32 s29, s29, s33"); p.salu("s_lshl_b32 s29, s29, 10")
    for q in range(1, 4):
        p.salu(f"s_add_u32 s{48+q}, s29, {q*131072}")
    p.salu("s_mov_b32 s48, s29")
    def issue(i):
        slot = i % 3
        p.salu(f"s_add_u32 s33, s28, {i*32*1280}")
        for k in range(5):
            p.salu(f"s_add_u32 m0, s30, {slot*5120 + k*1024}", swr=["m0"])
            p.dma(voW + k, "s[8:11]", "s33", tag=f"w{i}")
        for q in range(4):
            p.bload(BF + slot*16 + q*4, 4, voB, "s[24:27]", f"s{48+q}", off=0, tag=f"b{i}") if i == 0 else None
            if i > 0:
                p.salu(f"s_add_u32 s34, s{48+q}, {i*1024}")
                p.bload(BF + slot*16 + q*4, 4, voB, "s[24:27]", "s34", tag=f"b{i}")
    issue(0); issue(1)
    for r in range(80):
        p.valu(f"v_mov_b32 v{ACC+r}, 0", wr=[ACC+r])
    for i in range(16):
        p.comment(f"kstep {i}")
        slot = i % 3
        if i + 2 < 16: issue(i + 2)
        p.wait_tag(f"b{i}")
        for nb in range(5):
            d = AF + nb*4
            p.ds_read("ds_read_b64_tr_b16", d, 2, aA, off=slot*5120 + nb*32)
            p.ds_read("ds_read_b64_tr_b16", d + 2, 2, aA, off=slot*5120 + nb*32 + 1280)
        for nb in range(5):
            for q in range(4):
                p.mfma16(ACC + (nb*4 + q)*4, AF + nb*4, BF + slot*16 + q*4)
    p.wait(vm=0, lgkm=0)
    p.barrier()
    p.salu("s_mul_i32 s33, s3, 20480")
    p.valu(f"v_add_u32 v{T}, s33, v{voB}", wr=[T], rd=[voB])
    for t in range(20):
        p.ds_write("ds_write_b128", T, ACC + 4*t, 4, off=t*1024)
    p.wait(lgkm=0)
    p.barrier()
    p.valu(f"v_and_b32 v{T+1}, 15, v0", wr=[T+1], rd=[0])
    p.valu(f"v_mul_u32_u24 v{T+1}, 1280, v{T+1}", wr=[T+1], rd=[T+1])
    p.valu(f"v_lshrrev_b32 v{T+2}, 4, v0", wr=[T+2], rd=[0])
    p.valu(f"v_lshl_add_u32 v{T+1}, v{T+2}, 3, v{T+1}", wr=[T+1], rd=[T+2, T+1])
    p.salu(f"s_mul_i32 s34, s6, {64*1280}")
    p.salu("s_mul_i32 s33, s7, 160"); p.salu("s_add_u32 s34, s34, s33")
    p.salu("s_lshl_b32 s35, s3, 10")
    p.valu(f"v_add_u32 v{T+3}, s35, v{voB}", wr=[T+3], rd=[voB])
    for rnd in range(3):
        if rnd == 2:
            p.salu("s_cmp_ge_u32 s3, 4")
            p.branch(f"s_cbranch_scc1 {name}_done")
        p.salu(f"s_add_u32 s40, s3, {8*rnd}")
        p.salu("s_lshr_b32 s41, s40, 2"); p.salu("s_and_b32 s42, s40, 3")
        p.salu("s_lshl_b32 s41, s41, 5")
        p.salu(f"s_mul_i32 s42, s42, {16*1280}")
        p.salu("s_add_u32 s41, s41, s42"); p.salu("s_add_u32 s41, s41, s34")
        for w in range(8):
            off = w * 20480 + rnd * 8192
            if off < 65536:
                p.ds_read("ds_read_b128", ACC + 4*w, 4, T + 3, off=off)
            else:
                p.valu(f"v_add_u32 v{T+4}, {off}, v{T+3}", wr=[T+4], rd=[T+3])
                p.ds_read("ds_read_b128", ACC + 4*w, 4, T + 4)
        for w in range(1, 8):
            for r in range(4):
                p.valu(f"v_add_f32 v{ACC+r}, v{ACC+r}, v{ACC+4*w+r}", wr=[ACC+r], rd=[ACC+r, ACC+4*w+r])
        p.valu(f"v_cvt_pk_bf16_f32 v{ACC+40}, v{ACC}, v{ACC+1}", wr=[ACC+40], rd=[ACC, ACC+1])
        p.valu(f"v_cvt_pk_bf16_f32 v{ACC+41}, v{ACC+2}, v{ACC+3}", wr=[ACC+41], rd=[ACC+2, ACC+3])
        p.bstore(ACC + 40, 2, T + 1, "s[12:15]", "s41")
        p.nop(2)
    p.label(f"{name}_done")
    p.raw("    s_endpgm")
    return p, name

def build(path, opts={}):
    k1, n1 = gen_k1({"name": "k1_kernel"})
    k2, n2 = gen_k2({"name": "k2_kernel"})
    hdr = open("standalone__mha_block_cached__near_ridge.s.ref").read().split("; Override")[0]
    o = [hdr.rstrip()]
    o.append(f"; @launch kernel={n1} grid=(256,1,1) block=(512,1,1) lds=163840")
    o.append(f"; @launch kernel={n2} grid=(256,1,1) block=(512,1,1) lds=163840")
    o.append('.amdgcn_target "amdgcn-amd-amdhsa--gfx950"\n.text')
    o.append(k1.text()); o.append(k2.text())
    o.append('.section .rodata,"a"\n.p2align 6')
    o.append(KD.format(name=n1, vgpr=256, sgpr=96, acc=256))
    o.append(".p2align 6")
    o.append(KD.format(name=n2, vgpr=256, sgpr=96, acc=256))
    open(path, "w").write("\n".join(o) + "\n")
    print("nops k1", k1.nops, "k2", k2.nops, "lines", len(k1.out), len(k2.out))

if __name__ == "__main__":
    build(sys.argv[1] if len(sys.argv) > 1 else "v1.s")
```

```python
import sys, struct
from fw import *

LOG2E = 1.4426950408889634
QSCALE = LOG2E / (128 ** 0.5)
def f2u(f): return struct.unpack("<I", struct.pack("<f", f))[0]

KVRING = 65536
QHAND = 0
OHAND = 32768
WOT = 0x1800000

def srd(p, dst, ptr, size):
    p.salu(f"s_mov_b32 s{dst}, s{ptr}")
    p.salu(f"s_and_b32 s{dst+1}, s{ptr+1}, 0xffff")
    p.salu(f"s_mov_b32 s{dst+2}, {hex(size)}")
    p.salu(f"s_mov_b32 s{dst+3}, 0x20000")

class Stamps:
    def __init__(s, p, opts, base=0x2000000, key="wgt"): s.p = p; s.on = opts.get(key, 0); s.base = base
    def __call__(s, k):
        if not s.on: return
        s.p.raw(f"    s_memrealtime s[68:69]\n    s_waitcnt lgkmcnt(0)\n    s_mov_b32 s{70+k}, s68")
        s.p.lg = []
    def cyc(s, k):
        if not s.on: return
        s.p.raw(f"    s_memtime s[68:69]\n    s_waitcnt lgkmcnt(0)\n    s_mov_b32 s{70+k}, s68")
        s.p.lg = []
    def dump(s, wavereg):
        if not s.on: return
        t = """    s_waitcnt vmcnt(0)
    s_mov_b32 s60, s44
    s_and_b32 s61, s45, 0xffff
    s_mov_b32 s62, 0x4000000
    s_mov_b32 s63, 0x20000
    s_lshl_b32 s64, s2, 3
    s_add_u32 s64, s64, %s
    s_lshl_b32 s64, s64, 6
    s_add_u32 s64, s64, %s
    v_mov_b32 v20, 0
""" % (wavereg, hex(s.base))
        for q in range(4):
            for i in range(4): t += f"    v_mov_b32 v{16+i}, s{70+4*q+i}\n"
            t += f"    s_nop 1\n    buffer_store_dwordx4 v[16:19], v20, s[60:63], s64 offen offset:{16*q}\n    s_nop 2\n"
        s.p.raw(t + "    s_waitcnt vmcnt(0)")

def gen_k1(opts):
    p = Prog()
    st = Stamps(p, opts)
    NT = " nt"
    WN = [" nt" if opts.get("wnt0", 1) else "", " nt" if opts.get("wnt1", 0) else ""]
    XNT = " nt" if opts.get("xnt", 1) else ""
    cur = [0]
    STF = ["", " nt", " sc1", " sc0 sc1", " sc1 nt", " sc0 sc1 nt"][opts.get("stnt", 3)]
    name = opts.get("name", "k1_kernel")
    p.raw(f".globl {name}\n.p2align 8\n.type {name},@function\n{name}:")
    p.salu("s_cmp_ge_u32 s2, 256")
    p.branch(f"s_cbranch_scc1 {name}_done")
    p.salu("s_load_dwordx8 s[36:43], s[0:1], 0")
    p.salu("s_load_dwordx2 s[44:45], s[0:1], 56")
    p.salu("s_load_dwordx2 s[52:53], s[0:1], 32")
    p.salu("s_load_dwordx4 s[56:59], s[0:1], 40")
    p.valu("v_lshrrev_b32 v1, 6, v0", wr=[1], rd=[0])
    p.valu("v_and_b32 v0, 63, v0", wr=[0], rd=[0])
    p.rfl("s3", 1)
    p.salu("s_and_b32 s4, s2, 7")
    p.salu("s_lshr_b32 s5, s2, 3")
    mp = opts.get("map", 2)
    if mp == 0:
        p.salu("s_lshr_b32 s6, s4, 1"); p.salu("s_lshl_b32 s6, s6, 2"); p.salu("s_and_b32 s7, s5, 3"); p.salu("s_add_u32 s6, s6, s7")
        p.salu("s_and_b32 s7, s4, 1"); p.salu("s_lshl_b32 s7, s7, 3"); p.salu("s_lshr_b32 s5, s5, 2"); p.salu("s_add_u32 s7, s7, s5")
    elif mp == 1:
        p.salu("s_and_b32 s6, s5, 15"); p.salu("s_lshl_b32 s7, s4, 1"); p.salu("s_lshr_b32 s5, s5, 4"); p.salu("s_add_u32 s7, s7, s5")
    elif mp == 2:
        p.salu("s_and_b32 s6, s4, 1"); p.salu("s_lshl_b32 s6, s6, 3"); p.salu("s_and_b32 s7, s5, 7"); p.salu("s_add_u32 s6, s6, s7")
        p.salu("s_lshr_b32 s7, s4, 1"); p.salu("s_lshl_b32 s7, s7, 2"); p.salu("s_lshr_b32 s5, s5, 3"); p.salu("s_add_u32 s7, s7, s5")
    if st.on:
        for k in range(16): p.raw(f"    s_mov_b32 s{70+k}, 0")
    p.raw("    s_waitcnt lgkmcnt(0)")
    st(0)
    p.salu("s_cmp_lt_u32 s3, 4")
    p.branch(f"s_cbranch_scc1 {name}_A")

    QA = 0; XR = 64; WF = 224; voW = 240; aW = 241; voK = 245; voV = 249; voX = 250; aXlo = 252; aWhi = 192; aXhi = 196
    T = 4
    srd(p, 16, 42, 640 * 4096 * 2)
    srd(p, 20, 36, 16 * 128 * 640 * 2)
    p.salu("s_sub_u32 s3, s3, 4")
    p.valu(f"v_lshrrev_b32 v{T}, 4, v0", wr=[T], rd=[0])
    p.valu(f"v_and_b32 v{T+1}, 15, v0", wr=[T+1], rd=[0])
    p.valu(f"v_lshlrev_b32 v{T+2}, 2, v{T}", wr=[T+2], rd=[T])
    p.valu(f"v_xor_b32 v{T+2}, v{T+2}, v{T+1}", wr=[T+2], rd=[T+2, T+1])
    p.valu(f"v_lshlrev_b32 v{T+2}, 4, v{T+2}", wr=[T+2], rd=[T+2])
    p.valu(f"v_lshl_add_u32 v{voW}, v{T}, 13, v{T+2}", wr=[voW], rd=[T, T+2])
    p.valu(f"v_lshl_add_u32 v{voV}, v{T}, 8, v{T+2}", wr=[voV], rd=[T, T+2])
    p.valu(f"v_lshrrev_b32 v{T+2}, 3, v0", wr=[T+2], rd=[0])
    p.valu(f"v_mul_u32_u24 v{T+2}, 1280, v{T+2}", wr=[T+2], rd=[T+2])
    p.valu(f"v_and_b32 v{T+3}, 7, v0", wr=[T+3], rd=[0])
    for e in range(2):
        p.valu(f"v_add_u32 v{T+4}, {4*e}, v{T}", wr=[T+4], rd=[T])
        p.valu(f"v_xor_b32 v{T+4}, v{T+4}, v{T+3}", wr=[T+4], rd=[T+4, T+3])
        p.valu(f"v_lshl_add_u32 v{voX+e}, v{T+4}, 4, v{T+2}", wr=[voX+e], rd=[T+4, T+2])
    p.salu("s_lshl_b32 s28, s3, 17")
    p.salu("s_lshl_b32 s33, s6, 8")
    p.salu("s_add_u32 s28, s28, s33")
    p.salu("s_mul_i32 s29, s7, 163840")
    p.salu(f"s_mul_i32 s33, s3, {32*1280}")
    p.salu("s_add_u32 s29, s29, s33")
    p.salu("s_lshl_b32 s30, s3, 12")
    slots0 = [0, 32768, KVRING + 32768, KVRING + 65536]
    def w_ops(j, slotbase):
        ops = []
        if opts.get("nopld"): return ops
        def f(i):
            p.salu(f"s_add_u32 m0, s30, {slotbase + i*1024}", swr=["m0"])
            p.salu(f"s_add_u32 s33, s28, {(64*j + 4*i) * 8192}")
            p.dma(voW, "s[16:19]", "s33", tag=f"w{j}", flags=WN[cur[0]])
        for i in range(4): ops.append(lambda i=i: f(i))
        return ops
    def x_ops(j, slotbase):
        ops = []
        if opts.get("nopld"): return ops
        def f(i):
            p.salu(f"s_add_u32 m0, s30, {slotbase + 16384 + i*1024}", swr=["m0"])
            p.salu(f"s_add_u32 s33, s29, {j*128 + i*10240}")
            p.dma(voX + (i & 1), "s[20:23]", "s33", tag=f"x{j}", flags=XNT)
        for i in range(4): ops.append(lambda i=i: f(i))
        return ops
    npre = opts.get("npre", 3)
    for j in range(npre):
        for o in w_ops(j, slots0[j]) + x_ops(j, slots0[j]): o()
    srd(p, 8, 38, 0x8000000)
    srd(p, 12, 40, 0x8000000)
    srd(p, 24, 44, 0x2000000)
    for i in range(4):
        p.valu(f"v_add_u32 v{T+2}, {4*i}, v{T}", wr=[T+2], rd=[T])
        p.valu(f"v_xor_b32 v{T+2}, v{T+2}, v{T+1}", wr=[T+2], rd=[T+2, T+1])
        p.valu(f"v_lshlrev_b32 v{T+2}, 4, v{T+2}", wr=[T+2], rd=[T+2])
        p.valu(f"v_lshl_add_u32 v{voK+i}, v{T}, 8, v{T+2}", wr=[voK+i], rd=[T, T+2])
    p.salu("s_lshl_b32 s31, s7, 5")
    p.salu("s_add_u32 s31, s31, s6")
    p.salu("s_lshl_b32 s31, s31, 18")
    p.salu("s_add_u32 s31, s31, s30")
    p.salu(f"s_add_u32 s32, s30, {KVRING}")
    p.salu("s_mov_b32 s34, 0")
    kvn = [0]
    def kv_ops(tag=None):
        ops = []
        tg = tag if tag else f"kv{kvn[0]}"
        kvn[0] += 1
        def k(i):
            if i == 0: p.salu("s_mov_b32 m0, s32", swr=["m0"])
            if not opts.get("nokv"): p.dma(voK + i, "s[8:11]", "s31", off=i * 1024, flags=NT, tag=tg)
        def v(i):
            if i == 0: p.salu("s_add_u32 m0, s32, 16384", swr=["m0"])
            if not opts.get("nokv"): p.dma(voV, "s[12:15]", "s31", off=i * 1024, flags=NT, tag=tg)
            if i == 3:
                p.salu("s_add_u32 s31, s31, 16384")
                p.salu("s_add_u32 s34, s34, 1")
                p.salu("s_cmp_eq_u32 s34, 16")
                p.salu(f"s_cselect_b32 s33, {hex(15 * 262144)}, 0")
                p.salu("s_add_u32 s31, s31, s33")
                p.salu("s_cmp_ge_u32 s34, 32")
                p.salu("s_cselect_b32 s31, 0x8000000, s31")
                p.salu("s_add_u32 s32, s32, 32768")
                p.salu(f"s_cmp_ge_u32 s32, {KVRING + 3*32768}")
                p.salu("s_cselect_b32 s33, 98304, 0")
                p.salu("s_sub_u32 s32, s32, s33")
        for i in range(4): ops.append(lambda i=i: k(i))
        for i in range(4): ops.append(lambda i=i: v(i))
        return ops
    def run(ops):
        for o in ops: o()
    if not opts.get("kv0late"): run(kv_ops())
    L = 0
    p.valu(f"v_lshrrev_b32 v{T+2}, 5, v{L}", wr=[T+2], rd=[L])
    p.valu(f"v_bfe_u32 v{T+4}, v{L}, 2, 2", wr=[T+4], rd=[L])
    p.valu(f"v_lshl_add_u32 v{T+5}, v{T+2}, 3, v{T+4}", wr=[T+5], rd=[T+2, T+4])
    p.valu(f"v_lshlrev_b32 v{T+5}, 8, v{T+5}", wr=[T+5], rd=[T+5])
    p.valu(f"v_bfe_u32 v{T+6}, v{L}, 4, 1", wr=[T+6], rd=[L])
    p.valu(f"v_lshl_add_u32 v{T+5}, v{T+6}, 5, v{T+5}", wr=[T+5], rd=[T+6, T+5])
    p.valu(f"v_and_b32 v{T+6}, 1, v{L}", wr=[T+6], rd=[L])
    p.valu(f"v_lshl_add_u32 v{T+5}, v{T+6}, 4, v{T+5}", wr=[T+5], rd=[T+6, T+5])
    p.valu(f"v_bfe_u32 v{T+6}, v{L}, 1, 1", wr=[T+6], rd=[L])
    p.valu(f"v_lshl_add_u32 v{T+5}, v{T+6}, 3, v{T+5}", wr=[T+5], rd=[T+6, T+5])
    for b in range(4):
        p.valu(f"v_xor_b32 v{T+6}, {b}, v{T+4}", wr=[T+6], rd=[T+4])
        p.valu(f"v_lshl_add_u32 v{aW+b}, v{T+6}, 6, v{T+5}", wr=[aW+b], rd=[T+6, T+5])
        p.valu(f"v_add_u32 v{aWhi+b}, {KVRING+32768}, v{aW+b}", wr=[aWhi+b], rd=[aW+b])
    p.valu(f"v_and_b32 v{T+4}, 31, v{L}", wr=[T+4], rd=[L])
    p.valu(f"v_bfe_u32 v{T+5}, v{L}, 1, 3", wr=[T+5], rd=[L])
    p.valu(f"v_xor_b32 v{T+5}, v{T+5}, v{T+2}", wr=[T+5], rd=[T+5, T+2])
    p.valu(f"v_lshlrev_b32 v{T+5}, 4, v{T+5}", wr=[T+5], rd=[T+5])
    p.valu(f"v_lshl_add_u32 v{T+5}, v{T+4}, 7, v{T+5}", wr=[T+5], rd=[T+4, T+5])
    p.salu("s_add_u32 s33, s30, 16384")
    p.valu(f"v_add_u32 v{T+5}, s33, v{T+5}", wr=[T+5], rd=[T+5])
    for ks in range(4):
        p.valu(f"v_xor_b32 v{aXlo+ks}, {ks*32}, v{T+5}", wr=[aXlo+ks], rd=[T+5])
        p.valu(f"v_add_u32 v{aXhi+ks}, {KVRING+32768}, v{aXlo+ks}", wr=[aXhi+ks], rd=[aXlo+ks])
    p.salu(f"s_mov_b32 s48, {hex(f2u(QSCALE))}")
    def qstep(j, slotbase, groups, xload):
        hi = slotbase >= KVRING
        off0 = slotbase - (KVRING + 32768 if hi else 0)
        aw = aWhi if hi else aW
        ax = aXhi if hi else aXlo
        def wread(ks, blk):
            d = WF + blk * 4
            p.ds_read("ds_read_b64_tr_b16", d, 2, aw + blk, off=off0 + ks*4096)
            p.ds_read("ds_read_b64_tr_b16", d + 2, 2, aw + blk, off=off0 + ks*4096 + 1024)
        X = XR + 16 * j
        if xload: p.ds_read("ds_read_b128", X, 4, ax, off=off0)
        for blk in range(4): wread(0, blk)
        if xload:
            for ks in range(1, 4):
                p.ds_read("ds_read_b128", X + 4*ks, 4, ax + ks, off=off0)
        ops = [o for g in groups for o in g]
        n = len(ops); k = 0
        for ks in range(4):
            for blk in range(4):
                if blk % 2 == 0:
                    pass
                if j == 0 and ks == 0: p.mfma32(QA + 16*blk, WF + blk*4, X, czero=True)
                else: p.mfma32(QA + 16*blk, WF + blk*4, X + ks*4)
                if ks + 1 < 4: wread(ks + 1, blk)
                idx = ks * 4 + blk
                tgt = -(-(idx + 1) * n // 16)
                while k < min(n, tgt):
                    ops[k](); k += 1
        while k < n: ops[k](); k += 1
    def lane_addr(dst, base_s_text):
        p.valu(f"v_mbcnt_lo_u32_b32 v{dst}, -1, 0", wr=[dst])
        p.valu(f"v_mbcnt_hi_u32_b32 v{dst}, -1, v{dst}", wr=[dst], rd=[dst])
        p.valu(f"v_lshlrev_b32 v{dst}, 4, v{dst}", wr=[dst], rd=[dst])
        p.valu(f"v_add_u32 v{dst}, s33, v{dst}", wr=[dst], rd=[dst])
    def qconvert():
        aHW = WF
        p.salu("s_lshl_b32 s33, s3, 13")
        p.salu(f"s_add_u32 s33, s33, {QHAND}")
        lane_addr(aHW, None)
        for blk in range(4):
            for u in range(2):
                base = QA + 16*blk + 8*u
                for i in range(8):
                    p.valu(f"v_mul_f32 v{base+i}, s48, v{base+i}", wr=[base+i], rd=[base+i])
                for i in range(4):
                    p.valu(f"v_cvt_pk_bf16_f32 v{base+i}, v{base+2*i}, v{base+2*i+1}", wr=[base+i], rd=[base+2*i, base+2*i+1])
                p.ds_write("ds_write_b128", aHW, base, 4, off=(blk*2 + u) * 1024)
        p.wait(lgkm=0)
    for j in range(10):
        p.comment(f"P pass0 step {j}")
        p.wait_tag(f"x{j}")
        p.barrier()
        if j == 0: st(1)
        if opts.get("headst"): st(6 + j)
        groups = []
        if j + 3 < 10 and j + 3 >= npre: groups += [w_ops(j + 3, slots0[(j + 3) % 4]), x_ops(j + 3, slots0[(j + 3) % 4])]
        if j in (7, 8) or (opts.get("kv0late") and j == opts.get("kv0late")): groups += [kv_ops()]
        qstep(j, slots0[j % 4], groups, True)
    st(2)
    qconvert()
    p.wait_tag("kv0")
    st(3)
    cur[0] = 1
    ACC = 64
    stage = [[144 + 4*i for i in range(18)], [4*i for i in range(16)] + [216, 220]]
    voB = 224; vZ = 228; vP = 229; vOne = 231; vPo = 232
    def out_map():
        p.salu("s_and_b32 s4, s2, 7"); p.salu("s_lshr_b32 s5, s2, 3")
        p.salu("s_lshr_b32 s33, s4, 1"); p.salu("s_lshl_b32 s33, s33, 3"); p.salu("s_lshr_b32 s35, s5, 2"); p.salu("s_add_u32 s33, s33, s35")
        p.salu("s_and_b32 s4, s4, 1"); p.salu("s_lshl_b32 s4, s4, 2"); p.salu("s_and_b32 s5, s5, 3"); p.salu("s_add_u32 s5, s4, s5")
        p.salu("s_mov_b32 s4, s33")
    def frag_bases(kstep0_reg):
        p.salu("s_lshl_b32 s33, s4, 9"); p.salu(f"s_add_u32 s33, s33, {kstep0_reg}"); p.salu("s_lshl_b32 s33, s33, 10")
        for q in range(4): p.salu(f"s_add_u32 s{36+q}, s33, {q*131072}")
        p.salu("s_mul_i32 s33, s5, 640"); p.salu(f"s_add_u32 s33, s33, {kstep0_reg}"); p.salu("s_lshl_b32 s33, s33, 10")
        for nb in range(5): p.salu(f"s_add_u32 s{sAr[nb]}, s33, {WOT + nb*131072}")
    sAr = [40, 41, 42, 43, 46]
    LDF = " sc1"
    def sig(off_ops):
        p.salu("s_cmp_lg_u32 s3, 0")
        lb = f"{name}_ns{len(p.out)}"
        p.branch(f"s_cbranch_scc1 {lb}")
        for o in off_ops: p.salu(o)
        p.salu("s_mov_b64 exec, 1")
        p.raw(f"    buffer_atomic_add v{vOne}, v{vZ}, s[16:19], s33 offen sc1")
        p.salu("s_mov_b64 exec, -1")
        p.label(lb)
    def signal_w():
        srd(p, 16, 58, 256)
        p.valu(f"v_mov_b32 v{vZ}, 0", wr=[vZ]); p.valu(f"v_mov_b32 v{vOne}, 1", wr=[vOne])
        sig(["s_mov_b32 s33, 0"])
    def signal_and_setup():
        sig(["s_lshl_b32 s33, s7, 2", "s_add_u32 s33, s33, 64"])
        for r in range(80): p.valu(f"v_mov_b32 v{ACC+r}, 0", wr=[ACC+r])
    def poll_issue():
        p.salu("s_mov_b64 exec, 3")
        p.raw(f"    buffer_load_dword v{vP}, v{vPo}, s[16:19], 0 offen sc1")
        p.salu("s_mov_b64 exec, -1")
    def poll_check(dst):
        p.raw(f"    v_readlane_b32 s33, v{vP}, 0\n    v_readlane_b32 s35, v{vP}, 1\n    s_nop 3")
        p.salu("s_cmp_eq_u32 s33, 256"); p.salu("s_cselect_b32 s33, 1, 0")
        p.salu("s_cmp_eq_u32 s35, 16"); p.salu(f"s_cselect_b32 {dst}, s33, 0")
    def o1_issue(par):
        st_ = stage[par]
        for kk in range(2):
            for nb in range(5):
                p.bload(st_[kk*9 + nb], 4, voB, "s[24:27]", f"s{sAr[nb]}", off=kk*1024, flags=LDF)
            for q in range(4):
                p.bload(st_[kk*9 + 5 + q], 4, voB, "s[24:27]", f"s{36+q}", off=kk*1024, flags=LDF)
        for r in sAr + [36, 37, 38, 39]: p.salu(f"s_add_u32 s{r}, s{r}, 2048")
    def o1_compute(par):
        st_ = stage[par]
        p.out.append(Ins("s_nop 0", "nop", states=25))
        for kk in range(2):
            for nb in range(5):
                for q in range(4):
                    p.mfma16(ACC + (nb*4 + q)*4, st_[kk*9 + nb], st_[kk*9 + 5 + q])
    def ohand_store():
        p.comment("O handoff store")
        aO = WF; voO = WF + 1
        p.salu("s_lshl_b32 s33, s3, 13"); p.salu(f"s_add_u32 s33, s33, {OHAND}")
        lane_addr(aO, None)
        for u in range(8): p.ds_read("ds_read_b128", XR + 4*u, 4, aO, off=u * 1024)
        p.valu(f"v_mbcnt_lo_u32_b32 v{voO+1}, -1, 0", wr=[voO+1])
        p.valu(f"v_mbcnt_hi_u32_b32 v{voO+1}, -1, v{voO+1}", wr=[voO+1], rd=[voO+1])
        p.valu(f"v_bfe_u32 v{voO}, v{voO+1}, 4, 1", wr=[voO], rd=[voO+1])
        p.valu(f"v_lshlrev_b32 v{voO}, 17, v{voO}", wr=[voO], rd=[voO])
        p.valu(f"v_and_b32 v{voO+2}, 15, v{voO+1}", wr=[voO+2], rd=[voO+1])
        p.valu(f"v_lshl_add_u32 v{voO}, v{voO+2}, 4, v{voO}", wr=[voO], rd=[voO+2, voO])
        p.valu(f"v_lshrrev_b32 v{voO+2}, 5, v{voO+1}", wr=[voO+2], rd=[voO+1])
        p.valu(f"v_lshl_add_u32 v{voO}, v{voO+2}, 8, v{voO}", wr=[voO], rd=[voO+2, voO])
        p.salu("s_lshl_b32 s35, s7, 3"); p.salu("s_lshl_b32 s33, s3, 1"); p.salu("s_add_u32 s35, s35, s33")
        p.salu("s_lshl_b32 s35, s35, 7"); p.salu("s_lshl_b32 s33, s6, 2"); p.salu("s_add_u32 s35, s35, s33"); p.salu("s_lshl_b32 s35, s35, 10")
        for u in range(8):
            if not opts.get("nost"): p.bstore(XR + 4*u, 4, voO, "s[24:27]", "s35", off=(u >> 1) * 1024 + (u & 1) * 512, tag="ost", flags=STF)
    def wot_issue():
        srd(p, 16, 52, 4096 * 640 * 2)
        Tm = XR
        p.valu(f"v_mbcnt_lo_u32_b32 v{Tm+8}, -1, 0", wr=[Tm+8])
        p.valu(f"v_mbcnt_hi_u32_b32 v{Tm+8}, -1, v{Tm+8}", wr=[Tm+8], rd=[Tm+8])
        p.salu("s_mov_b32 s33, 0x1999999a")
        for i in range(5):
            p.valu(f"v_add_u32 v{Tm+5}, {64*i}, v{Tm+8}", wr=[Tm+5], rd=[Tm+8])
            p.valu(f"v_mul_hi_u32 v{Tm+6}, v{Tm+5}, s33", wr=[Tm+6], rd=[Tm+5])
            p.valu(f"v_mul_u32_u24 v{Tm+7}, 10, v{Tm+6}", wr=[Tm+7], rd=[Tm+6])
            p.valu(f"v_sub_u32 v{Tm+7}, v{Tm+5}, v{Tm+7}", wr=[Tm+7], rd=[Tm+5, Tm+7])
            p.valu(f"v_mul_u32_u24 v{Tm+6}, 1280, v{Tm+6}", wr=[Tm+6], rd=[Tm+6])
            p.valu(f"v_lshl_add_u32 v{Tm+i}, v{Tm+7}, 4, v{Tm+6}", wr=[Tm+i], rd=[Tm+7, Tm+6])
        p.salu("s_lshr_b32 s35, s2, 1"); p.salu(f"s_mul_i32 s35, s35, {32*1280}")
        p.salu("s_and_b32 s33, s2, 1"); p.salu("s_mul_i32 s33, s33, 640"); p.salu("s_add_u32 s35, s35, s33")
        p.salu("s_mul_i32 s33, s3, 160"); p.salu("s_add_u32 s35, s35, s33")
        p.salu("s_mul_i32 s51, s3, 5120"); p.salu(f"s_add_u32 s51, s51, {OHAND}")
        for k in range(5):
            p.salu(f"s_add_u32 m0, s51, {k*1024}", swr=["m0"])
            p.dma(Tm + k, "s[16:19]", "s35", tag="wot", flags=" nt")
    def wot_store():
        Tm = XR
        p.wait_tag("wot")
        L = Tm + 8
        p.valu(f"v_lshrrev_b32 v{Tm}, 5, v{L}", wr=[Tm], rd=[L])
        p.valu(f"v_bfe_u32 v{Tm+1}, v{L}, 4, 1", wr=[Tm+1], rd=[L])
        p.valu(f"v_bfe_u32 v{Tm+2}, v{L}, 2, 2", wr=[Tm+2], rd=[L])
        p.valu(f"v_lshl_add_u32 v{Tm+2}, v{Tm+1}, 2, v{Tm+2}", wr=[Tm+2], rd=[Tm+1, Tm+2])
        p.valu(f"v_lshl_add_u32 v{Tm+2}, v{Tm}, 4, v{Tm+2}", wr=[Tm+2], rd=[Tm, Tm+2])
        p.valu(f"v_mul_u32_u24 v{Tm+2}, 160, v{Tm+2}", wr=[Tm+2], rd=[Tm+2])
        p.valu(f"v_and_b32 v{Tm+1}, 3, v{L}", wr=[Tm+1], rd=[L])
        p.valu(f"v_lshl_add_u32 v{Tm+2}, v{Tm+1}, 3, v{Tm+2}", wr=[Tm+2], rd=[Tm+1, Tm+2])
        p.valu(f"v_add_u32 v{Tm+2}, s51, v{Tm+2}", wr=[Tm+2], rd=[Tm+2])
        for nb in range(5):
            d = Tm + 16 + nb*4
            p.ds_read("ds_read_b64_tr_b16", d, 2, Tm + 2, off=nb*32)
            p.ds_read("ds_read_b64_tr_b16", d + 2, 2, Tm + 2, off=nb*32 + 1280)
        p.valu(f"v_lshlrev_b32 v{Tm+3}, 4, v{L}", wr=[Tm+3], rd=[L])
        p.salu("s_and_b32 s33, s2, 1"); p.salu("s_mul_i32 s33, s33, 20"); p.salu("s_mul_i32 s35, s3, 5"); p.salu("s_add_u32 s33, s33, s35")
        p.salu("s_lshl_b32 s33, s33, 7"); p.salu("s_lshr_b32 s35, s2, 1"); p.salu("s_add_u32 s33, s33, s35"); p.salu("s_lshl_b32 s33, s33, 10")
        p.salu(f"s_add_u32 s35, s33, {hex(WOT)}")
        for nb in range(5):
            p.salu(f"s_add_u32 s33, s35, {nb*131072}")
            p.bstore(Tm + 16 + nb*4, 4, Tm + 3, "s[24:27]", "s33", tag="wotst", flags=STF)
    for t in range(19):
        p.comment(f"P step t={t}")
        p.barrier()
        if t in (16, 17): st({16: 6, 17: 7}[t])
        groups = []
        if t == 13: wot_issue()
        if t == 14: wot_store()
        if t == 16: signal_w()
        if t == 18: signal_and_setup()
        if t >= 1: groups.append(kv_ops())
        j = t - 2
        if t == 1:
            p.salu(f"s_add_u32 s28, s28, {16*256}")
            groups += [w_ops(jj, jj * 16384) for jj in range(3)]
        if 0 <= j < 10:
            if j + 3 < 10: groups.append(w_ops(j + 3, ((j + 3) % 4) * 16384))
            qstep(j, (j % 4) * 16384, groups, False)
        else:
            for g in groups: run(g)
        if t == 12: qconvert()
        p.wait_tag(f"kv{t+1}")
        if 0 <= t - 1 < 10: p.wait_tag(f"w{t-1}")
    st(4)
    st(4)
    p.salu("s_mov_b32 s47, 19")
    p.label(f"{name}_Ploop")
    p.barrier()
    p.reset_tracking()
    run(kv_ops("kvn"))
    p.raw("    s_waitcnt vmcnt(8)")
    p.salu("s_add_u32 s47, s47, 1")
    p.salu("s_cmp_lt_u32 s47, 32")
    p.branch(f"s_cbranch_scc1 {name}_Ploop")
    st(5)
    p.raw("    s_waitcnt vmcnt(0)")
    p.barrier()
    p.salu("s_add_u32 s3, s3, 4")
    p.branch(f"s_branch {name}_Tail")

    p.label(f"{name}_A")
    p.out.append(Ins("s_nop 4", "nop", states=25))
    p.reset_tracking()
    O = 64; S0 = 128; S1 = 144; P0 = 160; P1 = 168; KF = 176; VF = 208; Q = 32; C = 16
    aK = 240; aV = 248; LS = 2; T = 4; aH = 14; voO = 15; aOH = 1
    if opts.get("touch"):
        TF = " nt" if opts.get("touch") == 1 else ""
        D = 200
        srd(p, 16, 42, 640 * 4096 * 2)
        srd(p, 20, 36, 16 * 128 * 640 * 2)
        p.salu("s_lshr_b32 s33, s2, 6")
        p.salu("s_mul_i32 s33, s33, 160")
        p.salu("s_lshl_b32 s33, s33, 13")
        p.salu("s_lshl_b32 s34, s6, 8"); p.salu("s_add_u32 s33, s33, s34")
        p.salu("s_lshl_b32 s34, s3, 18")
        p.salu("s_add_u32 s34, s34, s33")
        p.valu(f"v_lshrrev_b32 v{T}, 1, v0", wr=[T], rd=[0])
        p.valu(f"v_lshlrev_b32 v{T}, 13, v{T}", wr=[T], rd=[T])
        p.valu(f"v_and_b32 v{T+1}, 1, v0", wr=[T+1], rd=[0])
        p.valu(f"v_lshl_add_u32 v{T}, v{T+1}, 7, v{T}", wr=[T], rd=[T+1, T])
        p.bload(D, 1, T, "s[16:19]", "s34", flags=TF)
        p.salu(f"s_add_u32 s34, s33, {4 << 18}")
        p.bload(D + 1, 1, T, "s[16:19]", "s34", flags=TF)
        p.salu("s_lshr_b32 s33, s2, 3"); p.salu("s_and_b32 s33, s33, 7"); p.salu("s_mul_i32 s33, s33, 160")
        p.salu("s_lshl_b32 s34, s3, 6"); p.salu("s_add_u32 s33, s33, s34"); p.salu("s_lshl_b32 s33, s33, 7")
        p.salu("s_mul_i32 s34, s7, 163840"); p.salu("s_add_u32 s33, s33, s34")
        p.valu(f"v_lshlrev_b32 v{T+1}, 7, v0", wr=[T+1], rd=[0])
        p.bload(D + 2, 1, T + 1, "s[20:23]", "s33", flags=TF)
        nk = opts.get("kvtouch", 0)
        if nk:
            srd(p, 8, 38, 0x8000000); srd(p, 12, 40, 0x8000000)
            p.salu("s_lshl_b32 s33, s7, 5"); p.salu("s_add_u32 s33, s33, s6"); p.salu("s_lshl_b32 s33, s33, 18")
            p.salu("s_and_b32 s34, s3, 1"); p.salu("s_lshl_b32 s34, s34, 13"); p.salu("s_add_u32 s33, s33, s34")
            p.salu("s_cmp_ge_u32 s3, 2")
            p.salu("s_cselect_b32 s8, s12, s8"); p.salu("s_cselect_b32 s9, s13, s9")
            for t in range(nk):
                p.salu(f"s_add_u32 s34, s33, {t*16384}")
                p.bload(D + 3 + t, 1, T + 1, "s[8:11]", "s34", flags=" nt")
        p.reset_tracking()
    srd(p, 24, 44, 128 * 128 * 1024)
    p.valu(f"v_and_b32 v{T+1}, 15, v0", wr=[T+1], rd=[0])
    p.valu(f"v_and_b32 v{T}, 31, v0", wr=[T], rd=[0])
    p.valu(f"v_lshrrev_b32 v{T+2}, 5, v0", wr=[T+2], rd=[0])
    p.valu(f"v_xor_b32 v{T+3}, v{T+2}, v{T+1}", wr=[T+3], rd=[T+2, T+1])
    p.valu(f"v_lshlrev_b32 v{T+3}, 4, v{T+3}", wr=[T+3], rd=[T+3])
    p.valu(f"v_lshl_add_u32 v{T+3}, v{T}, 8, v{T+3}", wr=[T+3], rd=[T, T+3])
    p.valu(f"v_add_u32 v{T+3}, {KVRING}, v{T+3}", wr=[T+3], rd=[T+3])
    for j in range(8):
        p.valu(f"v_xor_b32 v{aK+j}, {j*32}, v{T+3}", wr=[aK+j], rd=[T+3])
    p.valu(f"v_bfe_u32 v{T+4}, v0, 2, 2", wr=[T+4], rd=[0])
    p.valu(f"v_lshl_add_u32 v{T+5}, v{T+2}, 2, v{T+4}", wr=[T+5], rd=[T+2, T+4])
    p.valu(f"v_lshlrev_b32 v{T+5}, 8, v{T+5}", wr=[T+5], rd=[T+5])
    p.valu(f"v_bfe_u32 v{T+6}, v0, 4, 1", wr=[T+6], rd=[0])
    p.valu(f"v_lshl_add_u32 v{T+5}, v{T+6}, 5, v{T+5}", wr=[T+5], rd=[T+6, T+5])
    p.valu(f"v_and_b32 v{T+6}, 3, v0", wr=[T+6], rd=[0])
    p.valu(f"v_lshl_add_u32 v{T+5}, v{T+6}, 3, v{T+5}", wr=[T+5], rd=[T+6, T+5])
    p.valu(f"v_add_u32 v{T+5}, {KVRING + 16384}, v{T+5}", wr=[T+5], rd=[T+5])
    for b in range(4):
        p.valu(f"v_xor_b32 v{T+6}, {b}, v{T+4}", wr=[T+6], rd=[T+4])
        p.valu(f"v_lshl_add_u32 v{aV+b}, v{T+6}, 6, v{T+5}", wr=[aV+b], rd=[T+6, T+5])
    p.valu(f"v_bfe_u32 v{T+6}, v0, 4, 1", wr=[T+6], rd=[0])
    p.valu(f"v_lshlrev_b32 v{T+6}, 17, v{T+6}", wr=[T+6], rd=[T+6])
    p.valu(f"v_lshl_add_u32 v{T+6}, v{T+1}, 4, v{T+6}", wr=[T+6], rd=[T+1, T+6])
    p.valu(f"v_lshl_add_u32 v{voO}, v{T+2}, 8, v{T+6}", wr=[voO], rd=[T+2, T+6])
    p.salu("s_lshl_b32 s34, s7, 3"); p.salu("s_lshl_b32 s33, s3, 1"); p.salu("s_add_u32 s34, s34, s33")
    p.salu("s_lshl_b32 s34, s34, 7"); p.salu("s_lshl_b32 s33, s6, 2"); p.salu("s_add_u32 s34, s34, s33")
    p.salu("s_add_u32 s34, s34, 64"); p.salu("s_lshl_b32 s34, s34, 10")
    p.salu("s_lshl_b32 s33, s3, 13")
    p.valu(f"v_lshlrev_b32 v{aH}, 4, v0", wr=[aH], rd=[0])
    p.valu(f"v_add_u32 v{aH}, s33, v{aH}", wr=[aH], rd=[aH])
    p.valu(f"v_add_u32 v{aOH}, {OHAND}, v{aH}", wr=[aOH], rd=[aH])
    p.salu("s_mov_b32 s49, -65536"); p.salu("s_mov_b32 s50, 32768")
    p.salu("s_mov_b32 s35, 0")
    p.salu("s_mov_b32 s46, 0")
    for i in range(10): p.barrier()
    st(1); st.cyc(5)
    B = [KF, VF]
    def sm_half(S, P, half):
        ops = []
        b0 = 8 * half
        def addcvt(k):
            ops.append(lambda k=k: p.valu(f"v_add_f32 v{LS}, v{LS}, v{S+k}", wr=[LS], rd=[LS, S+k]))
            ops.append(lambda k=k: p.valu(f"v_add_f32 v{LS+1}, v{LS+1}, v{S+k+1}", wr=[LS+1], rd=[LS+1, S+k+1]))
            ops.append(lambda k=k: p.valu(f"v_cvt_pk_bf16_f32 v{P+k//2}, v{S+k}, v{S+k+1}", wr=[P+k//2], rd=[S+k, S+k+1]))
        for i in range(b0, b0 + 8, 2):
            ops.append(lambda i=i: p.trans(f"v_exp_f32 v{S+i}, v{S+i}", wr=[S+i], rd=[S+i]))
            ops.append(lambda i=i: p.trans(f"v_exp_f32 v{S+i+1}, v{S+i+1}", wr=[S+i+1], rd=[S+i+1]))
            if i >= b0 + 2: addcvt(i - 2)
        addcvt(b0 + 6)
        return ops
    def vread(bank, t, n):
        ks2, blk = n >> 2, n & 3
        d = bank + 4 * n
        ks = 2 * t + ks2
        p.ds_read("ds_read_b64_tr_b16", d, 2, aV + blk, off=ks * 4096)
        p.ds_read("ds_read_b64_tr_b16", d + 2, 2, aV + blk, off=ks * 4096 + 2048)
    def spread(ops, slots, i):
        for _ in range(slots[i]):
            if ops: ops.pop(0)()
    def step(first, par):
        KB = B[par]; VB = B[1 - par]
        p.barrier()
        p.reset_tracking()
        if first:
            for j in range(8):
                p.ds_read("ds_read_b128", Q + 4*j, 4, aH, off=QHAND + j * 1024)
        for j in range(8):
            p.ds_read("ds_read_b128", KB + 4*j, 4, aK + j)
        if first:
            p.valu(f"v_mov_b32 v{LS}, 0", wr=[LS]); p.valu(f"v_mov_b32 v{LS+1}, 0", wr=[LS+1])
            sm = []
        else:
            sm = sm_half(S1, P1, 1)
            for _ in range(12): sm.pop(0)()
        for j in range(8):
            if j == 0: p.wait(lgkm=4)
            if j == 4: p.wait(lgkm=4)
            if j == 0:
                if first: p.mfma32(S0, KB, Q, czero=True)
                else: p.mfma32(S0, KB, Q, C=C)
            else:
                p.mfma32(S0, KB + 4*j, Q + 4*j)
            p.ds_read("ds_read_b128", KB + 4*j, 4, aK + j, off=8192)
            spread(sm, [2, 2, 2, 2, 0, 0, 0, 0], j)
        while sm: sm.pop(0)()
        if first:
            p.valu(f"v_max3_f32 v{T}, v{S0}, v{S0+1}, v{S0+2}", wr=[T], rd=[S0, S0+1, S0+2])
            for i in range(3, 15, 2):
                p.valu(f"v_max3_f32 v{T}, v{T}, v{S0+i}, v{S0+i+1}", wr=[T], rd=[T, S0+i, S0+i+1])
            p.valu(f"v_max_f32 v{T}, v{T}, v{S0+15}", wr=[T], rd=[T, S0+15])
            p.valu(f"v_mov_b32 v{T+1}, v{T}", wr=[T+1], rd=[T])
            p.perm(f"v_permlane32_swap_b32 v{T}, v{T+1}", [T, T+1])
            p.valu(f"v_max_f32 v{T}, v{T}, v{T+1}", wr=[T], rd=[T, T+1])
            for i in range(16):
                p.valu(f"v_sub_f32 v{C+i}, 0, v{T}", wr=[C+i], rd=[T])
            for i in range(16):
                p.valu(f"v_sub_f32 v{S0+i}, v{S0+i}, v{T}", wr=[S0+i], rd=[S0+i, T])
        sm = sm_half(S0, P0, 0)
        for n in range(8):
            if n in (2, 5): p.wait(lgkm=(4 if n == 2 else 6))
            if not first:
                p.mfma32(O + 16*(n & 3), VB + 4*n, P1 + 4*(n >> 2))
            vread(VB, 0, n)
            spread(sm, [0, 0, 4, 4, 3, 3, 3, 3], n)
        while sm: sm.pop(0)()
        sm = sm_half(S0, P0, 1)
        for j in range(8):
            if j in (0, 3, 6): p.wait(lgkm=6)
            if j == 0: p.mfma32(S1, KB, Q, C=C)
            else: p.mfma32(S1, KB + 4*j, Q + 4*j)
            vread(KB, 1, j)
            spread(sm, [3, 3, 3, 3, 2, 2, 2, 2], j)
        while sm: sm.pop(0)()
        p.salu("s_add_u32 s35, s35, 1")
        p.salu("s_cmp_eq_u32 s35, 3")
        p.salu("s_cselect_b32 s33, s49, s50")
        p.salu("s_cselect_b32 s35, 0, s35")
        sm = sm_half(S1, P1, 0)
        adv = [(lambda r=r: p.valu(f"v_add_u32 v{r}, s33, v{r}", wr=[r], rd=[r])) for r in list(range(aK, aK+8)) + list(range(aV, aV+4))]
        for n in range(8):
            if first and n < 4: p.mfma32(O + 16*(n & 3), VB + 4*n, P0 + 4*(n >> 2), czero=True)
            else: p.mfma32(O + 16*(n & 3), VB + 4*n, P0 + 4*(n >> 2))
            if n < 2:
                spread(adv, [6, 6], n)
            spread(sm, [0, 0, 4, 4, 3, 3, 3, 3], n)
        while sm: sm.pop(0)()
        p.wait(lgkm=0)
    p.label(f"{name}_Apair")
    step(True, 0)
    p.salu("s_mov_b32 s47, 8")
    p.label(f"{name}_Aloop")
    step(False, 1)
    p.salu("s_cmp_lt_u32 s47, 8")
    p.branch(f"s_cbranch_scc1 {name}_Anw")
    p.raw("    s_waitcnt vmcnt(0)")
    p.label(f"{name}_Anw")
    p.salu("s_sub_u32 s47, s47, 1")
    p.salu("s_cmp_eq_u32 s47, 0")
    p.branch(f"s_cbranch_scc1 {name}_Aepi")
    step(False, 0)
    p.branch(f"s_branch {name}_Aloop")
    p.label(f"{name}_Aepi")
    p.out.append(Ins("s_nop 0", "nop", states=1))
    sm = sm_half(S1, P1, 1)
    while sm: sm.pop(0)()
    for n in range(8):
        p.mfma32(O + 16*(n & 3), B[1] + 4*n, P1 + 4*(n >> 2))
    p.nop(12)
    p.valu(f"v_add_f32 v{LS}, v{LS}, v{LS+1}", wr=[LS], rd=[LS, LS+1])
    p.valu(f"v_mov_b32 v{T}, v{LS}", wr=[T], rd=[LS])
    p.perm(f"v_permlane32_swap_b32 v{LS}, v{T}", [LS, T])
    p.valu(f"v_add_f32 v{LS}, v{LS}, v{T}", wr=[LS], rd=[LS, T])
    p.trans(f"v_rcp_f32 v{T}, v{LS}", wr=[T], rd=[LS])
    for blk in range(4):
        for u in range(2):
            for i in range(8):
                r = O + 16*blk + 8*u + i
                p.valu(f"v_mul_f32 v{r}, v{r}, v{T}", wr=[r], rd=[r, T])
            d = S0 + (blk * 2 + u) * 4
            for i in range(4):
                r = O + 16*blk + 8*u + 2*i
                p.valu(f"v_cvt_pk_bf16_f32 v{d+i}, v{r}, v{r+1}", wr=[d+i], rd=[r, r+1])
    p.salu("s_cmp_eq_u32 s46, 1")
    p.branch(f"s_cbranch_scc1 {name}_Afin")
    p.salu(f"s_sub_u32 s33, s34, {64*1024}")
    for u in range(8):
        p.bstore(S0 + 4*u, 4, voO, "s[24:27]", "s33", off=(u >> 1) * 1024 + (u & 1) * 512, tag="ost", flags=STF)
    p.salu("s_mov_b32 s46, 1")
    p.nop(2)
    st(2); st.cyc(6)
    p.branch(f"s_branch {name}_Apair")
    p.label(f"{name}_Afin")
    st(3); st.cyc(7)
    for u in range(8):
        p.bstore(S0 + 4*u, 4, voO, "s[24:27]", "s34", off=(u >> 1) * 1024 + (u & 1) * 512, tag="ost", flags=STF)
    p.raw("    s_waitcnt vmcnt(0)")
    p.barrier()
    st(4)
    srd(p, 16, 58, 256)
    p.salu("s_cmp_lg_u32 s3, 0")
    p.branch(f"s_cbranch_scc1 {name}_nosigB")
    p.valu("v_mov_b32 v228, 0", wr=[228]); p.valu("v_mov_b32 v231, 1", wr=[231])
    p.salu("s_mov_b64 exec, 1")
    p.salu("s_lshl_b32 s33, s7, 2"); p.salu("s_add_u32 s33, s33, 128")
    p.raw("    buffer_atomic_add v231, v228, s[16:19], s33 offen sc1")
    p.salu("s_mov_b64 exec, -1")
    p.label(f"{name}_nosigB")
    for r in range(80): p.valu(f"v_mov_b32 v{64+r}, 0", wr=[64+r])
    p.label(f"{name}_Tail")
    p.out.append(Ins("s_nop 0", "nop", states=25))
    p.reset_tracking()
    ACC = 64; STG = 144; voB = 2; vZ = 6; vP = 8
    srd(p, 24, 44, 0x2000000)
    srd(p, 20, 56, 2048 * 640 * 2)
    out_map()
    p.valu(f"v_mbcnt_lo_u32_b32 v{voB}, -1, 0", wr=[voB])
    p.valu(f"v_mbcnt_hi_u32_b32 v{voB}, -1, v{voB}", wr=[voB], rd=[voB])
    p.valu(f"v_mov_b32 v0, v{voB}", wr=[0], rd=[voB])
    p.valu(f"v_lshlrev_b32 v{voB}, 4, v{voB}", wr=[voB], rd=[voB])
    p.valu(f"v_add_u32 v{voB+1}, 4096, v{voB}", wr=[voB+1], rd=[voB])
    p.valu(f"v_mov_b32 v{vZ}, 0", wr=[vZ])
    p.salu("s_mov_b32 s61, 1")
    p.label(f"{name}_Tround")
    p.reset_tracking()
    p.salu("s_sub_u32 s35, s61, 1"); p.salu("s_lshl_b32 s35, s35, 6"); p.salu("s_lshl_b32 s62, s3, 3"); p.salu("s_add_u32 s62, s62, s35")
    frag_bases("s62")
    p.salu("s_lshr_b32 s51, s4, 1"); p.salu("s_lshl_b32 s51, s51, 2"); p.salu("s_lshl_b32 s33, s61, 6"); p.salu("s_add_u32 s51, s51, s33")
    p.salu("s_cmp_lg_u32 s3, 0")
    p.branch(f"s_cbranch_scc1 {name}_Tgo")
    p.valu(f"v_cmp_eq_u32 vcc, 0, v0", rd=[0], swr=["vcc"])
    p.valu(f"v_mov_b32 v{vZ+1}, s51", wr=[vZ+1])
    p.nop(2)
    p.valu(f"v_cndmask_b32 v{vZ+1}, v{vZ+1}, v{vZ}, vcc", wr=[vZ+1], rd=[vZ+1, vZ])
    p.label(f"{name}_Tpoll")
    p.salu("s_mov_b64 exec, 3")
    p.raw(f"    buffer_load_dword v{vP}, v{vZ+1}, s[16:19], 0 offen sc1")
    p.salu("s_mov_b64 exec, -1")
    p.raw("    s_waitcnt vmcnt(0)")
    p.raw(f"    v_readlane_b32 s33, v{vP}, 0\n    v_readlane_b32 s35, v{vP}, 1\n    s_nop 3")
    p.salu("s_cmp_eq_u32 s33, 256"); p.salu("s_cselect_b32 s60, 1, 0")
    p.salu("s_cmp_eq_u32 s35, 16"); p.salu("s_cselect_b32 s60, s60, 0")
    p.salu("s_cmp_lg_u32 s60, 0")
    p.branch(f"s_cbranch_scc1 {name}_Tgo")
    p.raw(f"    s_sleep {opts.get('tsleep', 16)}")
    p.branch(f"s_branch {name}_Tpoll")
    p.label(f"{name}_Tgo")
    p.barrier()
    st(8)
    p.reset_tracking()
    def issue(i):
        base = STG + (i % 3) * 36
        for nb in range(5):
            p.bload(base + 4*nb, 4, voB + (i >> 2), "s[24:27]", f"s{sAr[nb]}", off=(i & 3) * 1024, tag=f"a{i}", flags=" sc1")
        for q in range(4):
            p.bload(base + 20 + 4*q, 4, voB + (i >> 2), "s[24:27]", f"s{36+q}", off=(i & 3) * 1024, tag=f"b{i}", flags=" sc1")
    issue(0); issue(1)
    for i in range(8):
        base = STG + (i % 3) * 36
        if i + 2 < 8: issue(i + 2)
        for nb in range(5):
            for q in range(4):
                p.mfma16(ACC + (nb*4 + q)*4, base + 4*nb, base + 20 + 4*q)
    if st.on:
        p.raw("    s_cmp_eq_u32 s61, 1\n    s_cbranch_scc0 %s_nst" % name)
        st(11)
        p.label(f"{name}_nst")
    p.salu("s_add_u32 s61, s61, 1")
    p.salu("s_cmp_le_u32 s61, 2")
    p.nop(8)
    p.branch(f"s_cbranch_scc1 {name}_Tround")
    st(9)
    T = 8
    p.salu("s_mul_i32 s33, s3, 20480")
    p.valu(f"v_add_u32 v{T}, s33, v{voB}", wr=[T], rd=[voB])
    for t in range(20):
        p.ds_write("ds_write_b128", T, ACC + 4*t, 4, off=t*1024)
    p.wait(lgkm=0)
    p.barrier()
    p.valu(f"v_and_b32 v{T+1}, 15, v0", wr=[T+1], rd=[0])
    p.valu(f"v_mul_u32_u24 v{T+1}, 1280, v{T+1}", wr=[T+1], rd=[T+1])
    p.valu(f"v_lshrrev_b32 v{T+2}, 4, v0", wr=[T+2], rd=[0])
    p.valu(f"v_lshl_add_u32 v{T+1}, v{T+2}, 3, v{T+1}", wr=[T+1], rd=[T+2, T+1])
    p.salu(f"s_mul_i32 s34, s4, {64*1280}")
    p.salu("s_mul_i32 s33, s5, 160"); p.salu("s_add_u32 s34, s34, s33")
    p.salu("s_lshl_b32 s35, s3, 10")
    p.valu(f"v_add_u32 v{T+3}, s35, v{voB}", wr=[T+3], rd=[voB])
    for rnd in range(3):
        if rnd == 2:
            p.salu("s_cmp_ge_u32 s3, 4")
            p.branch(f"s_cbranch_scc1 {name}_fin")
        p.salu(f"s_add_u32 s40, s3, {8*rnd}")
        p.salu("s_lshr_b32 s41, s40, 2"); p.salu("s_and_b32 s42, s40, 3")
        p.salu("s_lshl_b32 s41, s41, 5")
        p.salu(f"s_mul_i32 s42, s42, {16*1280}")
        p.salu("s_add_u32 s41, s41, s42"); p.salu("s_add_u32 s41, s41, s34")
        for w in range(8):
            off = w * 20480 + rnd * 8192
            if off < 65536:
                p.ds_read("ds_read_b128", ACC + 4*w, 4, T + 3, off=off)
            else:
                p.valu(f"v_add_u32 v{T+4}, {off}, v{T+3}", wr=[T+4], rd=[T+3])
                p.ds_read("ds_read_b128", ACC + 4*w, 4, T + 4)
        for w in range(1, 8):
            for r in range(4):
                p.valu(f"v_add_f32 v{ACC+r}, v{ACC+r}, v{ACC+4*w+r}", wr=[ACC+r], rd=[ACC+r, ACC+4*w+r])
        p.valu(f"v_cvt_pk_bf16_f32 v{ACC+40}, v{ACC}, v{ACC+1}", wr=[ACC+40], rd=[ACC, ACC+1])
        p.valu(f"v_cvt_pk_bf16_f32 v{ACC+41}, v{ACC+2}, v{ACC+3}", wr=[ACC+41], rd=[ACC+2, ACC+3])
        p.bstore(ACC + 40, 2, T + 1, "s[20:23]", "s41")
        p.nop(2)
    p.label(f"{name}_fin")
    if st.on:
        p.raw("    s_waitcnt vmcnt(0)")
        st(10); st.dump("s3")
    p.label(f"{name}_done")
    p.raw("    s_endpgm")
    return p, name

def gen_k2(opts):
    p = Prog()
    name = opts.get("name", "k2_kernel")
    K2F = ["", " nt", " sc1", " sc0 sc1", " sc0"][opts.get("k2nt", 0)]
    st = Stamps(p, opts, key="wgt2")
    p.raw(f".globl {name}\n.p2align 8\n.type {name},@function\n{name}:")
    p.salu("s_cmp_ge_u32 s2, 256")
    p.branch(f"s_cbranch_scc1 {name}_done")
    p.salu("s_load_dwordx2 s[38:39], s[0:1], 40")
    p.salu("s_load_dwordx2 s[44:45], s[0:1], 56")
    p.valu("v_lshrrev_b32 v1, 6, v0", wr=[1], rd=[0])
    p.valu("v_and_b32 v0, 63, v0", wr=[0], rd=[0])
    p.rfl("s3", 1)
    p.salu("s_and_b32 s4, s2, 7")
    p.salu("s_lshr_b32 s5, s2, 3")
    p.salu("s_lshr_b32 s6, s4, 1"); p.salu("s_lshl_b32 s6, s6, 3"); p.salu("s_lshr_b32 s7, s5, 2"); p.salu("s_add_u32 s6, s6, s7")
    p.salu("s_and_b32 s7, s4, 1"); p.salu("s_lshl_b32 s7, s7, 2"); p.salu("s_and_b32 s5, s5, 3"); p.salu("s_add_u32 s7, s7, s5")
    ACC = 64; ST = 144; voB = 2; T = 4
    p.valu(f"v_lshlrev_b32 v{voB}, 4, v0", wr=[voB], rd=[0])
    p.salu("s_lshl_b32 s29, s6, 9"); p.salu("s_lshl_b32 s33, s3, 4"); p.salu("s_add_u32 s29, s29, s33"); p.salu("s_lshl_b32 s29, s29, 10")
    for q in range(4): p.salu(f"s_add_u32 s{48+q}, s29, {q*131072}")
    p.salu("s_mul_i32 s29, s7, 640"); p.salu("s_add_u32 s29, s29, s33"); p.salu("s_lshl_b32 s29, s29, 10")
    for nb in range(5): p.salu(f"s_add_u32 s{52+nb}, s29, {WOT + nb*131072}")
    p.raw("    s_waitcnt lgkmcnt(0)")
    if st.on:
        for k in range(16): p.raw(f"    s_mov_b32 s{70+k}, 0")
    st(0)
    srd(p, 24, 44, 0x2000000)
    srd(p, 12, 38, 2048 * 640 * 2)
    def issue(i):
        base = ST + (i % 3) * 36
        for nb in range(5):
            p.bload(base + 4*nb, 4, voB + (i >> 2), "s[24:27]", f"s{52+nb}", off=(i & 3) * 1024, tag=f"a{i}", flags=K2F)
        for q in range(4):
            p.bload(base + 20 + 4*q, 4, voB + (i >> 2), "s[24:27]", f"s{48+q}", off=(i & 3) * 1024, tag=f"b{i}", flags=K2F)
    for j in range(1, 4): p.valu(f"v_add_u32 v{voB+j}, {4096*j}, v{voB}", wr=[voB+j], rd=[voB])
    issue(0); issue(1)
    for i in range(16):
        p.comment(f"kstep {i}")
        base = ST + (i % 3) * 36
        if i + 2 < 16: issue(i + 2)
        if i == 1: st(1)
        if i == 8: st(2)
        for nb in range(5):
            for q in range(4):
                if i == 0: p.mfma16(ACC + (nb*4 + q)*4, base + 4*nb, base + 20 + 4*q, czero=True)
                else: p.mfma16(ACC + (nb*4 + q)*4, base + 4*nb, base + 20 + 4*q)
    st(3)
    T = 8
    p.salu("s_mul_i32 s33, s3, 20480")
    p.valu(f"v_add_u32 v{T}, s33, v{voB}", wr=[T], rd=[voB])
    for t in range(20):
        p.ds_write("ds_write_b128", T, ACC + 4*t, 4, off=t*1024)
    p.wait(lgkm=0)
    p.barrier()
    p.valu(f"v_and_b32 v{T+1}, 15, v0", wr=[T+1], rd=[0])
    p.valu(f"v_mul_u32_u24 v{T+1}, 1280, v{T+1}", wr=[T+1], rd=[T+1])
    p.valu(f"v_lshrrev_b32 v{T+2}, 4, v0", wr=[T+2], rd=[0])
    p.valu(f"v_lshl_add_u32 v{T+1}, v{T+2}, 3, v{T+1}", wr=[T+1], rd=[T+2, T+1])
    p.salu(f"s_mul_i32 s34, s6, {64*1280}")
    p.salu("s_mul_i32 s33, s7, 160"); p.salu("s_add_u32 s34, s34, s33")
    p.salu("s_lshl_b32 s35, s3, 10")
    p.valu(f"v_add_u32 v{T+3}, s35, v{voB}", wr=[T+3], rd=[voB])
    st(4)
    for rnd in range(3):
        if rnd == 2:
            p.salu("s_cmp_ge_u32 s3, 4")
            p.branch(f"s_cbranch_scc1 {name}_done")
        p.salu(f"s_add_u32 s40, s3, {8*rnd}")
        p.salu("s_lshr_b32 s41, s40, 2"); p.salu("s_and_b32 s42, s40, 3")
        p.salu("s_lshl_b32 s41, s41, 5")
        p.salu(f"s_mul_i32 s42, s42, {16*1280}")
        p.salu("s_add_u32 s41, s41, s42"); p.salu("s_add_u32 s41, s41, s34")
        for w in range(8):
            off = w * 20480 + rnd * 8192
            if off < 65536:
                p.ds_read("ds_read_b128", ACC + 4*w, 4, T + 3, off=off)
            else:
                p.valu(f"v_add_u32 v{T+4}, {off}, v{T+3}", wr=[T+4], rd=[T+3])
                p.ds_read("ds_read_b128", ACC + 4*w, 4, T + 4)
        for w in range(1, 8):
            for r in range(4):
                p.valu(f"v_add_f32 v{ACC+r}, v{ACC+r}, v{ACC+4*w+r}", wr=[ACC+r], rd=[ACC+r, ACC+4*w+r])
        p.valu(f"v_cvt_pk_bf16_f32 v{ACC+40}, v{ACC}, v{ACC+1}", wr=[ACC+40], rd=[ACC, ACC+1])
        p.valu(f"v_cvt_pk_bf16_f32 v{ACC+41}, v{ACC+2}, v{ACC+3}", wr=[ACC+41], rd=[ACC+2, ACC+3])
        p.bstore(ACC + 40, 2, T + 1, "s[12:15]", "s41", flags=["", " nt", " sc1", " sc0 sc1"][opts.get("outf", 0)])
        p.nop(2)
    if st.on:
        p.raw("    s_waitcnt vmcnt(0)")
        st(5); st.dump("s3")
    p.label(f"{name}_done")
    p.raw("    s_endpgm")
    return p, name

def build(path, opts={}):
    KN = "standalone__mha_block_cached__near_ridge_kernel"
    k1, n1 = gen_k1(dict(opts, name=KN))
    hdr = open("standalone__mha_block_cached__near_ridge.s.ref").read().split("; Override")[0]
    o = [hdr.rstrip()]
    o.append("; @launch grid=(256,1,1) block=(512,1,1) lds=163840")
    o.append('.amdgcn_target "amdgcn-amd-amdhsa--gfx950"\n.text')
    o.append(k1.text())
    o.append('.section .rodata,"a"\n.p2align 6')
    o.append(KD.format(name=n1, vgpr=256, sgpr=96, acc=256))
    open(path, "w").write("\n".join(o) + "\n")
    print("nops", k1.nops, "lines", len(k1.out))

if __name__ == "__main__":
    opts = {}
    for a in sys.argv[2:]:
        k, v = a.split("="); opts[k] = int(v)
    build(sys.argv[1], opts)
```

```python
import sys, struct
from fw import *

LOG2E = 1.4426950408889634
QSCALE = LOG2E / (128 ** 0.5)
def f2u(f): return struct.unpack("<I", struct.pack("<f", f))[0]

KVRING = 65536
QHAND = 0
OHAND = 32768
WOT = 0x1800000

def srd(p, dst, ptr, size):
    p.salu(f"s_mov_b32 s{dst}, s{ptr}")
    p.salu(f"s_and_b32 s{dst+1}, s{ptr+1}, 0xffff")
    p.salu(f"s_mov_b32 s{dst+2}, {hex(size)}")
    p.salu(f"s_mov_b32 s{dst+3}, 0x20000")

class Stamps:
    def __init__(s, p, opts, base=0x2000000, key="wgt"): s.p = p; s.on = opts.get(key, 0); s.base = base
    def __call__(s, k):
        if not s.on: return
        s.p.raw(f"    s_memrealtime s[68:69]\n    s_waitcnt lgkmcnt(0)\n    s_mov_b32 s{70+k}, s68")
        s.p.lg = []
    def cyc(s, k):
        if not s.on: return
        s.p.raw(f"    s_memtime s[68:69]\n    s_waitcnt lgkmcnt(0)\n    s_mov_b32 s{70+k}, s68")
        s.p.lg = []
    def dump(s, wavereg):
        if not s.on: return
        t = """    s_waitcnt vmcnt(0)
    s_mov_b32 s60, s44
    s_and_b32 s61, s45, 0xffff
    s_mov_b32 s62, 0x4000000
    s_mov_b32 s63, 0x20000
    s_lshl_b32 s64, s2, 3
    s_add_u32 s64, s64, %s
    s_lshl_b32 s64, s64, 6
    s_add_u32 s64, s64, %s
    v_mov_b32 v20, 0
""" % (wavereg, hex(s.base))
        for q in range(4):
            for i in range(4): t += f"    v_mov_b32 v{16+i}, s{70+4*q+i}\n"
            t += f"    s_nop 1\n    buffer_store_dwordx4 v[16:19], v20, s[60:63], s64 offen offset:{16*q}\n    s_nop 2\n"
        s.p.raw(t + "    s_waitcnt vmcnt(0)")

def gen_k1(opts):
    p = Prog()
    st = Stamps(p, opts)
    NT = " nt"
    WN = [" nt" if opts.get("wnt0", 1) else "", " nt" if opts.get("wnt1", 0) else ""]
    XNT = " nt" if opts.get("xnt", 1) else ""
    cur = [0]
    STF = ["", " nt", " sc1", " sc0 sc1", " sc1 nt", " sc0 sc1 nt"][opts.get("stnt", 3)]
    name = opts.get("name", "k1_kernel")
    p.raw(f".globl {name}\n.p2align 8\n.type {name},@function\n{name}:")
    p.salu("s_cmp_ge_u32 s2, 256")
    p.branch(f"s_cbranch_scc1 {name}_done")
    p.salu("s_load_dwordx8 s[36:43], s[0:1], 0")
    p.salu("s_load_dwordx2 s[44:45], s[0:1], 56")
    p.salu("s_load_dwordx2 s[52:53], s[0:1], 32")
    p.salu("s_load_dwordx4 s[56:59], s[0:1], 40")
    p.valu("v_lshrrev_b32 v1, 6, v0", wr=[1], rd=[0])
    p.valu("v_and_b32 v0, 63, v0", wr=[0], rd=[0])
    p.rfl("s3", 1)
    p.salu("s_and_b32 s4, s2, 7")
    p.salu("s_lshr_b32 s5, s2, 3")
    mp = opts.get("map", 2)
    if mp == 0:
        p.salu("s_lshr_b32 s6, s4, 1"); p.salu("s_lshl_b32 s6, s6, 2"); p.salu("s_and_b32 s7, s5, 3"); p.salu("s_add_u32 s6, s6, s7")
        p.salu("s_and_b32 s7, s4, 1"); p.salu("s_lshl_b32 s7, s7, 3"); p.salu("s_lshr_b32 s5, s5, 2"); p.salu("s_add_u32 s7, s7, s5")
    elif mp == 1:
        p.salu("s_and_b32 s6, s5, 15"); p.salu("s_lshl_b32 s7, s4, 1"); p.salu("s_lshr_b32 s5, s5, 4"); p.salu("s_add_u32 s7, s7, s5")
    elif mp == 2:
        p.salu("s_and_b32 s6, s4, 1"); p.salu("s_lshl_b32 s6, s6, 3"); p.salu("s_and_b32 s7, s5, 7"); p.salu("s_add_u32 s6, s6, s7")
        p.salu("s_lshr_b32 s7, s4, 1"); p.salu("s_lshl_b32 s7, s7, 2"); p.salu("s_lshr_b32 s5, s5, 3"); p.salu("s_add_u32 s7, s7, s5")
    if st.on:
        for k in range(16): p.raw(f"    s_mov_b32 s{70+k}, 0")
    p.raw("    s_waitcnt lgkmcnt(0)")
    st(0)
    p.salu("s_cmp_lt_u32 s3, 4")
    p.branch(f"s_cbranch_scc1 {name}_A")

    QA = 0; XR = 64; WF = 224; voW = 240; aW = 241; voK = 245; voV = 249; voX = 250; aXlo = 252; aWhi = 192; aXhi = 196
    T = 4
    srd(p, 16, 42, 640 * 4096 * 2)
    srd(p, 20, 36, 16 * 128 * 640 * 2)
    p.salu("s_sub_u32 s3, s3, 4")
    p.valu(f"v_lshrrev_b32 v{T}, 4, v0", wr=[T], rd=[0])
    p.valu(f"v_and_b32 v{T+1}, 15, v0", wr=[T+1], rd=[0])
    p.valu(f"v_lshlrev_b32 v{T+2}, 2, v{T}", wr=[T+2], rd=[T])
    p.valu(f"v_xor_b32 v{T+2}, v{T+2}, v{T+1}", wr=[T+2], rd=[T+2, T+1])
    p.valu(f"v_lshlrev_b32 v{T+2}, 4, v{T+2}", wr=[T+2], rd=[T+2])
    p.valu(f"v_lshl_add_u32 v{voW}, v{T}, 13, v{T+2}", wr=[voW], rd=[T, T+2])
    p.valu(f"v_lshl_add_u32 v{voV}, v{T}, 8, v{T+2}", wr=[voV], rd=[T, T+2])
    p.valu(f"v_lshrrev_b32 v{T+2}, 3, v0", wr=[T+2], rd=[0])
    p.valu(f"v_mul_u32_u24 v{T+2}, 1280, v{T+2}", wr=[T+2], rd=[T+2])
    p.valu(f"v_and_b32 v{T+3}, 7, v0", wr=[T+3], rd=[0])
    for e in range(2):
        p.valu(f"v_add_u32 v{T+4}, {4*e}, v{T}", wr=[T+4], rd=[T])
        p.valu(f"v_xor_b32 v{T+4}, v{T+4}, v{T+3}", wr=[T+4], rd=[T+4, T+3])
        p.valu(f"v_lshl_add_u32 v{voX+e}, v{T+4}, 4, v{T+2}", wr=[voX+e], rd=[T+4, T+2])
    p.salu("s_lshl_b32 s28, s3, 17")
    p.salu("s_lshl_b32 s33, s6, 8")
    p.salu("s_add_u32 s28, s28, s33")
    p.salu("s_mul_i32 s29, s7, 163840")
    p.salu(f"s_mul_i32 s33, s3, {32*1280}")
    p.salu("s_add_u32 s29, s29, s33")
    p.salu("s_lshl_b32 s30, s3, 12")
    slots0 = [0, 32768, KVRING + 32768, KVRING + 65536]
    def w_ops(j, slotbase):
        ops = []
        if opts.get("nopld"): return ops
        def f(i):
            p.salu(f"s_add_u32 m0, s30, {slotbase + i*1024}", swr=["m0"])
            p.salu(f"s_add_u32 s33, s28, {(64*j + 4*i) * 8192}")
            p.dma(voW, "s[16:19]", "s33", tag=f"w{j}", flags=WN[cur[0]])
        for i in range(4): ops.append(lambda i=i: f(i))
        return ops
    def x_ops(j, slotbase):
        ops = []
        if opts.get("nopld"): return ops
        def f(i):
            p.salu(f"s_add_u32 m0, s30, {slotbase + 16384 + i*1024}", swr=["m0"])
            p.salu(f"s_add_u32 s33, s29, {j*128 + i*10240}")
            p.dma(voX + (i & 1), "s[20:23]", "s33", tag=f"x{j}", flags=XNT)
        for i in range(4): ops.append(lambda i=i: f(i))
        return ops
    npre = opts.get("npre", 3)
    for j in range(npre):
        for o in w_ops(j, slots0[j]) + x_ops(j, slots0[j]): o()
    srd(p, 8, 38, 0x8000000)
    srd(p, 12, 40, 0x8000000)
    srd(p, 24, 44, 0x2000000)
    for i in range(4):
        p.valu(f"v_add_u32 v{T+2}, {4*i}, v{T}", wr=[T+2], rd=[T])
        p.valu(f"v_xor_b32 v{T+2}, v{T+2}, v{T+1}", wr=[T+2], rd=[T+2, T+1])
        p.valu(f"v_lshlrev_b32 v{T+2}, 4, v{T+2}", wr=[T+2], rd=[T+2])
        p.valu(f"v_lshl_add_u32 v{voK+i}, v{T}, 8, v{T+2}", wr=[voK+i], rd=[T, T+2])
    p.salu("s_lshl_b32 s31, s7, 5")
    p.salu("s_add_u32 s31, s31, s6")
    p.salu("s_lshl_b32 s31, s31, 18")
    p.salu("s_add_u32 s31, s31, s30")
    p.salu(f"s_add_u32 s32, s30, {KVRING}")
    p.salu("s_mov_b32 s34, 0")
    kvn = [0]
    def kv_ops(tag=None):
        ops = []
        tg = tag if tag else f"kv{kvn[0]}"
        kvn[0] += 1
        def k(i):
            if i == 0: p.salu("s_mov_b32 m0, s32", swr=["m0"])
            if not opts.get("nokv"): p.dma(voK + i, "s[8:11]", "s31", off=i * 1024, flags=NT, tag=tg)
        def v(i):
            if i == 0: p.salu("s_add_u32 m0, s32, 16384", swr=["m0"])
            if not opts.get("nokv"): p.dma(voV, "s[12:15]", "s31", off=i * 1024, flags=NT, tag=tg)
            if i == 3:
                p.salu("s_add_u32 s31, s31, 16384")
                p.salu("s_add_u32 s34, s34, 1")
                p.salu("s_cmp_eq_u32 s34, 16")
                p.salu(f"s_cselect_b32 s33, {hex(15 * 262144)}, 0")
                p.salu("s_add_u32 s31, s31, s33")
                p.salu("s_cmp_ge_u32 s34, 32")
                p.salu("s_cselect_b32 s31, 0x8000000, s31")
                p.salu("s_add_u32 s32, s32, 32768")
                p.salu(f"s_cmp_ge_u32 s32, {KVRING + 3*32768}")
                p.salu("s_cselect_b32 s33, 98304, 0")
                p.salu("s_sub_u32 s32, s32, s33")
        for i in range(4): ops.append(lambda i=i: k(i))
        for i in range(4): ops.append(lambda i=i: v(i))
        return ops
    def run(ops):
        for o in ops: o()
    if not opts.get("kv0late"): run(kv_ops())
    L = 0
    p.valu(f"v_lshrrev_b32 v{T+2}, 5, v{L}", wr=[T+2], rd=[L])
    p.valu(f"v_bfe_u32 v{T+4}, v{L}, 2, 2", wr=[T+4], rd=[L])
    p.valu(f"v_lshl_add_u32 v{T+5}, v{T+2}, 3, v{T+4}", wr=[T+5], rd=[T+2, T+4])
    p.valu(f"v_lshlrev_b32 v{T+5}, 8, v{T+5}", wr=[T+5], rd=[T+5])
    p.valu(f"v_bfe_u32 v{T+6}, v{L}, 4, 1", wr=[T+6], rd=[L])
    p.valu(f"v_lshl_add_u32 v{T+5}, v{T+6}, 5, v{T+5}", wr=[T+5], rd=[T+6, T+5])
    p.valu(f"v_and_b32 v{T+6}, 1, v{L}", wr=[T+6], rd=[L])
    p.valu(f"v_lshl_add_u32 v{T+5}, v{T+6}, 4, v{T+5}", wr=[T+5], rd=[T+6, T+5])
    p.valu(f"v_bfe_u32 v{T+6}, v{L}, 1, 1", wr=[T+6], rd=[L])
    p.valu(f"v_lshl_add_u32 v{T+5}, v{T+6}, 3, v{T+5}", wr=[T+5], rd=[T+6, T+5])
    for b in range(4):
        p.valu(f"v_xor_b32 v{T+6}, {b}, v{T+4}", wr=[T+6], rd=[T+4])
        p.valu(f"v_lshl_add_u32 v{aW+b}, v{T+6}, 6, v{T+5}", wr=[aW+b], rd=[T+6, T+5])
        p.valu(f"v_add_u32 v{aWhi+b}, {KVRING+32768}, v{aW+b}", wr=[aWhi+b], rd=[aW+b])
    p.valu(f"v_and_b32 v{T+4}, 31, v{L}", wr=[T+4], rd=[L])
    p.valu(f"v_bfe_u32 v{T+5}, v{L}, 1, 3", wr=[T+5], rd=[L])
    p.valu(f"v_xor_b32 v{T+5}, v{T+5}, v{T+2}", wr=[T+5], rd=[T+5, T+2])
    p.valu(f"v_lshlrev_b32 v{T+5}, 4, v{T+5}", wr=[T+5], rd=[T+5])
    p.valu(f"v_lshl_add_u32 v{T+5}, v{T+4}, 7, v{T+5}", wr=[T+5], rd=[T+4, T+5])
    p.salu("s_add_u32 s33, s30, 16384")
    p.valu(f"v_add_u32 v{T+5}, s33, v{T+5}", wr=[T+5], rd=[T+5])
    for ks in range(4):
        p.valu(f"v_xor_b32 v{aXlo+ks}, {ks*32}, v{T+5}", wr=[aXlo+ks], rd=[T+5])
        p.valu(f"v_add_u32 v{aXhi+ks}, {KVRING+32768}, v{aXlo+ks}", wr=[aXhi+ks], rd=[aXlo+ks])
    p.salu(f"s_mov_b32 s48, {hex(f2u(QSCALE))}")
    def qstep(j, slotbase, groups, xload):
        hi = slotbase >= KVRING
        off0 = slotbase - (KVRING + 32768 if hi else 0)
        aw = aWhi if hi else aW
        ax = aXhi if hi else aXlo
        def wread(ks, blk):
            d = WF + blk * 4
            p.ds_read("ds_read_b64_tr_b16", d, 2, aw + blk, off=off0 + ks*4096)
            p.ds_read("ds_read_b64_tr_b16", d + 2, 2, aw + blk, off=off0 + ks*4096 + 1024)
        X = XR + 16 * j
        if xload: p.ds_read("ds_read_b128", X, 4, ax, off=off0)
        for blk in range(4): wread(0, blk)
        if xload:
            for ks in range(1, 4):
                p.ds_read("ds_read_b128", X + 4*ks, 4, ax + ks, off=off0)
        ops = [o for g in groups for o in g]
        n = len(ops); k = 0
        for ks in range(4):
            for blk in range(4):
                if blk % 2 == 0:
                    pass
                if j == 0 and ks == 0: p.mfma32(QA + 16*blk, WF + blk*4, X, czero=True)
                else: p.mfma32(QA + 16*blk, WF + blk*4, X + ks*4)
                if ks + 1 < 4: wread(ks + 1, blk)
                idx = ks * 4 + blk
                tgt = -(-(idx + 1) * n // 16)
                while k < min(n, tgt):
                    ops[k](); k += 1
        while k < n: ops[k](); k += 1
    def lane_addr(dst, base_s_text):
        p.valu(f"v_mbcnt_lo_u32_b32 v{dst}, -1, 0", wr=[dst])
        p.valu(f"v_mbcnt_hi_u32_b32 v{dst}, -1, v{dst}", wr=[dst], rd=[dst])
        p.valu(f"v_lshlrev_b32 v{dst}, 4, v{dst}", wr=[dst], rd=[dst])
        p.valu(f"v_add_u32 v{dst}, s33, v{dst}", wr=[dst], rd=[dst])
    def qconvert():
        aHW = WF
        p.salu("s_lshl_b32 s33, s3, 13")
        p.salu(f"s_add_u32 s33, s33, {QHAND}")
        lane_addr(aHW, None)
        for blk in range(4):
            for u in range(2):
                base = QA + 16*blk + 8*u
                for i in range(8):
                    p.valu(f"v_mul_f32 v{base+i}, s48, v{base+i}", wr=[base+i], rd=[base+i])
                for i in range(4):
                    p.valu(f"v_cvt_pk_bf16_f32 v{base+i}, v{base+2*i}, v{base+2*i+1}", wr=[base+i], rd=[base+2*i, base+2*i+1])
                p.ds_write("ds_write_b128", aHW, base, 4, off=(blk*2 + u) * 1024)
        p.wait(lgkm=0)
    for j in range(10):
        p.comment(f"P pass0 step {j}")
        p.wait_tag(f"x{j}")
        p.barrier()
        if j == 0: st(1)
        if opts.get("headst"): st(6 + j)
        groups = []
        if j + 3 < 10 and j + 3 >= npre: groups += [w_ops(j + 3, slots0[(j + 3) % 4]), x_ops(j + 3, slots0[(j + 3) % 4])]
        if j in (7, 8) or (opts.get("kv0late") and j == opts.get("kv0late")): groups += [kv_ops()]
        qstep(j, slots0[j % 4], groups, True)
    st(2)
    qconvert()
    p.wait_tag("kv0")
    st(3)
    cur[0] = 1
    ACC = 64
    stage = [[144 + 4*i for i in range(18)], [4*i for i in range(16)] + [216, 220]]
    voB = 224; vZ = 228; vP = 229; vOne = 231; vPo = 232
    def out_map():
        p.salu("s_and_b32 s4, s2, 7"); p.salu("s_lshr_b32 s5, s2, 3")
        p.salu("s_lshr_b32 s33, s4, 1"); p.salu("s_lshl_b32 s33, s33, 3"); p.salu("s_lshr_b32 s35, s5, 2"); p.salu("s_add_u32 s33, s33, s35")
        p.salu("s_and_b32 s4, s4, 1"); p.salu("s_lshl_b32 s4, s4, 2"); p.salu("s_and_b32 s5, s5, 3"); p.salu("s_add_u32 s5, s4, s5")
        p.salu("s_mov_b32 s4, s33")
    def frag_bases(kstep0_reg):
        p.salu("s_lshl_b32 s33, s4, 9"); p.salu(f"s_add_u32 s33, s33, {kstep0_reg}"); p.salu("s_lshl_b32 s33, s33, 10")
        for q in range(4): p.salu(f"s_add_u32 s{36+q}, s33, {q*131072}")
        p.salu("s_mul_i32 s33, s5, 640"); p.salu(f"s_add_u32 s33, s33, {kstep0_reg}"); p.salu("s_lshl_b32 s33, s33, 10")
        for nb in range(5): p.salu(f"s_add_u32 s{sAr[nb]}, s33, {WOT + nb*131072}")
    sAr = [40, 41, 42, 43, 46]
    LDF = " sc1"
    def sig(off_ops):
        p.salu("s_cmp_lg_u32 s3, 0")
        lb = f"{name}_ns{len(p.out)}"
        p.branch(f"s_cbranch_scc1 {lb}")
        for o in off_ops: p.salu(o)
        p.salu("s_mov_b64 exec, 1")
        p.raw(f"    buffer_atomic_add v{vOne}, v{vZ}, s[16:19], s33 offen sc1")
        p.salu("s_mov_b64 exec, -1")
        p.label(lb)
    def signal_w():
        srd(p, 16, 58, 256)
        p.valu(f"v_mov_b32 v{vZ}, 0", wr=[vZ]); p.valu(f"v_mov_b32 v{vOne}, 1", wr=[vOne])
        sig(["s_mov_b32 s33, 0"])
    def signal_and_setup():
        sig(["s_lshl_b32 s33, s7, 2", "s_add_u32 s33, s33, 64"])
        for r in range(80): p.valu(f"v_mov_b32 v{ACC+r}, 0", wr=[ACC+r])
    def poll_issue():
        p.salu("s_mov_b64 exec, 3")
        p.raw(f"    buffer_load_dword v{vP}, v{vPo}, s[16:19], 0 offen sc1")
        p.salu("s_mov_b64 exec, -1")
    def poll_check(dst):
        p.raw(f"    v_readlane_b32 s33, v{vP}, 0\n    v_readlane_b32 s35, v{vP}, 1\n    s_nop 3")
        p.salu("s_cmp_eq_u32 s33, 256"); p.salu("s_cselect_b32 s33, 1, 0")
        p.salu("s_cmp_eq_u32 s35, 16"); p.salu(f"s_cselect_b32 {dst}, s33, 0")
    def o1_issue(par):
        st_ = stage[par]
        for kk in range(2):
            for nb in range(5):
                p.bload(st_[kk*9 + nb], 4, voB, "s[24:27]", f"s{sAr[nb]}", off=kk*1024, flags=LDF)
            for q in range(4):
                p.bload(st_[kk*9 + 5 + q], 4, voB, "s[24:27]", f"s{36+q}", off=kk*1024, flags=LDF)
        for r in sAr + [36, 37, 38, 39]: p.salu(f"s_add_u32 s{r}, s{r}, 2048")
    def o1_compute(par):
        st_ = stage[par]
        p.out.append(Ins("s_nop 0", "nop", states=25))
        for kk in range(2):
            for nb in range(5):
                for q in range(4):
                    p.mfma16(ACC + (nb*4 + q)*4, st_[kk*9 + nb], st_[kk*9 + 5 + q])
    def ohand_store():
        p.comment("O handoff store")
        aO = WF; voO = WF + 1
        p.salu("s_lshl_b32 s33, s3, 13"); p.salu(f"s_add_u32 s33, s33, {OHAND}")
        lane_addr(aO, None)
        for u in range(8): p.ds_read("ds_read_b128", XR + 4*u, 4, aO, off=u * 1024)
        p.valu(f"v_mbcnt_lo_u32_b32 v{voO+1}, -1, 0", wr=[voO+1])
        p.valu(f"v_mbcnt_hi_u32_b32 v{voO+1}, -1, v{voO+1}", wr=[voO+1], rd=[voO+1])
        p.valu(f"v_bfe_u32 v{voO}, v{voO+1}, 4, 1", wr=[voO], rd=[voO+1])
        p.valu(f"v_lshlrev_b32 v{voO}, 17, v{voO}", wr=[voO], rd=[voO])
        p.valu(f"v_and_b32 v{voO+2}, 15, v{voO+1}", wr=[voO+2], rd=[voO+1])
        p.valu(f"v_lshl_add_u32 v{voO}, v{voO+2}, 4, v{voO}", wr=[voO], rd=[voO+2, voO])
        p.valu(f"v_lshrrev_b32 v{voO+2}, 5, v{voO+1}", wr=[voO+2], rd=[voO+1])
        p.valu(f"v_lshl_add_u32 v{voO}, v{voO+2}, 8, v{voO}", wr=[voO], rd=[voO+2, voO])
        p.salu("s_lshl_b32 s35, s7, 3"); p.salu("s_lshl_b32 s33, s3, 1"); p.salu("s_add_u32 s35, s35, s33")
        p.salu("s_lshl_b32 s35, s35, 7"); p.salu("s_lshl_b32 s33, s6, 2"); p.salu("s_add_u32 s35, s35, s33"); p.salu("s_lshl_b32 s35, s35, 10")
        for u in range(8):
            if not opts.get("nost"): p.bstore(XR + 4*u, 4, voO, "s[24:27]", "s35", off=(u >> 1) * 1024 + (u & 1) * 512, tag="ost", flags=STF)
    def wot_issue():
        srd(p, 16, 52, 4096 * 640 * 2)
        Tm = XR
        p.valu(f"v_mbcnt_lo_u32_b32 v{Tm+8}, -1, 0", wr=[Tm+8])
        p.valu(f"v_mbcnt_hi_u32_b32 v{Tm+8}, -1, v{Tm+8}", wr=[Tm+8], rd=[Tm+8])
        p.salu("s_mov_b32 s33, 0x1999999a")
        for i in range(5):
            p.valu(f"v_add_u32 v{Tm+5}, {64*i}, v{Tm+8}", wr=[Tm+5], rd=[Tm+8])
            p.valu(f"v_mul_hi_u32 v{Tm+6}, v{Tm+5}, s33", wr=[Tm+6], rd=[Tm+5])
            p.valu(f"v_mul_u32_u24 v{Tm+7}, 10, v{Tm+6}", wr=[Tm+7], rd=[Tm+6])
            p.valu(f"v_sub_u32 v{Tm+7}, v{Tm+5}, v{Tm+7}", wr=[Tm+7], rd=[Tm+5, Tm+7])
            p.valu(f"v_mul_u32_u24 v{Tm+6}, 1280, v{Tm+6}", wr=[Tm+6], rd=[Tm+6])
            p.valu(f"v_lshl_add_u32 v{Tm+i}, v{Tm+7}, 4, v{Tm+6}", wr=[Tm+i], rd=[Tm+7, Tm+6])
        p.salu("s_lshr_b32 s35, s2, 1"); p.salu(f"s_mul_i32 s35, s35, {32*1280}")
        p.salu("s_and_b32 s33, s2, 1"); p.salu("s_mul_i32 s33, s33, 640"); p.salu("s_add_u32 s35, s35, s33")
        p.salu("s_mul_i32 s33, s3, 160"); p.salu("s_add_u32 s35, s35, s33")
        p.salu("s_mul_i32 s51, s3, 5120"); p.salu(f"s_add_u32 s51, s51, {OHAND}")
        for k in range(5):
            p.salu(f"s_add_u32 m0, s51, {k*1024}", swr=["m0"])
            p.dma(Tm + k, "s[16:19]", "s35", tag="wot", flags=" nt")
    def wot_store():
        Tm = XR
        p.wait_tag("wot")
        L = Tm + 8
        p.valu(f"v_lshrrev_b32 v{Tm}, 5, v{L}", wr=[Tm], rd=[L])
        p.valu(f"v_bfe_u32 v{Tm+1}, v{L}, 4, 1", wr=[Tm+1], rd=[L])
        p.valu(f"v_bfe_u32 v{Tm+2}, v{L}, 2, 2", wr=[Tm+2], rd=[L])
        p.valu(f"v_lshl_add_u32 v{Tm+2}, v{Tm+1}, 2, v{Tm+2}", wr=[Tm+2], rd=[Tm+1, Tm+2])
        p.valu(f"v_lshl_add_u32 v{Tm+2}, v{Tm}, 4, v{Tm+2}", wr=[Tm+2], rd=[Tm, Tm+2])
        p.valu(f"v_mul_u32_u24 v{Tm+2}, 160, v{Tm+2}", wr=[Tm+2], rd=[Tm+2])
        p.valu(f"v_and_b32 v{Tm+1}, 3, v{L}", wr=[Tm+1], rd=[L])
        p.valu(f"v_lshl_add_u32 v{Tm+2}, v{Tm+1}, 3, v{Tm+2}", wr=[Tm+2], rd=[Tm+1, Tm+2])
        p.valu(f"v_add_u32 v{Tm+2}, s51, v{Tm+2}", wr=[Tm+2], rd=[Tm+2])
        for nb in range(5):
            d = Tm + 16 + nb*4
            p.ds_read("ds_read_b64_tr_b16", d, 2, Tm + 2, off=nb*32)
            p.ds_read("ds_read_b64_tr_b16", d + 2, 2, Tm + 2, off=nb*32 + 1280)
        p.valu(f"v_lshlrev_b32 v{Tm+3}, 4, v{L}", wr=[Tm+3], rd=[L])
        p.salu("s_and_b32 s33, s2, 1"); p.salu("s_mul_i32 s33, s33, 20"); p.salu("s_mul_i32 s35, s3, 5"); p.salu("s_add_u32 s33, s33, s35")
        p.salu("s_lshl_b32 s33, s33, 7"); p.salu("s_lshr_b32 s35, s2, 1"); p.salu("s_add_u32 s33, s33, s35"); p.salu("s_lshl_b32 s33, s33, 10")
        p.salu(f"s_add_u32 s35, s33, {hex(WOT)}")
        for nb in range(5):
            p.salu(f"s_add_u32 s33, s35, {nb*131072}")
            p.bstore(Tm + 16 + nb*4, 4, Tm + 3, "s[24:27]", "s33", tag="wotst", flags=STF)
    for t in range(19):
        p.comment(f"P step t={t}")
        p.barrier()
        if t in (16, 17): st({16: 6, 17: 7}[t])
        groups = []
        if t == 13: wot_issue()
        if t == 14: wot_store()
        if t == 16: signal_w()
        if t == 18: signal_and_setup()
        if t >= 1: groups.append(kv_ops())
        j = t - 2
        if t == 1:
            p.salu(f"s_add_u32 s28, s28, {16*256}")
            groups += [w_ops(jj, jj * 16384) for jj in range(3)]
        if 0 <= j < 10:
            if j + 3 < 10: groups.append(w_ops(j + 3, ((j + 3) % 4) * 16384))
            qstep(j, (j % 4) * 16384, groups, False)
        else:
            for g in groups: run(g)
        if t == 12: qconvert()
        p.wait_tag(f"kv{t+1}")
        if 0 <= t - 1 < 10: p.wait_tag(f"w{t-1}")
    st(4)
    st(4)
    p.salu("s_mov_b32 s47, 19")
    p.label(f"{name}_Ploop")
    p.barrier()
    p.reset_tracking()
    run(kv_ops("kvn"))
    p.raw("    s_waitcnt vmcnt(8)")
    p.salu("s_add_u32 s47, s47, 1")
    p.salu("s_cmp_lt_u32 s47, 32")
    p.branch(f"s_cbranch_scc1 {name}_Ploop")
    st(5)
    p.raw("    s_waitcnt vmcnt(0)")
    p.barrier()
    p.salu("s_add_u32 s3, s3, 4")
    p.branch(f"s_branch {name}_Tail")

    p.label(f"{name}_A")
    p.out.append(Ins("s_nop 4", "nop", states=25))
    p.reset_tracking()
    O = 64; S0 = 128; S1 = 144; P0 = 160; P1 = 168; KF = 176; VF = 208; Q = 32; C = 16
    aK = 240; aV = 248; LS = 2; T = 4; aH = 14; voO = 15; aOH = 1
    if opts.get("touch"):
        TF = " nt" if opts.get("touch") == 1 else ""
        D = 200
        srd(p, 16, 42, 640 * 4096 * 2)
        srd(p, 20, 36, 16 * 128 * 640 * 2)
        p.salu("s_lshr_b32 s33, s2, 6")
        p.salu("s_mul_i32 s33, s33, 160")
        p.salu("s_lshl_b32 s33, s33, 13")
        p.salu("s_lshl_b32 s34, s6, 8"); p.salu("s_add_u32 s33, s33, s34")
        p.salu("s_lshl_b32 s34, s3, 18")
        p.salu("s_add_u32 s34, s34, s33")
        p.valu(f"v_lshrrev_b32 v{T}, 1, v0", wr=[T], rd=[0])
        p.valu(f"v_lshlrev_b32 v{T}, 13, v{T}", wr=[T], rd=[T])
        p.valu(f"v_and_b32 v{T+1}, 1, v0", wr=[T+1], rd=[0])
        p.valu(f"v_lshl_add_u32 v{T}, v{T+1}, 7, v{T}", wr=[T], rd=[T+1, T])
        p.bload(D, 1, T, "s[16:19]", "s34", flags=TF)
        p.salu(f"s_add_u32 s34, s33, {4 << 18}")
        p.bload(D + 1, 1, T, "s[16:19]", "s34", flags=TF)
        p.salu("s_lshr_b32 s33, s2, 3"); p.salu("s_and_b32 s33, s33, 7"); p.salu("s_mul_i32 s33, s33, 160")
        p.salu("s_lshl_b32 s34, s3, 6"); p.salu("s_add_u32 s33, s33, s34"); p.salu("s_lshl_b32 s33, s33, 7")
        p.salu("s_mul_i32 s34, s7, 163840"); p.salu("s_add_u32 s33, s33, s34")
        p.valu(f"v_lshlrev_b32 v{T+1}, 7, v0", wr=[T+1], rd=[0])
        p.bload(D + 2, 1, T + 1, "s[20:23]", "s33", flags=TF)
        nk = opts.get("kvtouch", 0)
        if nk:
            srd(p, 8, 38, 0x8000000); srd(p, 12, 40, 0x8000000)
            p.salu("s_lshl_b32 s33, s7, 5"); p.salu("s_add_u32 s33, s33, s6"); p.salu("s_lshl_b32 s33, s33, 18")
            p.salu("s_and_b32 s34, s3, 1"); p.salu("s_lshl_b32 s34, s34, 13"); p.salu("s_add_u32 s33, s33, s34")
            p.salu("s_cmp_ge_u32 s3, 2")
            p.salu("s_cselect_b32 s8, s12, s8"); p.salu("s_cselect_b32 s9, s13, s9")
            for t in range(nk):
                p.salu(f"s_add_u32 s34, s33, {t*16384}")
                p.bload(D + 3 + t, 1, T + 1, "s[8:11]", "s34", flags=" nt")
        p.reset_tracking()
    srd(p, 24, 44, 128 * 128 * 1024)
    p.valu(f"v_and_b32 v{T+1}, 15, v0", wr=[T+1], rd=[0])
    p.valu(f"v_and_b32 v{T}, 31, v0", wr=[T], rd=[0])
    p.valu(f"v_lshrrev_b32 v{T+2}, 5, v0", wr=[T+2], rd=[0])
    p.valu(f"v_xor_b32 v{T+3}, v{T+2}, v{T+1}", wr=[T+3], rd=[T+2, T+1])
    p.valu(f"v_lshlrev_b32 v{T+3}, 4, v{T+3}", wr=[T+3], rd=[T+3])
    p.valu(f"v_lshl_add_u32 v{T+3}, v{T}, 8, v{T+3}", wr=[T+3], rd=[T, T+3])
    p.valu(f"v_add_u32 v{T+3}, {KVRING}, v{T+3}", wr=[T+3], rd=[T+3])
    for j in range(8):
        p.valu(f"v_xor_b32 v{aK+j}, {j*32}, v{T+3}", wr=[aK+j], rd=[T+3])
    p.valu(f"v_bfe_u32 v{T+4}, v0, 2, 2", wr=[T+4], rd=[0])
    p.valu(f"v_lshl_add_u32 v{T+5}, v{T+2}, 2, v{T+4}", wr=[T+5], rd=[T+2, T+4])
    p.valu(f"v_lshlrev_b32 v{T+5}, 8, v{T+5}", wr=[T+5], rd=[T+5])
    p.valu(f"v_bfe_u32 v{T+6}, v0, 4, 1", wr=[T+6], rd=[0])
    p.valu(f"v_lshl_add_u32 v{T+5}, v{T+6}, 5, v{T+5}", wr=[T+5], rd=[T+6, T+5])
    p.valu(f"v_and_b32 v{T+6}, 3, v0", wr=[T+6], rd=[0])
    p.valu(f"v_lshl_add_u32 v{T+5}, v{T+6}, 3, v{T+5}", wr=[T+5], rd=[T+6, T+5])
    p.valu(f"v_add_u32 v{T+5}, {KVRING + 16384}, v{T+5}", wr=[T+5], rd=[T+5])
    for b in range(4):
        p.valu(f"v_xor_b32 v{T+6}, {b}, v{T+4}", wr=[T+6], rd=[T+4])
        p.valu(f"v_lshl_add_u32 v{aV+b}, v{T+6}, 6, v{T+5}", wr=[aV+b], rd=[T+6, T+5])
    p.valu(f"v_bfe_u32 v{T+6}, v0, 4, 1", wr=[T+6], rd=[0])
    p.valu(f"v_lshlrev_b32 v{T+6}, 17, v{T+6}", wr=[T+6], rd=[T+6])
    p.valu(f"v_lshl_add_u32 v{T+6}, v{T+1}, 4, v{T+6}", wr=[T+6], rd=[T+1, T+6])
    p.valu(f"v_lshl_add_u32 v{voO}, v{T+2}, 8, v{T+6}", wr=[voO], rd=[T+2, T+6])
    p.salu("s_lshl_b32 s34, s7, 3"); p.salu("s_lshl_b32 s33, s3, 1"); p.salu("s_add_u32 s34, s34, s33")
    p.salu("s_lshl_b32 s34, s34, 7"); p.salu("s_lshl_b32 s33, s6, 2"); p.salu("s_add_u32 s34, s34, s33")
    p.salu("s_add_u32 s34, s34, 64"); p.salu("s_lshl_b32 s34, s34, 10")
    p.salu("s_lshl_b32 s33, s3, 13")
    p.valu(f"v_lshlrev_b32 v{aH}, 4, v0", wr=[aH], rd=[0])
    p.valu(f"v_add_u32 v{aH}, s33, v{aH}", wr=[aH], rd=[aH])
    p.valu(f"v_add_u32 v{aOH}, {OHAND}, v{aH}", wr=[aOH], rd=[aH])
    p.salu("s_mov_b32 s49, -65536"); p.salu("s_mov_b32 s50, 32768")
    p.salu("s_mov_b32 s35, 0")
    p.salu("s_mov_b32 s46, 0")
    for i in range(10): p.barrier()
    st(1); st.cyc(5)
    B = [KF, VF]
    def sm_half(S, P, half):
        ops = []
        b0 = 8 * half
        def addcvt(k):
            ops.append(lambda k=k: p.valu(f"v_add_f32 v{LS}, v{LS}, v{S+k}", wr=[LS], rd=[LS, S+k]))
            ops.append(lambda k=k: p.valu(f"v_add_f32 v{LS+1}, v{LS+1}, v{S+k+1}", wr=[LS+1], rd=[LS+1, S+k+1]))
            ops.append(lambda k=k: p.valu(f"v_cvt_pk_bf16_f32 v{P+k//2}, v{S+k}, v{S+k+1}", wr=[P+k//2], rd=[S+k, S+k+1]))
        for i in range(b0, b0 + 8, 2):
            ops.append(lambda i=i: p.trans(f"v_exp_f32 v{S+i}, v{S+i}", wr=[S+i], rd=[S+i]))
            ops.append(lambda i=i: p.trans(f"v_exp_f32 v{S+i+1}, v{S+i+1}", wr=[S+i+1], rd=[S+i+1]))
            if i >= b0 + 2: addcvt(i - 2)
        addcvt(b0 + 6)
        return ops
    def vread(bank, t, n):
        ks2, blk = n >> 2, n & 3
        d = bank + 4 * n
        ks = 2 * t + ks2
        p.ds_read("ds_read_b64_tr_b16", d, 2, aV + blk, off=ks * 4096)
        p.ds_read("ds_read_b64_tr_b16", d + 2, 2, aV + blk, off=ks * 4096 + 2048)
    def spread(ops, slots, i):
        for _ in range(slots[i]):
            if ops: ops.pop(0)()
    def step(first, par):
        KB = B[par]; VB = B[1 - par]
        p.barrier()
        p.reset_tracking()
        if first:
            for j in range(8):
                p.ds_read("ds_read_b128", Q + 4*j, 4, aH, off=QHAND + j * 1024)
        for j in range(8):
            p.ds_read("ds_read_b128", KB + 4*j, 4, aK + j)
        if first:
            p.valu(f"v_mov_b32 v{LS}, 0", wr=[LS]); p.valu(f"v_mov_b32 v{LS+1}, 0", wr=[LS+1])
            sm = []
        else:
            sm = sm_half(S1, P1, 1)
            for _ in range(12): sm.pop(0)()
        for j in range(8):
            if j == 0: p.wait(lgkm=4)
            if j == 4: p.wait(lgkm=4)
            if j == 0:
                if first: p.mfma32(S0, KB, Q, czero=True)
                else: p.mfma32(S0, KB, Q, C=C)
            else:
                p.mfma32(S0, KB + 4*j, Q + 4*j)
            p.ds_read("ds_read_b128", KB + 4*j, 4, aK + j, off=8192)
            spread(sm, [2, 2, 2, 2, 0, 0, 0, 0], j)
        while sm: sm.pop(0)()
        if first:
            p.valu(f"v_max3_f32 v{T}, v{S0}, v{S0+1}, v{S0+2}", wr=[T], rd=[S0, S0+1, S0+2])
            for i in range(3, 15, 2):
                p.valu(f"v_max3_f32 v{T}, v{T}, v{S0+i}, v{S0+i+1}", wr=[T], rd=[T, S0+i, S0+i+1])
            p.valu(f"v_max_f32 v{T}, v{T}, v{S0+15}", wr=[T], rd=[T, S0+15])
            p.valu(f"v_mov_b32 v{T+1}, v{T}", wr=[T+1], rd=[T])
            p.perm(f"v_permlane32_swap_b32 v{T}, v{T+1}", [T, T+1])
            p.valu(f"v_max_f32 v{T}, v{T}, v{T+1}", wr=[T], rd=[T, T+1])
            for i in range(16):
                p.valu(f"v_sub_f32 v{C+i}, 0, v{T}", wr=[C+i], rd=[T])
            for i in range(16):
                p.valu(f"v_sub_f32 v{S0+i}, v{S0+i}, v{T}", wr=[S0+i], rd=[S0+i, T])
        sm = sm_half(S0, P0, 0)
        for n in range(8):
            if n in (2, 5): p.wait(lgkm=(4 if n == 2 else 6))
            if not first:
                p.mfma32(O + 16*(n & 3), VB + 4*n, P1 + 4*(n >> 2))
            vread(VB, 0, n)
            spread(sm, [0, 0, 4, 4, 3, 3, 3, 3], n)
        while sm: sm.pop(0)()
        sm = sm_half(S0, P0, 1)
        for j in range(8):
            if j in (0, 3, 6): p.wait(lgkm=6)
            if j == 0: p.mfma32(S1, KB, Q, C=C)
            else: p.mfma32(S1, KB + 4*j, Q + 4*j)
            vread(KB, 1, j)
            spread(sm, [3, 3, 3, 3, 2, 2, 2, 2], j)
        while sm: sm.pop(0)()
        p.salu("s_add_u32 s35, s35, 1")
        p.salu("s_cmp_eq_u32 s35, 3")
        p.salu("s_cselect_b32 s33, s49, s50")
        p.salu("s_cselect_b32 s35, 0, s35")
        sm = sm_half(S1, P1, 0)
        adv = [(lambda r=r: p.valu(f"v_add_u32 v{r}, s33, v{r}", wr=[r], rd=[r])) for r in list(range(aK, aK+8)) + list(range(aV, aV+4))]
        for n in range(8):
            if first and n < 4: p.mfma32(O + 16*(n & 3), VB + 4*n, P0 + 4*(n >> 2), czero=True)
            else: p.mfma32(O + 16*(n & 3), VB + 4*n, P0 + 4*(n >> 2))
            if n < 2:
                spread(adv, [6, 6], n)
            spread(sm, [0, 0, 4, 4, 3, 3, 3, 3], n)
        while sm: sm.pop(0)()
        p.wait(lgkm=0)
    p.label(f"{name}_Apair")
    step(True, 0)
    p.salu("s_mov_b32 s47, 8")
    p.label(f"{name}_Aloop")
    step(False, 1)
    p.salu("s_cmp_lt_u32 s47, 8")
    p.branch(f"s_cbranch_scc1 {name}_Anw")
    p.raw("    s_waitcnt vmcnt(0)")
    p.label(f"{name}_Anw")
    p.salu("s_sub_u32 s47, s47, 1")
    p.salu("s_cmp_eq_u32 s47, 0")
    p.branch(f"s_cbranch_scc1 {name}_Aepi")
    step(False, 0)
    p.branch(f"s_branch {name}_Aloop")
    p.label(f"{name}_Aepi")
    p.out.append(Ins("s_nop 0", "nop", states=1))
    sm = sm_half(S1, P1, 1)
    while sm: sm.pop(0)()
    for n in range(8):
        p.mfma32(O + 16*(n & 3), B[1] + 4*n, P1 + 4*(n >> 2))
    p.nop(12)
    p.valu(f"v_add_f32 v{LS}, v{LS}, v{LS+1}", wr=[LS], rd=[LS, LS+1])
    p.valu(f"v_mov_b32 v{T}, v{LS}", wr=[T], rd=[LS])
    p.perm(f"v_permlane32_swap_b32 v{LS}, v{T}", [LS, T])
    p.valu(f"v_add_f32 v{LS}, v{LS}, v{T}", wr=[LS], rd=[LS, T])
    p.salu(f"s_mov_b32 s33, {hex(f2u(2.0**30))}")
    p.valu(f"v_cmp_nlt_f32 vcc, v{LS}, s33", rd=[LS], swr=["vcc"]) if False else p.raw(f"    v_cmp_nlt_f32_e64 vcc, v{LS}, s33")
    p.nop(5)
    p.branch(f"s_cbranch_vccnz {name}_Aslow")
    p.label(f"{name}_Anorm")
    p.out.append(Ins("s_nop 0", "nop", states=25))
    p.reset_tracking()
    p.trans(f"v_rcp_f32 v{T}, v{LS}", wr=[T], rd=[LS])
    for blk in range(4):
        for u in range(2):
            for i in range(8):
                r = O + 16*blk + 8*u + i
                p.valu(f"v_mul_f32 v{r}, v{r}, v{T}", wr=[r], rd=[r, T])
            d = S0 + (blk * 2 + u) * 4
            for i in range(4):
                r = O + 16*blk + 8*u + 2*i
                p.valu(f"v_cvt_pk_bf16_f32 v{d+i}, v{r}, v{r+1}", wr=[d+i], rd=[r, r+1])
    p.salu("s_cmp_eq_u32 s46, 1")
    p.branch(f"s_cbranch_scc1 {name}_Afin")
    p.salu(f"s_sub_u32 s33, s34, {64*1024}")
    for u in range(8):
        p.bstore(S0 + 4*u, 4, voO, "s[24:27]", "s33", off=(u >> 1) * 1024 + (u & 1) * 512, tag="ost", flags=STF)
    p.salu("s_mov_b32 s46, 1")
    p.nop(2)
    st(2); st.cyc(6)
    p.branch(f"s_branch {name}_Apair")
    p.label(f"{name}_Afin")
    st(3); st.cyc(7)
    for u in range(8):
        p.bstore(S0 + 4*u, 4, voO, "s[24:27]", "s34", off=(u >> 1) * 1024 + (u & 1) * 512, tag="ost", flags=STF)
    p.raw("    s_waitcnt vmcnt(0)")
    p.barrier()
    st(4)
    srd(p, 16, 58, 256)
    p.salu("s_cmp_lg_u32 s3, 0")
    p.branch(f"s_cbranch_scc1 {name}_nosigB")
    p.valu("v_mov_b32 v228, 0", wr=[228]); p.valu("v_mov_b32 v231, 1", wr=[231])
    p.salu("s_mov_b64 exec, 1")
    p.salu("s_lshl_b32 s33, s7, 2"); p.salu("s_add_u32 s33, s33, 128")
    p.raw("    buffer_atomic_add v231, v228, s[16:19], s33 offen sc1")
    p.salu("s_mov_b64 exec, -1")
    p.label(f"{name}_nosigB")
    for r in range(80): p.valu(f"v_mov_b32 v{64+r}, 0", wr=[64+r])
    p.label(f"{name}_Tail")
    p.out.append(Ins("s_nop 0", "nop", states=25))
    p.reset_tracking()
    ACC = 64; STG = 144; voB = 2; vZ = 6; vP = 8
    srd(p, 24, 44, 0x2000000)
    srd(p, 20, 56, 2048 * 640 * 2)
    out_map()
    p.valu(f"v_mbcnt_lo_u32_b32 v{voB}, -1, 0", wr=[voB])
    p.valu(f"v_mbcnt_hi_u32_b32 v{voB}, -1, v{voB}", wr=[voB], rd=[voB])
    p.valu(f"v_mov_b32 v0, v{voB}", wr=[0], rd=[voB])
    p.valu(f"v_lshlrev_b32 v{voB}, 4, v{voB}", wr=[voB], rd=[voB])
    p.valu(f"v_add_u32 v{voB+1}, 4096, v{voB}", wr=[voB+1], rd=[voB])
    p.valu(f"v_mov_b32 v{vZ}, 0", wr=[vZ])
    p.salu("s_mov_b32 s61, 1")
    p.label(f"{name}_Tround")
    p.reset_tracking()
    p.salu("s_sub_u32 s35, s61, 1"); p.salu("s_lshl_b32 s35, s35, 6"); p.salu("s_lshl_b32 s62, s3, 3"); p.salu("s_add_u32 s62, s62, s35")
    frag_bases("s62")
    p.salu("s_lshr_b32 s51, s4, 1"); p.salu("s_lshl_b32 s51, s51, 2"); p.salu("s_lshl_b32 s33, s61, 6"); p.salu("s_add_u32 s51, s51, s33")
    p.salu("s_cmp_lg_u32 s3, 0")
    p.branch(f"s_cbranch_scc1 {name}_Tgo")
    p.valu(f"v_cmp_eq_u32 vcc, 0, v0", rd=[0], swr=["vcc"])
    p.valu(f"v_mov_b32 v{vZ+1}, s51", wr=[vZ+1])
    p.nop(2)
    p.valu(f"v_cndmask_b32 v{vZ+1}, v{vZ+1}, v{vZ}, vcc", wr=[vZ+1], rd=[vZ+1, vZ])
    p.label(f"{name}_Tpoll")
    p.salu("s_mov_b64 exec, 3")
    p.raw(f"    buffer_load_dword v{vP}, v{vZ+1}, s[16:19], 0 offen sc1")
    p.salu("s_mov_b64 exec, -1")
    p.raw("    s_waitcnt vmcnt(0)")
    p.raw(f"    v_readlane_b32 s33, v{vP}, 0\n    v_readlane_b32 s35, v{vP}, 1\n    s_nop 3")
    p.salu("s_cmp_eq_u32 s33, 256"); p.salu("s_cselect_b32 s60, 1, 0")
    p.salu("s_cmp_eq_u32 s35, 16"); p.salu("s_cselect_b32 s60, s60, 0")
    p.salu("s_cmp_lg_u32 s60, 0")
    p.branch(f"s_cbranch_scc1 {name}_Tgo")
    p.raw(f"    s_sleep {opts.get('tsleep', 16)}")
    p.branch(f"s_branch {name}_Tpoll")
    p.label(f"{name}_Tgo")
    p.barrier()
    st(8)
    p.reset_tracking()
    def issue(i):
        base = STG + (i % 3) * 36
        for nb in range(5):
            p.bload(base + 4*nb, 4, voB + (i >> 2), "s[24:27]", f"s{sAr[nb]}", off=(i & 3) * 1024, tag=f"a{i}", flags=" sc1")
        for q in range(4):
            p.bload(base + 20 + 4*q, 4, voB + (i >> 2), "s[24:27]", f"s{36+q}", off=(i & 3) * 1024, tag=f"b{i}", flags=" sc1")
    issue(0); issue(1)
    for i in range(8):
        base = STG + (i % 3) * 36
        if i + 2 < 8: issue(i + 2)
        for nb in range(5):
            for q in range(4):
                p.mfma16(ACC + (nb*4 + q)*4, base + 4*nb, base + 20 + 4*q)
    if st.on:
        p.raw("    s_cmp_eq_u32 s61, 1\n    s_cbranch_scc0 %s_nst" % name)
        st(11)
        p.label(f"{name}_nst")
    p.salu("s_add_u32 s61, s61, 1")
    p.salu("s_cmp_le_u32 s61, 2")
    p.nop(8)
    p.branch(f"s_cbranch_scc1 {name}_Tround")
    st(9)
    T = 8
    p.salu("s_mul_i32 s33, s3, 20480")
    p.valu(f"v_add_u32 v{T}, s33, v{voB}", wr=[T], rd=[voB])
    for t in range(20):
        p.ds_write("ds_write_b128", T, ACC + 4*t, 4, off=t*1024)
    p.wait(lgkm=0)
    p.barrier()
    p.valu(f"v_and_b32 v{T+1}, 15, v0", wr=[T+1], rd=[0])
    p.valu(f"v_mul_u32_u24 v{T+1}, 1280, v{T+1}", wr=[T+1], rd=[T+1])
    p.valu(f"v_lshrrev_b32 v{T+2}, 4, v0", wr=[T+2], rd=[0])
    p.valu(f"v_lshl_add_u32 v{T+1}, v{T+2}, 3, v{T+1}", wr=[T+1], rd=[T+2, T+1])
    p.salu(f"s_mul_i32 s34, s4, {64*1280}")
    p.salu("s_mul_i32 s33, s5, 160"); p.salu("s_add_u32 s34, s34, s33")
    p.salu("s_lshl_b32 s35, s3, 10")
    p.valu(f"v_add_u32 v{T+3}, s35, v{voB}", wr=[T+3], rd=[voB])
    for rnd in range(3):
        if rnd == 2:
            p.salu("s_cmp_ge_u32 s3, 4")
            p.branch(f"s_cbranch_scc1 {name}_fin")
        p.salu(f"s_add_u32 s40, s3, {8*rnd}")
        p.salu("s_lshr_b32 s41, s40, 2"); p.salu("s_and_b32 s42, s40, 3")
        p.salu("s_lshl_b32 s41, s41, 5")
        p.salu(f"s_mul_i32 s42, s42, {16*1280}")
        p.salu("s_add_u32 s41, s41, s42"); p.salu("s_add_u32 s41, s41, s34")
        for w in range(8):
            off = w * 20480 + rnd * 8192
            if off < 65536:
                p.ds_read("ds_read_b128", ACC + 4*w, 4, T + 3, off=off)
            else:
                p.valu(f"v_add_u32 v{T+4}, {off}, v{T+3}", wr=[T+4], rd=[T+3])
                p.ds_read("ds_read_b128", ACC + 4*w, 4, T + 4)
        for w in range(1, 8):
            for r in range(4):
                p.valu(f"v_add_f32 v{ACC+r}, v{ACC+r}, v{ACC+4*w+r}", wr=[ACC+r], rd=[ACC+r, ACC+4*w+r])
        p.valu(f"v_cvt_pk_bf16_f32 v{ACC+40}, v{ACC}, v{ACC+1}", wr=[ACC+40], rd=[ACC, ACC+1])
        p.valu(f"v_cvt_pk_bf16_f32 v{ACC+41}, v{ACC+2}, v{ACC+3}", wr=[ACC+41], rd=[ACC+2, ACC+3])
        p.bstore(ACC + 40, 2, T + 1, "s[20:23]", "s41")
        p.nop(2)
    p.label(f"{name}_fin")
    if st.on:
        p.raw("    s_waitcnt vmcnt(0)")
        st(10); st.dump("s3")
    p.branch(f"s_branch {name}_done")
    p.label(f"{name}_Aslow")
    p.out.append(Ins("s_nop 0", "nop", states=25))
    p.reset_tracking()
    O = 64; S0 = 128; P0 = 160; KF = 176; VF = 208; Q = 32; LS = 2; T = 4
    M = 5; AL = 6; vK = 7; vV = 8; TM = 9; TN = 10
    srd(p, 8, 38, 0x8000000); srd(p, 12, 40, 0x8000000)
    p.salu("s_lshl_b32 s36, s7, 5"); p.salu("s_add_u32 s36, s36, s6"); p.salu("s_lshl_b32 s33, s46, 4"); p.salu("s_add_u32 s36, s36, s33"); p.salu("s_lshl_b32 s36, s36, 18")
    p.valu(f"v_mbcnt_lo_u32_b32 v{TM}, -1, 0", wr=[TM])
    p.valu(f"v_mbcnt_hi_u32_b32 v{TM}, -1, v{TM}", wr=[TM], rd=[TM])
    p.valu(f"v_and_b32 v{TN}, 31, v{TM}", wr=[TN], rd=[TM])
    p.valu(f"v_lshrrev_b32 v{TM}, 5, v{TM}", wr=[TM], rd=[TM])
    p.valu(f"v_lshlrev_b32 v{vK}, 8, v{TN}", wr=[vK], rd=[TN])
    p.valu(f"v_lshl_add_u32 v{vK}, v{TM}, 4, v{vK}", wr=[vK], rd=[TM, vK])
    p.valu(f"v_lshlrev_b32 v{vV}, 1, v{TN}", wr=[vV], rd=[TN])
    p.valu(f"v_lshl_add_u32 v{vV}, v{TM}, 10, v{vV}", wr=[vV], rd=[TM, vV])
    for r in range(64): p.valu(f"v_mov_b32 v{O+r}, 0", wr=[O+r])
    p.valu(f"v_mov_b32 v{LS}, 0", wr=[LS])
    p.valu(f"v_mov_b32 v{M}, 0xff7fffff", wr=[M])
    p.salu("s_mov_b32 s37, 0")
    p.label(f"{name}_Asl")
    p.reset_tracking()
    for j in range(8): p.bload(KF + 4*j, 4, vK, "s[8:11]", "s36", off=j*32)
    TV = 144
    for ks2 in range(2):
        for bp in range(2):
            for bb in range(2):
                blk = 2*bp + bb
                for i in range(8):
                    key = 16*ks2 + (i if i < 4 else 8 + i - 4)
                    p.salu(f"s_add_u32 s33, s36, {key*256 + blk*64}")
                    p.raw(f"    buffer_load_ushort v{TV + 8*bb + i}, v{vV}, s[12:15], s33 offen")
            p.raw("    s_waitcnt vmcnt(0)")
            for bb in range(2):
                d = VF + (ks2*4 + 2*bp + bb)*4
                for r in range(4):
                    p.valu(f"v_lshl_or_b32 v{d+r}, v{TV+8*bb+2*r+1}, 16, v{TV+8*bb+2*r}", wr=[d+r], rd=[TV+8*bb+2*r+1, TV+8*bb+2*r])
    p.raw("    s_waitcnt vmcnt(0)")
    p.reset_tracking()
    for j in range(8):
        if j == 0: p.mfma32(S0, KF, Q, czero=True)
        else: p.mfma32(S0, KF + 4*j, Q + 4*j)
    p.valu(f"v_max3_f32 v{TM}, v{S0}, v{S0+1}, v{S0+2}", wr=[TM], rd=[S0, S0+1, S0+2])
    for i in range(3, 15, 2): p.valu(f"v_max3_f32 v{TM}, v{TM}, v{S0+i}, v{S0+i+1}", wr=[TM], rd=[TM, S0+i, S0+i+1])
    p.valu(f"v_max_f32 v{TM}, v{TM}, v{S0+15}", wr=[TM], rd=[TM, S0+15])
    p.valu(f"v_mov_b32 v{TN}, v{TM}", wr=[TN], rd=[TM])
    p.perm(f"v_permlane32_swap_b32 v{TM}, v{TN}", [TM, TN])
    p.valu(f"v_max3_f32 v{TM}, v{TM}, v{TN}, v{M}", wr=[TM], rd=[TM, TN, M])
    p.valu(f"v_sub_f32 v{AL}, v{M}, v{TM}", wr=[AL], rd=[M, TM])
    p.trans(f"v_exp_f32 v{AL}, v{AL}", wr=[AL], rd=[AL])
    p.valu(f"v_mov_b32 v{M}, v{TM}", wr=[M], rd=[TM])
    p.valu(f"v_mul_f32 v{LS}, v{LS}, v{AL}", wr=[LS], rd=[LS, AL])
    for r in range(64): p.valu(f"v_mul_f32 v{O+r}, v{O+r}, v{AL}", wr=[O+r], rd=[O+r, AL])
    for i in range(16):
        p.valu(f"v_sub_f32 v{S0+i}, v{S0+i}, v{M}", wr=[S0+i], rd=[S0+i, M])
        p.trans(f"v_exp_f32 v{S0+i}, v{S0+i}", wr=[S0+i], rd=[S0+i])
    for i in range(16): p.valu(f"v_add_f32 v{LS}, v{LS}, v{S0+i}", wr=[LS], rd=[LS, S0+i])
    for i in range(8): p.valu(f"v_cvt_pk_bf16_f32 v{P0+i}, v{S0+2*i}, v{S0+2*i+1}", wr=[P0+i], rd=[S0+2*i, S0+2*i+1])
    for n in range(8): p.mfma32(O + 16*(n & 3), VF + 4*n, P0 + 4*(n >> 2))
    p.nop(16)
    p.salu("s_add_u32 s36, s36, 8192")
    p.salu("s_add_u32 s37, s37, 1")
    p.salu("s_cmp_lt_u32 s37, 32")
    p.branch(f"s_cbranch_scc1 {name}_Asl")
    p.valu(f"v_mov_b32 v{T}, v{LS}", wr=[T], rd=[LS])
    p.perm(f"v_permlane32_swap_b32 v{LS}, v{T}", [LS, T])
    p.valu(f"v_add_f32 v{LS}, v{LS}, v{T}", wr=[LS], rd=[LS, T])
    p.nop(2)
    p.branch(f"s_branch {name}_Anorm")
    p.label(f"{name}_done")
    p.raw("    s_endpgm")
    return p, name

def gen_k2(opts):
    p = Prog()
    name = opts.get("name", "k2_kernel")
    K2F = ["", " nt", " sc1", " sc0 sc1", " sc0"][opts.get("k2nt", 0)]
    st = Stamps(p, opts, key="wgt2")
    p.raw(f".globl {name}\n.p2align 8\n.type {name},@function\n{name}:")
    p.salu("s_cmp_ge_u32 s2, 256")
    p.branch(f"s_cbranch_scc1 {name}_done")
    p.salu("s_load_dwordx2 s[38:39], s[0:1], 40")
    p.salu("s_load_dwordx2 s[44:45], s[0:1], 56")
    p.valu("v_lshrrev_b32 v1, 6, v0", wr=[1], rd=[0])
    p.valu("v_and_b32 v0, 63, v0", wr=[0], rd=[0])
    p.rfl("s3", 1)
    p.salu("s_and_b32 s4, s2, 7")
    p.salu("s_lshr_b32 s5, s2, 3")
    p.salu("s_lshr_b32 s6, s4, 1"); p.salu("s_lshl_b32 s6, s6, 3"); p.salu("s_lshr_b32 s7, s5, 2"); p.salu("s_add_u32 s6, s6, s7")
    p.salu("s_and_b32 s7, s4, 1"); p.salu("s_lshl_b32 s7, s7, 2"); p.salu("s_and_b32 s5, s5, 3"); p.salu("s_add_u32 s7, s7, s5")
    ACC = 64; ST = 144; voB = 2; T = 4
    p.valu(f"v_lshlrev_b32 v{voB}, 4, v0", wr=[voB], rd=[0])
    p.salu("s_lshl_b32 s29, s6, 9"); p.salu("s_lshl_b32 s33, s3, 4"); p.salu("s_add_u32 s29, s29, s33"); p.salu("s_lshl_b32 s29, s29, 10")
    for q in range(4): p.salu(f"s_add_u32 s{48+q}, s29, {q*131072}")
    p.salu("s_mul_i32 s29, s7, 640"); p.salu("s_add_u32 s29, s29, s33"); p.salu("s_lshl_b32 s29, s29, 10")
    for nb in range(5): p.salu(f"s_add_u32 s{52+nb}, s29, {WOT + nb*131072}")
    p.raw("    s_waitcnt lgkmcnt(0)")
    if st.on:
        for k in range(16): p.raw(f"    s_mov_b32 s{70+k}, 0")
    st(0)
    srd(p, 24, 44, 0x2000000)
    srd(p, 12, 38, 2048 * 640 * 2)
    def issue(i):
        base = ST + (i % 3) * 36
        for nb in range(5):
            p.bload(base + 4*nb, 4, voB + (i >> 2), "s[24:27]", f"s{52+nb}", off=(i & 3) * 1024, tag=f"a{i}", flags=K2F)
        for q in range(4):
            p.bload(base + 20 + 4*q, 4, voB + (i >> 2), "s[24:27]", f"s{48+q}", off=(i & 3) * 1024, tag=f"b{i}", flags=K2F)
    for j in range(1, 4): p.valu(f"v_add_u32 v{voB+j}, {4096*j}, v{voB}", wr=[voB+j], rd=[voB])
    issue(0); issue(1)
    for i in range(16):
        p.comment(f"kstep {i}")
        base = ST + (i % 3) * 36
        if i + 2 < 16: issue(i + 2)
        if i == 1: st(1)
        if i == 8: st(2)
        for nb in range(5):
            for q in range(4):
                if i == 0: p.mfma16(ACC + (nb*4 + q)*4, base + 4*nb, base + 20 + 4*q, czero=True)
                else: p.mfma16(ACC + (nb*4 + q)*4, base + 4*nb, base + 20 + 4*q)
    st(3)
    T = 8
    p.salu("s_mul_i32 s33, s3, 20480")
    p.valu(f"v_add_u32 v{T}, s33, v{voB}", wr=[T], rd=[voB])
    for t in range(20):
        p.ds_write("ds_write_b128", T, ACC + 4*t, 4, off=t*1024)
    p.wait(lgkm=0)
    p.barrier()
    p.valu(f"v_and_b32 v{T+1}, 15, v0", wr=[T+1], rd=[0])
    p.valu(f"v_mul_u32_u24 v{T+1}, 1280, v{T+1}", wr=[T+1], rd=[T+1])
    p.valu(f"v_lshrrev_b32 v{T+2}, 4, v0", wr=[T+2], rd=[0])
    p.valu(f"v_lshl_add_u32 v{T+1}, v{T+2}, 3, v{T+1}", wr=[T+1], rd=[T+2, T+1])
    p.salu(f"s_mul_i32 s34, s6, {64*1280}")
    p.salu("s_mul_i32 s33, s7, 160"); p.salu("s_add_u32 s34, s34, s33")
    p.salu("s_lshl_b32 s35, s3, 10")
    p.valu(f"v_add_u32 v{T+3}, s35, v{voB}", wr=[T+3], rd=[voB])
    st(4)
    for rnd in range(3):
        if rnd == 2:
            p.salu("s_cmp_ge_u32 s3, 4")
            p.branch(f"s_cbranch_scc1 {name}_done")
        p.salu(f"s_add_u32 s40, s3, {8*rnd}")
        p.salu("s_lshr_b32 s41, s40, 2"); p.salu("s_and_b32 s42, s40, 3")
        p.salu("s_lshl_b32 s41, s41, 5")
        p.salu(f"s_mul_i32 s42, s42, {16*1280}")
        p.salu("s_add_u32 s41, s41, s42"); p.salu("s_add_u32 s41, s41, s34")
        for w in range(8):
            off = w * 20480 + rnd * 8192
            if off < 65536:
                p.ds_read("ds_read_b128", ACC + 4*w, 4, T + 3, off=off)
            else:
                p.valu(f"v_add_u32 v{T+4}, {off}, v{T+3}", wr=[T+4], rd=[T+3])
                p.ds_read("ds_read_b128", ACC + 4*w, 4, T + 4)
        for w in range(1, 8):
            for r in range(4):
                p.valu(f"v_add_f32 v{ACC+r}, v{ACC+r}, v{ACC+4*w+r}", wr=[ACC+r], rd=[ACC+r, ACC+4*w+r])
        p.valu(f"v_cvt_pk_bf16_f32 v{ACC+40}, v{ACC}, v{ACC+1}", wr=[ACC+40], rd=[ACC, ACC+1])
        p.valu(f"v_cvt_pk_bf16_f32 v{ACC+41}, v{ACC+2}, v{ACC+3}", wr=[ACC+41], rd=[ACC+2, ACC+3])
        p.bstore(ACC + 40, 2, T + 1, "s[12:15]", "s41", flags=["", " nt", " sc1", " sc0 sc1"][opts.get("outf", 0)])
        p.nop(2)
    if st.on:
        p.raw("    s_waitcnt vmcnt(0)")
        st(5); st.dump("s3")
    p.label(f"{name}_done")
    p.raw("    s_endpgm")
    return p, name

def build(path, opts={}):
    KN = "standalone__mha_block_cached__near_ridge_kernel"
    k1, n1 = gen_k1(dict(opts, name=KN))
    hdr = open("standalone__mha_block_cached__near_ridge.s.ref").read().split("; Override")[0]
    o = [hdr.rstrip()]
    o.append("; @launch grid=(256,1,1) block=(512,1,1) lds=163840")
    o.append('.amdgcn_target "amdgcn-amd-amdhsa--gfx950"\n.text')
    o.append(k1.text())
    o.append('.section .rodata,"a"\n.p2align 6')
    o.append(KD.format(name=n1, vgpr=256, sgpr=96, acc=256))
    open(path, "w").write("\n".join(o) + "\n")
    print("nops", k1.nops, "lines", len(k1.out))

if __name__ == "__main__":
    opts = {}
    for a in sys.argv[2:]:
        k, v = a.split("="); opts[k] = int(v)
    build(sys.argv[1], opts)
```

```python
import sys, struct
from fw import *

LOG2E = 1.4426950408889634
QSCALE = LOG2E / (128 ** 0.5)
def f2u(f): return struct.unpack("<I", struct.pack("<f", f))[0]

KVRING = 65536
QHAND = 0
OHAND = 32768
WOT = 0x1800000

def srd(p, dst, ptr, size):
    p.salu(f"s_mov_b32 s{dst}, s{ptr}")
    p.salu(f"s_and_b32 s{dst+1}, s{ptr+1}, 0xffff")
    p.salu(f"s_mov_b32 s{dst+2}, {hex(size)}")
    p.salu(f"s_mov_b32 s{dst+3}, 0x20000")

class Stamps:
    def __init__(s, p, opts, base=0x2000000, key="wgt"): s.p = p; s.on = opts.get(key, 0); s.base = base
    def __call__(s, k):
        if not s.on: return
        s.p.raw(f"    s_memrealtime s[68:69]\n    s_waitcnt lgkmcnt(0)\n    s_mov_b32 s{70+k}, s68")
        s.p.lg = []
    def cyc(s, k):
        if not s.on: return
        s.p.raw(f"    s_memtime s[68:69]\n    s_waitcnt lgkmcnt(0)\n    s_mov_b32 s{70+k}, s68")
        s.p.lg = []
    def dump(s, wavereg):
        if not s.on: return
        t = """    s_waitcnt vmcnt(0)
    s_mov_b32 s60, s44
    s_and_b32 s61, s45, 0xffff
    s_mov_b32 s62, 0x4000000
    s_mov_b32 s63, 0x20000
    s_lshl_b32 s64, s2, 3
    s_add_u32 s64, s64, %s
    s_lshl_b32 s64, s64, 6
    s_add_u32 s64, s64, %s
    v_mov_b32 v20, 0
""" % (wavereg, hex(s.base))
        for q in range(4):
            for i in range(4): t += f"    v_mov_b32 v{16+i}, s{70+4*q+i}\n"
            t += f"    s_nop 1\n    buffer_store_dwordx4 v[16:19], v20, s[60:63], s64 offen offset:{16*q}\n    s_nop 2\n"
        s.p.raw(t + "    s_waitcnt vmcnt(0)")

def gen_k1(opts):
    p = Prog()
    st = Stamps(p, opts)
    NT = " nt"
    WN = [" nt" if opts.get("wnt0", 1) else "", " nt" if opts.get("wnt1", 0) else ""]
    XNT = " nt" if opts.get("xnt", 1) else ""
    cur = [0]
    STF = ["", " nt", " sc1", " sc0 sc1", " sc1 nt", " sc0 sc1 nt"][opts.get("stnt", 3)]
    name = opts.get("name", "k1_kernel")
    p.raw(f".globl {name}\n.p2align 8\n.type {name},@function\n{name}:")
    p.salu("s_cmp_ge_u32 s2, 256")
    p.branch(f"s_cbranch_scc1 {name}_done")
    p.salu("s_load_dwordx8 s[36:43], s[0:1], 0")
    p.salu("s_load_dwordx2 s[44:45], s[0:1], 56")
    p.salu("s_load_dwordx2 s[52:53], s[0:1], 32")
    p.salu("s_load_dwordx4 s[56:59], s[0:1], 40")
    p.valu("v_lshrrev_b32 v1, 6, v0", wr=[1], rd=[0])
    p.valu("v_and_b32 v0, 63, v0", wr=[0], rd=[0])
    p.rfl("s3", 1)
    p.salu("s_and_b32 s4, s2, 7")
    p.salu("s_lshr_b32 s5, s2, 3")
    mp = opts.get("map", 2)
    if mp == 0:
        p.salu("s_lshr_b32 s6, s4, 1"); p.salu("s_lshl_b32 s6, s6, 2"); p.salu("s_and_b32 s7, s5, 3"); p.salu("s_add_u32 s6, s6, s7")
        p.salu("s_and_b32 s7, s4, 1"); p.salu("s_lshl_b32 s7, s7, 3"); p.salu("s_lshr_b32 s5, s5, 2"); p.salu("s_add_u32 s7, s7, s5")
    elif mp == 1:
        p.salu("s_and_b32 s6, s5, 15"); p.salu("s_lshl_b32 s7, s4, 1"); p.salu("s_lshr_b32 s5, s5, 4"); p.salu("s_add_u32 s7, s7, s5")
    elif mp == 2:
        p.salu("s_and_b32 s6, s4, 1"); p.salu("s_lshl_b32 s6, s6, 3"); p.salu("s_and_b32 s7, s5, 7"); p.salu("s_add_u32 s6, s6, s7")
        p.salu("s_lshr_b32 s7, s4, 1"); p.salu("s_lshl_b32 s7, s7, 2"); p.salu("s_lshr_b32 s5, s5, 3"); p.salu("s_add_u32 s7, s7, s5")
    if st.on:
        for k in range(16): p.raw(f"    s_mov_b32 s{70+k}, 0")
    p.raw("    s_waitcnt lgkmcnt(0)")
    st(0)
    p.salu("s_cmp_lt_u32 s3, 4")
    p.branch(f"s_cbranch_scc1 {name}_A")

    QA = 0; XR = 64; WF = 224; voW = 240; aW = 241; voK = 245; voV = 249; voX = 250; aXlo = 252; aWhi = 192; aXhi = 196
    T = 4
    srd(p, 16, 42, 640 * 4096 * 2)
    srd(p, 20, 36, 16 * 128 * 640 * 2)
    p.salu("s_sub_u32 s3, s3, 4")
    p.valu(f"v_lshrrev_b32 v{T}, 4, v0", wr=[T], rd=[0])
    p.valu(f"v_and_b32 v{T+1}, 15, v0", wr=[T+1], rd=[0])
    p.valu(f"v_lshlrev_b32 v{T+2}, 2, v{T}", wr=[T+2], rd=[T])
    p.valu(f"v_xor_b32 v{T+2}, v{T+2}, v{T+1}", wr=[T+2], rd=[T+2, T+1])
    p.valu(f"v_lshlrev_b32 v{T+2}, 4, v{T+2}", wr=[T+2], rd=[T+2])
    p.valu(f"v_lshl_add_u32 v{voW}, v{T}, 13, v{T+2}", wr=[voW], rd=[T, T+2])
    p.valu(f"v_lshl_add_u32 v{voV}, v{T}, 8, v{T+2}", wr=[voV], rd=[T, T+2])
    p.valu(f"v_lshrrev_b32 v{T+2}, 3, v0", wr=[T+2], rd=[0])
    p.valu(f"v_mul_u32_u24 v{T+2}, 1280, v{T+2}", wr=[T+2], rd=[T+2])
    p.valu(f"v_and_b32 v{T+3}, 7, v0", wr=[T+3], rd=[0])
    for e in range(2):
        p.valu(f"v_add_u32 v{T+4}, {4*e}, v{T}", wr=[T+4], rd=[T])
        p.valu(f"v_xor_b32 v{T+4}, v{T+4}, v{T+3}", wr=[T+4], rd=[T+4, T+3])
        p.valu(f"v_lshl_add_u32 v{voX+e}, v{T+4}, 4, v{T+2}", wr=[voX+e], rd=[T+4, T+2])
    p.salu("s_lshl_b32 s28, s3, 17")
    p.salu("s_lshl_b32 s33, s6, 8")
    p.salu("s_add_u32 s28, s28, s33")
    p.salu("s_mul_i32 s29, s7, 163840")
    p.salu(f"s_mul_i32 s33, s3, {32*1280}")
    p.salu("s_add_u32 s29, s29, s33")
    p.salu("s_lshl_b32 s30, s3, 12")
    slots0 = [0, 32768, KVRING + 32768, KVRING + 65536]
    def w_ops(j, slotbase):
        ops = []
        if opts.get("nopld"): return ops
        def f(i):
            p.salu(f"s_add_u32 m0, s30, {slotbase + i*1024}", swr=["m0"])
            p.salu(f"s_add_u32 s33, s28, {(64*j + 4*i) * 8192}")
            p.dma(voW, "s[16:19]", "s33", tag=f"w{j}", flags=WN[cur[0]])
        for i in range(4): ops.append(lambda i=i: f(i))
        return ops
    def x_ops(j, slotbase):
        ops = []
        if opts.get("nopld"): return ops
        def f(i):
            p.salu(f"s_add_u32 m0, s30, {slotbase + 16384 + i*1024}", swr=["m0"])
            p.salu(f"s_add_u32 s33, s29, {j*128 + i*10240}")
            p.dma(voX + (i & 1), "s[20:23]", "s33", tag=f"x{j}", flags=XNT)
        for i in range(4): ops.append(lambda i=i: f(i))
        return ops
    npre = opts.get("npre", 3)
    for j in range(npre):
        for o in w_ops(j, slots0[j]) + x_ops(j, slots0[j]): o()
    srd(p, 8, 38, 0x8000000)
    srd(p, 12, 40, 0x8000000)
    srd(p, 24, 44, 0x2000000)
    for i in range(4):
        p.valu(f"v_add_u32 v{T+2}, {4*i}, v{T}", wr=[T+2], rd=[T])
        p.valu(f"v_xor_b32 v{T+2}, v{T+2}, v{T+1}", wr=[T+2], rd=[T+2, T+1])
        p.valu(f"v_lshlrev_b32 v{T+2}, 4, v{T+2}", wr=[T+2], rd=[T+2])
        p.valu(f"v_lshl_add_u32 v{voK+i}, v{T}, 8, v{T+2}", wr=[voK+i], rd=[T, T+2])
    p.salu("s_lshl_b32 s31, s7, 5")
    p.salu("s_add_u32 s31, s31, s6")
    p.salu("s_lshl_b32 s31, s31, 18")
    p.salu("s_add_u32 s31, s31, s30")
    p.salu(f"s_add_u32 s32, s30, {KVRING}")
    p.salu("s_mov_b32 s34, 0")
    kvn = [0]
    def kv_ops(tag=None):
        ops = []
        tg = tag if tag else f"kv{kvn[0]}"
        kvn[0] += 1
        def k(i):
            if i == 0: p.salu("s_mov_b32 m0, s32", swr=["m0"])
            if not opts.get("nokv"): p.dma(voK + i, "s[8:11]", "s31", off=i * 1024, flags=NT, tag=tg)
        def v(i):
            if i == 0: p.salu("s_add_u32 m0, s32, 16384", swr=["m0"])
            if not opts.get("nokv"): p.dma(voV, "s[12:15]", "s31", off=i * 1024, flags=NT, tag=tg)
            if i == 3:
                p.salu("s_add_u32 s31, s31, 16384")
                p.salu("s_add_u32 s34, s34, 1")
                p.salu("s_cmp_eq_u32 s34, 16")
                p.salu(f"s_cselect_b32 s33, {hex(15 * 262144)}, 0")
                p.salu("s_add_u32 s31, s31, s33")
                p.salu("s_cmp_ge_u32 s34, 32")
                p.salu("s_cselect_b32 s31, 0x8000000, s31")
                p.salu("s_add_u32 s32, s32, 32768")
                p.salu(f"s_cmp_ge_u32 s32, {KVRING + 3*32768}")
                p.salu("s_cselect_b32 s33, 98304, 0")
                p.salu("s_sub_u32 s32, s32, s33")
        for i in range(4): ops.append(lambda i=i: k(i))
        for i in range(4): ops.append(lambda i=i: v(i))
        return ops
    def run(ops):
        for o in ops: o()
    if not opts.get("kv0late"): run(kv_ops())
    L = 0
    p.valu(f"v_lshrrev_b32 v{T+2}, 5, v{L}", wr=[T+2], rd=[L])
    p.valu(f"v_bfe_u32 v{T+4}, v{L}, 2, 2", wr=[T+4], rd=[L])
    p.valu(f"v_lshl_add_u32 v{T+5}, v{T+2}, 3, v{T+4}", wr=[T+5], rd=[T+2, T+4])
    p.valu(f"v_lshlrev_b32 v{T+5}, 8, v{T+5}", wr=[T+5], rd=[T+5])
    p.valu(f"v_bfe_u32 v{T+6}, v{L}, 4, 1", wr=[T+6], rd=[L])
    p.valu(f"v_lshl_add_u32 v{T+5}, v{T+6}, 5, v{T+5}", wr=[T+5], rd=[T+6, T+5])
    p.valu(f"v_and_b32 v{T+6}, 1, v{L}", wr=[T+6], rd=[L])
    p.valu(f"v_lshl_add_u32 v{T+5}, v{T+6}, 4, v{T+5}", wr=[T+5], rd=[T+6, T+5])
    p.valu(f"v_bfe_u32 v{T+6}, v{L}, 1, 1", wr=[T+6], rd=[L])
    p.valu(f"v_lshl_add_u32 v{T+5}, v{T+6}, 3, v{T+5}", wr=[T+5], rd=[T+6, T+5])
    for b in range(4):
        p.valu(f"v_xor_b32 v{T+6}, {b}, v{T+4}", wr=[T+6], rd=[T+4])
        p.valu(f"v_lshl_add_u32 v{aW+b}, v{T+6}, 6, v{T+5}", wr=[aW+b], rd=[T+6, T+5])
        p.valu(f"v_add_u32 v{aWhi+b}, {KVRING+32768}, v{aW+b}", wr=[aWhi+b], rd=[aW+b])
    p.valu(f"v_and_b32 v{T+4}, 31, v{L}", wr=[T+4], rd=[L])
    p.valu(f"v_bfe_u32 v{T+5}, v{L}, 1, 3", wr=[T+5], rd=[L])
    p.valu(f"v_xor_b32 v{T+5}, v{T+5}, v{T+2}", wr=[T+5], rd=[T+5, T+2])
    p.valu(f"v_lshlrev_b32 v{T+5}, 4, v{T+5}", wr=[T+5], rd=[T+5])
    p.valu(f"v_lshl_add_u32 v{T+5}, v{T+4}, 7, v{T+5}", wr=[T+5], rd=[T+4, T+5])
    p.salu("s_add_u32 s33, s30, 16384")
    p.valu(f"v_add_u32 v{T+5}, s33, v{T+5}", wr=[T+5], rd=[T+5])
    for ks in range(4):
        p.valu(f"v_xor_b32 v{aXlo+ks}, {ks*32}, v{T+5}", wr=[aXlo+ks], rd=[T+5])
        p.valu(f"v_add_u32 v{aXhi+ks}, {KVRING+32768}, v{aXlo+ks}", wr=[aXhi+ks], rd=[aXlo+ks])
    p.salu(f"s_mov_b32 s48, {hex(f2u(QSCALE))}")
    def qstep(j, slotbase, groups, xload):
        hi = slotbase >= KVRING
        off0 = slotbase - (KVRING + 32768 if hi else 0)
        aw = aWhi if hi else aW
        ax = aXhi if hi else aXlo
        def wread(ks, blk):
            d = WF + blk * 4
            p.ds_read("ds_read_b64_tr_b16", d, 2, aw + blk, off=off0 + ks*4096)
            p.ds_read("ds_read_b64_tr_b16", d + 2, 2, aw + blk, off=off0 + ks*4096 + 1024)
        X = XR + 16 * j
        if xload: p.ds_read("ds_read_b128", X, 4, ax, off=off0)
        for blk in range(4): wread(0, blk)
        if xload:
            for ks in range(1, 4):
                p.ds_read("ds_read_b128", X + 4*ks, 4, ax + ks, off=off0)
        ops = [o for g in groups for o in g]
        n = len(ops); k = 0
        for ks in range(4):
            for blk in range(4):
                if blk % 2 == 0:
                    pass
                if j == 0 and ks == 0: p.mfma32(QA + 16*blk, WF + blk*4, X, czero=True)
                else: p.mfma32(QA + 16*blk, WF + blk*4, X + ks*4)
                if ks + 1 < 4: wread(ks + 1, blk)
                idx = ks * 4 + blk
                tgt = -(-(idx + 1) * n // 16)
                while k < min(n, tgt):
                    ops[k](); k += 1
        while k < n: ops[k](); k += 1
    def lane_addr(dst, base_s_text):
        p.valu(f"v_mbcnt_lo_u32_b32 v{dst}, -1, 0", wr=[dst])
        p.valu(f"v_mbcnt_hi_u32_b32 v{dst}, -1, v{dst}", wr=[dst], rd=[dst])
        p.valu(f"v_lshlrev_b32 v{dst}, 4, v{dst}", wr=[dst], rd=[dst])
        p.valu(f"v_add_u32 v{dst}, s33, v{dst}", wr=[dst], rd=[dst])
    def qconvert():
        aHW = WF
        p.salu("s_lshl_b32 s33, s3, 13")
        p.salu(f"s_add_u32 s33, s33, {QHAND}")
        lane_addr(aHW, None)
        for blk in range(4):
            for u in range(2):
                base = QA + 16*blk + 8*u
                for i in range(8):
                    p.valu(f"v_mul_f32 v{base+i}, s48, v{base+i}", wr=[base+i], rd=[base+i])
                for i in range(4):
                    p.valu(f"v_cvt_pk_bf16_f32 v{base+i}, v{base+2*i}, v{base+2*i+1}", wr=[base+i], rd=[base+2*i, base+2*i+1])
                p.ds_write("ds_write_b128", aHW, base, 4, off=(blk*2 + u) * 1024)
        p.wait(lgkm=0)
    for j in range(10):
        p.comment(f"P pass0 step {j}")
        p.wait_tag(f"x{j}")
        p.barrier()
        if j == 0: st(1)
        if opts.get("headst"): st(6 + j)
        groups = []
        if j + 3 < 10 and j + 3 >= npre: groups += [w_ops(j + 3, slots0[(j + 3) % 4]), x_ops(j + 3, slots0[(j + 3) % 4])]
        if j in (7, 8) or (opts.get("kv0late") and j == opts.get("kv0late")): groups += [kv_ops()]
        qstep(j, slots0[j % 4], groups, True)
    st(2)
    qconvert()
    p.wait_tag("kv0")
    st(3)
    cur[0] = 1
    ACC = 64
    stage = [[144 + 4*i for i in range(18)], [4*i for i in range(16)] + [216, 220]]
    voB = 224; vZ = 228; vP = 229; vOne = 231; vPo = 232
    def out_map():
        p.salu("s_and_b32 s4, s2, 7"); p.salu("s_lshr_b32 s5, s2, 3")
        p.salu("s_lshr_b32 s33, s4, 1"); p.salu("s_lshl_b32 s33, s33, 3"); p.salu("s_lshr_b32 s35, s5, 2"); p.salu("s_add_u32 s33, s33, s35")
        p.salu("s_and_b32 s4, s4, 1"); p.salu("s_lshl_b32 s4, s4, 2"); p.salu("s_and_b32 s5, s5, 3"); p.salu("s_add_u32 s5, s4, s5")
        p.salu("s_mov_b32 s4, s33")
    def frag_bases(kstep0_reg):
        p.salu("s_lshl_b32 s33, s4, 9"); p.salu(f"s_add_u32 s33, s33, {kstep0_reg}"); p.salu("s_lshl_b32 s33, s33, 10")
        for q in range(4): p.salu(f"s_add_u32 s{36+q}, s33, {q*131072}")
        p.salu("s_mul_i32 s33, s5, 640"); p.salu(f"s_add_u32 s33, s33, {kstep0_reg}"); p.salu("s_lshl_b32 s33, s33, 10")
        for nb in range(5): p.salu(f"s_add_u32 s{sAr[nb]}, s33, {WOT + nb*131072}")
    sAr = [40, 41, 42, 43, 46]
    LDF = " sc1"
    def sig(off_ops):
        p.salu("s_cmp_lg_u32 s3, 0")
        lb = f"{name}_ns{len(p.out)}"
        p.branch(f"s_cbranch_scc1 {lb}")
        for o in off_ops: p.salu(o)
        p.salu("s_mov_b64 exec, 1")
        p.raw(f"    buffer_atomic_add v{vOne}, v{vZ}, s[16:19], s33 offen sc1")
        p.salu("s_mov_b64 exec, -1")
        p.label(lb)
    def signal_w():
        srd(p, 16, 58, 256)
        p.valu(f"v_mov_b32 v{vZ}, 0", wr=[vZ]); p.valu(f"v_mov_b32 v{vOne}, 1", wr=[vOne])
        sig(["s_mov_b32 s33, 0"])
    def signal_and_setup():
        sig(["s_lshl_b32 s33, s7, 2", "s_add_u32 s33, s33, 64"])
        for r in range(80): p.valu(f"v_mov_b32 v{ACC+r}, 0", wr=[ACC+r])
    def poll_issue():
        p.salu("s_mov_b64 exec, 3")
        p.raw(f"    buffer_load_dword v{vP}, v{vPo}, s[16:19], 0 offen sc1")
        p.salu("s_mov_b64 exec, -1")
    def poll_check(dst):
        p.raw(f"    v_readlane_b32 s33, v{vP}, 0\n    v_readlane_b32 s35, v{vP}, 1\n    s_nop 3")
        p.salu("s_cmp_eq_u32 s33, 256"); p.salu("s_cselect_b32 s33, 1, 0")
        p.salu("s_cmp_eq_u32 s35, 16"); p.salu(f"s_cselect_b32 {dst}, s33, 0")
    def o1_issue(par):
        st_ = stage[par]
        for kk in range(2):
            for nb in range(5):
                p.bload(st_[kk*9 + nb], 4, voB, "s[24:27]", f"s{sAr[nb]}", off=kk*1024, flags=LDF)
            for q in range(4):
                p.bload(st_[kk*9 + 5 + q], 4, voB, "s[24:27]", f"s{36+q}", off=kk*1024, flags=LDF)
        for r in sAr + [36, 37, 38, 39]: p.salu(f"s_add_u32 s{r}, s{r}, 2048")
    def o1_compute(par):
        st_ = stage[par]
        p.out.append(Ins("s_nop 0", "nop", states=25))
        for kk in range(2):
            for nb in range(5):
                for q in range(4):
                    p.mfma16(ACC + (nb*4 + q)*4, st_[kk*9 + nb], st_[kk*9 + 5 + q])
    def ohand_store():
        p.comment("O handoff store")
        aO = WF; voO = WF + 1
        p.salu("s_lshl_b32 s33, s3, 13"); p.salu(f"s_add_u32 s33, s33, {OHAND}")
        lane_addr(aO, None)
        for u in range(8): p.ds_read("ds_read_b128", XR + 4*u, 4, aO, off=u * 1024)
        p.valu(f"v_mbcnt_lo_u32_b32 v{voO+1}, -1, 0", wr=[voO+1])
        p.valu(f"v_mbcnt_hi_u32_b32 v{voO+1}, -1, v{voO+1}", wr=[voO+1], rd=[voO+1])
        p.valu(f"v_bfe_u32 v{voO}, v{voO+1}, 4, 1", wr=[voO], rd=[voO+1])
        p.valu(f"v_lshlrev_b32 v{voO}, 17, v{voO}", wr=[voO], rd=[voO])
        p.valu(f"v_and_b32 v{voO+2}, 15, v{voO+1}", wr=[voO+2], rd=[voO+1])
        p.valu(f"v_lshl_add_u32 v{voO}, v{voO+2}, 4, v{voO}", wr=[voO], rd=[voO+2, voO])
        p.valu(f"v_lshrrev_b32 v{voO+2}, 5, v{voO+1}", wr=[voO+2], rd=[voO+1])
        p.valu(f"v_lshl_add_u32 v{voO}, v{voO+2}, 8, v{voO}", wr=[voO], rd=[voO+2, voO])
        p.salu("s_lshl_b32 s35, s7, 3"); p.salu("s_lshl_b32 s33, s3, 1"); p.salu("s_add_u32 s35, s35, s33")
        p.salu("s_lshl_b32 s35, s35, 7"); p.salu("s_lshl_b32 s33, s6, 2"); p.salu("s_add_u32 s35, s35, s33"); p.salu("s_lshl_b32 s35, s35, 10")
        for u in range(8):
            if not opts.get("nost"): p.bstore(XR + 4*u, 4, voO, "s[24:27]", "s35", off=(u >> 1) * 1024 + (u & 1) * 512, tag="ost", flags=STF)
    def wot_issue():
        srd(p, 16, 52, 4096 * 640 * 2)
        Tm = XR
        p.valu(f"v_mbcnt_lo_u32_b32 v{Tm+8}, -1, 0", wr=[Tm+8])
        p.valu(f"v_mbcnt_hi_u32_b32 v{Tm+8}, -1, v{Tm+8}", wr=[Tm+8], rd=[Tm+8])
        p.salu("s_mov_b32 s33, 0x1999999a")
        for i in range(5):
            p.valu(f"v_add_u32 v{Tm+5}, {64*i}, v{Tm+8}", wr=[Tm+5], rd=[Tm+8])
            p.valu(f"v_mul_hi_u32 v{Tm+6}, v{Tm+5}, s33", wr=[Tm+6], rd=[Tm+5])
            p.valu(f"v_mul_u32_u24 v{Tm+7}, 10, v{Tm+6}", wr=[Tm+7], rd=[Tm+6])
            p.valu(f"v_sub_u32 v{Tm+7}, v{Tm+5}, v{Tm+7}", wr=[Tm+7], rd=[Tm+5, Tm+7])
            p.valu(f"v_mul_u32_u24 v{Tm+6}, 1280, v{Tm+6}", wr=[Tm+6], rd=[Tm+6])
            p.valu(f"v_lshl_add_u32 v{Tm+i}, v{Tm+7}, 4, v{Tm+6}", wr=[Tm+i], rd=[Tm+7, Tm+6])
        p.salu("s_lshr_b32 s35, s2, 1"); p.salu(f"s_mul_i32 s35, s35, {32*1280}")
        p.salu("s_and_b32 s33, s2, 1"); p.salu("s_mul_i32 s33, s33, 640"); p.salu("s_add_u32 s35, s35, s33")
        p.salu("s_mul_i32 s33, s3, 160"); p.salu("s_add_u32 s35, s35, s33")
        p.salu("s_mul_i32 s51, s3, 5120"); p.salu(f"s_add_u32 s51, s51, {OHAND}")
        for k in range(5):
            p.salu(f"s_add_u32 m0, s51, {k*1024}", swr=["m0"])
            p.dma(Tm + k, "s[16:19]", "s35", tag="wot", flags=" nt")
    def wot_store():
        Tm = XR
        p.wait_tag("wot")
        L = Tm + 8
        p.valu(f"v_lshrrev_b32 v{Tm}, 5, v{L}", wr=[Tm], rd=[L])
        p.valu(f"v_bfe_u32 v{Tm+1}, v{L}, 4, 1", wr=[Tm+1], rd=[L])
        p.valu(f"v_bfe_u32 v{Tm+2}, v{L}, 2, 2", wr=[Tm+2], rd=[L])
        p.valu(f"v_lshl_add_u32 v{Tm+2}, v{Tm+1}, 2, v{Tm+2}", wr=[Tm+2], rd=[Tm+1, Tm+2])
        p.valu(f"v_lshl_add_u32 v{Tm+2}, v{Tm}, 4, v{Tm+2}", wr=[Tm+2], rd=[Tm, Tm+2])
        p.valu(f"v_mul_u32_u24 v{Tm+2}, 160, v{Tm+2}", wr=[Tm+2], rd=[Tm+2])
        p.valu(f"v_and_b32 v{Tm+1}, 3, v{L}", wr=[Tm+1], rd=[L])
        p.valu(f"v_lshl_add_u32 v{Tm+2}, v{Tm+1}, 3, v{Tm+2}", wr=[Tm+2], rd=[Tm+1, Tm+2])
        p.valu(f"v_add_u32 v{Tm+2}, s51, v{Tm+2}", wr=[Tm+2], rd=[Tm+2])
        for nb in range(5):
            d = Tm + 16 + nb*4
            p.ds_read("ds_read_b64_tr_b16", d, 2, Tm + 2, off=nb*32)
            p.ds_read("ds_read_b64_tr_b16", d + 2, 2, Tm + 2, off=nb*32 + 1280)
        p.valu(f"v_lshlrev_b32 v{Tm+3}, 4, v{L}", wr=[Tm+3], rd=[L])
        p.salu("s_and_b32 s33, s2, 1"); p.salu("s_mul_i32 s33, s33, 20"); p.salu("s_mul_i32 s35, s3, 5"); p.salu("s_add_u32 s33, s33, s35")
        p.salu("s_lshl_b32 s33, s33, 7"); p.salu("s_lshr_b32 s35, s2, 1"); p.salu("s_add_u32 s33, s33, s35"); p.salu("s_lshl_b32 s33, s33, 10")
        p.salu(f"s_add_u32 s35, s33, {hex(WOT)}")
        for nb in range(5):
            p.salu(f"s_add_u32 s33, s35, {nb*131072}")
            p.bstore(Tm + 16 + nb*4, 4, Tm + 3, "s[24:27]", "s33", tag="wotst", flags=STF)
    for t in range(19):
        p.comment(f"P step t={t}")
        p.barrier()
        if t in (16, 17): st({16: 6, 17: 7}[t])
        groups = []
        if t == 13: wot_issue()
        if t == 14: wot_store()
        if t == 16: signal_w()
        if t == 18: signal_and_setup()
        if t >= 1: groups.append(kv_ops())
        j = t - 2
        if t == 1:
            p.salu(f"s_add_u32 s28, s28, {16*256}")
            groups += [w_ops(jj, jj * 16384) for jj in range(3)]
        if 0 <= j < 10:
            if j + 3 < 10: groups.append(w_ops(j + 3, ((j + 3) % 4) * 16384))
            qstep(j, (j % 4) * 16384, groups, False)
        else:
            for g in groups: run(g)
        if t == 12: qconvert()
        p.wait_tag(f"kv{t+1}")
        if 0 <= t - 1 < 10: p.wait_tag(f"w{t-1}")
    st(4)
    st(4)
    p.salu("s_mov_b32 s47, 19")
    p.label(f"{name}_Ploop")
    p.barrier()
    p.reset_tracking()
    run(kv_ops("kvn"))
    p.raw("    s_waitcnt vmcnt(8)")
    p.salu("s_add_u32 s47, s47, 1")
    p.salu("s_cmp_lt_u32 s47, 32")
    p.branch(f"s_cbranch_scc1 {name}_Ploop")
    st(5)
    p.raw("    s_waitcnt vmcnt(0)")
    p.barrier()
    p.salu("s_add_u32 s3, s3, 4")
    p.branch(f"s_branch {name}_Tail")

    p.label(f"{name}_A")
    p.out.append(Ins("s_nop 4", "nop", states=25))
    p.reset_tracking()
    O = 64; S0 = 128; S1 = 144; P0 = 160; P1 = 168; KF = 176; VF = 208; Q = 32; C = 16
    aK = 240; aV = 248; LS = 2; T = 4; aH = 14; voO = 15; aOH = 1
    def a_touch():
        TF = " nt"
        D = 200
        k0 = opts.get("touchk0", 4)
        nrow = (10 - k0) * 64
        q = nrow // 4
        srd(p, 16, 42, 640 * 4096 * 2); srd(p, 20, 36, 16 * 128 * 640 * 2)
        ninst = -(-2*q // 64)
        p.salu("s_lshr_b32 s33, s2, 6"); p.salu(f"s_mul_i32 s33, s33, {q}"); p.salu(f"s_add_u32 s33, s33, {k0*64}")
        p.salu("s_lshl_b32 s28, s3, 5"); p.salu("s_add_u32 s33, s33, s28"); p.salu("s_lshl_b32 s33, s33, 13")
        p.salu("s_lshl_b32 s28, s6, 8"); p.salu("s_add_u32 s33, s33, s28")
        p.valu(f"v_lshrrev_b32 v{T}, 1, v0", wr=[T], rd=[0])
        p.valu(f"v_lshlrev_b32 v{T}, 13, v{T}", wr=[T], rd=[T])
        p.valu(f"v_and_b32 v{T+1}, 1, v0", wr=[T+1], rd=[0])
        p.valu(f"v_lshl_add_u32 v{T}, v{T+1}, 7, v{T}", wr=[T], rd=[T+1, T])
        p.bload(D, 1, T, "s[16:19]", "s33", flags=TF)
        if ninst > 4:
            p.salu(f"s_add_u32 s33, s33, {128 << 13}")
            p.bload(D + 1, 1, T, "s[16:19]", "s33", flags=TF)
        p.salu("s_lshr_b32 s33, s2, 3"); p.salu("s_and_b32 s33, s33, 7"); p.salu("s_lshl_b32 s33, s33, 4")
        p.salu("s_lshl_b32 s28, s3, 3"); p.salu("s_add_u32 s33, s33, s28"); p.salu("s_mul_i32 s33, s33, 1280")
        p.salu("s_mul_i32 s28, s7, 163840"); p.salu("s_add_u32 s33, s33, s28"); p.salu(f"s_add_u32 s33, s33, {k0*128}")
        p.salu("s_cmp_ge_u32 s3, 2"); p.salu("s_cselect_b32 s33, 0x8000000, s33")
        p.valu(f"v_lshrrev_b32 v{T}, 3, v0", wr=[T], rd=[0])
        p.valu(f"v_mul_u32_u24 v{T}, 1280, v{T}", wr=[T], rd=[T])
        p.valu(f"v_and_b32 v{T+1}, 7, v0", wr=[T+1], rd=[0])
        p.valu(f"v_lshl_add_u32 v{T}, v{T+1}, 7, v{T}", wr=[T], rd=[T+1, T])
        p.bload(D + 2, 1, T, "s[20:23]", "s33", flags=TF)
        p.reset_tracking()
    srd(p, 24, 44, 128 * 128 * 1024)
    p.valu(f"v_and_b32 v{T+1}, 15, v0", wr=[T+1], rd=[0])
    p.valu(f"v_and_b32 v{T}, 31, v0", wr=[T], rd=[0])
    p.valu(f"v_lshrrev_b32 v{T+2}, 5, v0", wr=[T+2], rd=[0])
    p.valu(f"v_xor_b32 v{T+3}, v{T+2}, v{T+1}", wr=[T+3], rd=[T+2, T+1])
    p.valu(f"v_lshlrev_b32 v{T+3}, 4, v{T+3}", wr=[T+3], rd=[T+3])
    p.valu(f"v_lshl_add_u32 v{T+3}, v{T}, 8, v{T+3}", wr=[T+3], rd=[T, T+3])
    p.valu(f"v_add_u32 v{T+3}, {KVRING}, v{T+3}", wr=[T+3], rd=[T+3])
    for j in range(8):
        p.valu(f"v_xor_b32 v{aK+j}, {j*32}, v{T+3}", wr=[aK+j], rd=[T+3])
    p.valu(f"v_bfe_u32 v{T+4}, v0, 2, 2", wr=[T+4], rd=[0])
    p.valu(f"v_lshl_add_u32 v{T+5}, v{T+2}, 2, v{T+4}", wr=[T+5], rd=[T+2, T+4])
    p.valu(f"v_lshlrev_b32 v{T+5}, 8, v{T+5}", wr=[T+5], rd=[T+5])
    p.valu(f"v_bfe_u32 v{T+6}, v0, 4, 1", wr=[T+6], rd=[0])
    p.valu(f"v_lshl_add_u32 v{T+5}, v{T+6}, 5, v{T+5}", wr=[T+5], rd=[T+6, T+5])
    p.valu(f"v_and_b32 v{T+6}, 3, v0", wr=[T+6], rd=[0])
    p.valu(f"v_lshl_add_u32 v{T+5}, v{T+6}, 3, v{T+5}", wr=[T+5], rd=[T+6, T+5])
    p.valu(f"v_add_u32 v{T+5}, {KVRING + 16384}, v{T+5}", wr=[T+5], rd=[T+5])
    for b in range(4):
        p.valu(f"v_xor_b32 v{T+6}, {b}, v{T+4}", wr=[T+6], rd=[T+4])
        p.valu(f"v_lshl_add_u32 v{aV+b}, v{T+6}, 6, v{T+5}", wr=[aV+b], rd=[T+6, T+5])
    p.valu(f"v_bfe_u32 v{T+6}, v0, 4, 1", wr=[T+6], rd=[0])
    p.valu(f"v_lshlrev_b32 v{T+6}, 17, v{T+6}", wr=[T+6], rd=[T+6])
    p.valu(f"v_lshl_add_u32 v{T+6}, v{T+1}, 4, v{T+6}", wr=[T+6], rd=[T+1, T+6])
    p.valu(f"v_lshl_add_u32 v{voO}, v{T+2}, 8, v{T+6}", wr=[voO], rd=[T+2, T+6])
    p.salu("s_lshl_b32 s34, s7, 3"); p.salu("s_lshl_b32 s33, s3, 1"); p.salu("s_add_u32 s34, s34, s33")
    p.salu("s_lshl_b32 s34, s34, 7"); p.salu("s_lshl_b32 s33, s6, 2"); p.salu("s_add_u32 s34, s34, s33")
    p.salu("s_add_u32 s34, s34, 64"); p.salu("s_lshl_b32 s34, s34, 10")
    p.salu("s_lshl_b32 s33, s3, 13")
    p.valu(f"v_lshlrev_b32 v{aH}, 4, v0", wr=[aH], rd=[0])
    p.valu(f"v_add_u32 v{aH}, s33, v{aH}", wr=[aH], rd=[aH])
    p.valu(f"v_add_u32 v{aOH}, {OHAND}, v{aH}", wr=[aOH], rd=[aH])
    p.salu("s_mov_b32 s49, -65536"); p.salu("s_mov_b32 s50, 32768")
    p.salu("s_mov_b32 s35, 0")
    p.salu("s_mov_b32 s46, 0")
    tb = opts.get("touch", 0)
    if tb == 1:
        p.raw("    s_sleep %d" % opts.get("tdelay", 10))
        a_touch()
    for i in range(10):
        p.barrier()
        if tb == 2 and i == 0: a_touch()
    st(1); st.cyc(5)
    B = [KF, VF]
    def sm_half(S, P, half):
        ops = []
        b0 = 8 * half
        def addcvt(k):
            ops.append(lambda k=k: p.valu(f"v_add_f32 v{LS}, v{LS}, v{S+k}", wr=[LS], rd=[LS, S+k]))
            ops.append(lambda k=k: p.valu(f"v_add_f32 v{LS+1}, v{LS+1}, v{S+k+1}", wr=[LS+1], rd=[LS+1, S+k+1]))
            ops.append(lambda k=k: p.valu(f"v_cvt_pk_bf16_f32 v{P+k//2}, v{S+k}, v{S+k+1}", wr=[P+k//2], rd=[S+k, S+k+1]))
        for i in range(b0, b0 + 8, 2):
            ops.append(lambda i=i: p.trans(f"v_exp_f32 v{S+i}, v{S+i}", wr=[S+i], rd=[S+i]))
            ops.append(lambda i=i: p.trans(f"v_exp_f32 v{S+i+1}, v{S+i+1}", wr=[S+i+1], rd=[S+i+1]))
            if i >= b0 + 2: addcvt(i - 2)
        addcvt(b0 + 6)
        return ops
    def vread(bank, t, n):
        ks2, blk = n >> 2, n & 3
        d = bank + 4 * n
        ks = 2 * t + ks2
        p.ds_read("ds_read_b64_tr_b16", d, 2, aV + blk, off=ks * 4096)
        p.ds_read("ds_read_b64_tr_b16", d + 2, 2, aV + blk, off=ks * 4096 + 2048)
    def spread(ops, slots, i):
        for _ in range(slots[i]):
            if ops: ops.pop(0)()
    def step(first, par):
        KB = B[par]; VB = B[1 - par]
        p.barrier()
        p.reset_tracking()
        if first:
            for j in range(8):
                p.ds_read("ds_read_b128", Q + 4*j, 4, aH, off=QHAND + j * 1024)
        for j in range(8):
            p.ds_read("ds_read_b128", KB + 4*j, 4, aK + j)
        if first:
            p.valu(f"v_mov_b32 v{LS}, 0", wr=[LS]); p.valu(f"v_mov_b32 v{LS+1}, 0", wr=[LS+1])
            sm = []
        else:
            sm = sm_half(S1, P1, 1)
            for _ in range(12): sm.pop(0)()
        for j in range(8):
            if j == 0: p.wait(lgkm=4)
            if j == 4: p.wait(lgkm=4)
            if j == 0:
                if first: p.mfma32(S0, KB, Q, czero=True)
                else: p.mfma32(S0, KB, Q, C=C)
            else:
                p.mfma32(S0, KB + 4*j, Q + 4*j)
            p.ds_read("ds_read_b128", KB + 4*j, 4, aK + j, off=8192)
            spread(sm, [2, 2, 2, 2, 0, 0, 0, 0], j)
        while sm: sm.pop(0)()
        if first:
            p.valu(f"v_max3_f32 v{T}, v{S0}, v{S0+1}, v{S0+2}", wr=[T], rd=[S0, S0+1, S0+2])
            for i in range(3, 15, 2):
                p.valu(f"v_max3_f32 v{T}, v{T}, v{S0+i}, v{S0+i+1}", wr=[T], rd=[T, S0+i, S0+i+1])
            p.valu(f"v_max_f32 v{T}, v{T}, v{S0+15}", wr=[T], rd=[T, S0+15])
            p.valu(f"v_mov_b32 v{T+1}, v{T}", wr=[T+1], rd=[T])
            p.perm(f"v_permlane32_swap_b32 v{T}, v{T+1}", [T, T+1])
            p.valu(f"v_max_f32 v{T}, v{T}, v{T+1}", wr=[T], rd=[T, T+1])
            for i in range(16):
                p.valu(f"v_sub_f32 v{C+i}, 0, v{T}", wr=[C+i], rd=[T])
            for i in range(16):
                p.valu(f"v_sub_f32 v{S0+i}, v{S0+i}, v{T}", wr=[S0+i], rd=[S0+i, T])
        sm = sm_half(S0, P0, 0)
        for n in range(8):
            if n in (2, 5): p.wait(lgkm=(4 if n == 2 else 6))
            if not first:
                p.mfma32(O + 16*(n & 3), VB + 4*n, P1 + 4*(n >> 2))
            vread(VB, 0, n)
            spread(sm, [0, 0, 4, 4, 3, 3, 3, 3], n)
        while sm: sm.pop(0)()
        sm = sm_half(S0, P0, 1)
        for j in range(8):
            if j in (0, 3, 6): p.wait(lgkm=6)
            if j == 0: p.mfma32(S1, KB, Q, C=C)
            else: p.mfma32(S1, KB + 4*j, Q + 4*j)
            vread(KB, 1, j)
            spread(sm, [3, 3, 3, 3, 2, 2, 2, 2], j)
        while sm: sm.pop(0)()
        p.salu("s_add_u32 s35, s35, 1")
        p.salu("s_cmp_eq_u32 s35, 3")
        p.salu("s_cselect_b32 s33, s49, s50")
        p.salu("s_cselect_b32 s35, 0, s35")
        sm = sm_half(S1, P1, 0)
        adv = [(lambda r=r: p.valu(f"v_add_u32 v{r}, s33, v{r}", wr=[r], rd=[r])) for r in list(range(aK, aK+8)) + list(range(aV, aV+4))]
        for n in range(8):
            if first and n < 4: p.mfma32(O + 16*(n & 3), VB + 4*n, P0 + 4*(n >> 2), czero=True)
            else: p.mfma32(O + 16*(n & 3), VB + 4*n, P0 + 4*(n >> 2))
            if n < 2:
                spread(adv, [6, 6], n)
            spread(sm, [0, 0, 4, 4, 3, 3, 3, 3], n)
        while sm: sm.pop(0)()
        p.wait(lgkm=0)
    p.label(f"{name}_Apair")
    step(True, 0)
    p.salu("s_mov_b32 s47, 8")
    p.label(f"{name}_Aloop")
    step(False, 1)
    p.salu("s_cmp_lt_u32 s47, 8")
    p.branch(f"s_cbranch_scc1 {name}_Anw")
    p.raw("    s_waitcnt vmcnt(0)")
    p.label(f"{name}_Anw")
    p.salu("s_sub_u32 s47, s47, 1")
    p.salu("s_cmp_eq_u32 s47, 0")
    p.branch(f"s_cbranch_scc1 {name}_Aepi")
    step(False, 0)
    p.branch(f"s_branch {name}_Aloop")
    p.label(f"{name}_Aepi")
    p.out.append(Ins("s_nop 0", "nop", states=1))
    sm = sm_half(S1, P1, 1)
    while sm: sm.pop(0)()
    for n in range(8):
        p.mfma32(O + 16*(n & 3), B[1] + 4*n, P1 + 4*(n >> 2))
    p.nop(12)
    p.valu(f"v_add_f32 v{LS}, v{LS}, v{LS+1}", wr=[LS], rd=[LS, LS+1])
    p.valu(f"v_mov_b32 v{T}, v{LS}", wr=[T], rd=[LS])
    p.perm(f"v_permlane32_swap_b32 v{LS}, v{T}", [LS, T])
    p.valu(f"v_add_f32 v{LS}, v{LS}, v{T}", wr=[LS], rd=[LS, T])
    p.salu(f"s_mov_b32 s33, {hex(f2u(2.0**30))}")
    p.valu(f"v_cmp_nlt_f32 vcc, v{LS}, s33", rd=[LS], swr=["vcc"]) if False else p.raw(f"    v_cmp_nlt_f32_e64 vcc, v{LS}, s33")
    p.nop(5)
    p.branch(f"s_cbranch_vccnz {name}_Aslow")
    p.label(f"{name}_Anorm")
    p.out.append(Ins("s_nop 0", "nop", states=25))
    p.reset_tracking()
    p.trans(f"v_rcp_f32 v{T}, v{LS}", wr=[T], rd=[LS])
    for blk in range(4):
        for u in range(2):
            for i in range(8):
                r = O + 16*blk + 8*u + i
                p.valu(f"v_mul_f32 v{r}, v{r}, v{T}", wr=[r], rd=[r, T])
            d = S0 + (blk * 2 + u) * 4
            for i in range(4):
                r = O + 16*blk + 8*u + 2*i
                p.valu(f"v_cvt_pk_bf16_f32 v{d+i}, v{r}, v{r+1}", wr=[d+i], rd=[r, r+1])
    p.salu("s_cmp_eq_u32 s46, 1")
    p.branch(f"s_cbranch_scc1 {name}_Afin")
    p.salu(f"s_sub_u32 s33, s34, {64*1024}")
    for u in range(8):
        p.bstore(S0 + 4*u, 4, voO, "s[24:27]", "s33", off=(u >> 1) * 1024 + (u & 1) * 512, tag="ost", flags=STF)
    p.salu("s_mov_b32 s46, 1")
    p.nop(2)
    st(2); st.cyc(6)
    p.branch(f"s_branch {name}_Apair")
    p.label(f"{name}_Afin")
    st(3); st.cyc(7)
    for u in range(8):
        p.bstore(S0 + 4*u, 4, voO, "s[24:27]", "s34", off=(u >> 1) * 1024 + (u & 1) * 512, tag="ost", flags=STF)
    p.raw("    s_waitcnt vmcnt(0)")
    p.barrier()
    st(4)
    srd(p, 16, 58, 256)
    p.salu("s_cmp_lg_u32 s3, 0")
    p.branch(f"s_cbranch_scc1 {name}_nosigB")
    p.valu("v_mov_b32 v228, 0", wr=[228]); p.valu("v_mov_b32 v231, 1", wr=[231])
    p.salu("s_mov_b64 exec, 1")
    p.salu("s_lshl_b32 s33, s7, 2"); p.salu("s_add_u32 s33, s33, 128")
    p.raw("    buffer_atomic_add v231, v228, s[16:19], s33 offen sc1")
    p.salu("s_mov_b64 exec, -1")
    p.label(f"{name}_nosigB")
    for r in range(80): p.valu(f"v_mov_b32 v{64+r}, 0", wr=[64+r])
    p.label(f"{name}_Tail")
    p.out.append(Ins("s_nop 0", "nop", states=25))
    p.reset_tracking()
    ACC = 64; STG = 144; voB = 2; vZ = 6; vP = 8
    srd(p, 24, 44, 0x2000000)
    srd(p, 20, 56, 2048 * 640 * 2)
    out_map()
    p.valu(f"v_mbcnt_lo_u32_b32 v{voB}, -1, 0", wr=[voB])
    p.valu(f"v_mbcnt_hi_u32_b32 v{voB}, -1, v{voB}", wr=[voB], rd=[voB])
    p.valu(f"v_mov_b32 v0, v{voB}", wr=[0], rd=[voB])
    p.valu(f"v_lshlrev_b32 v{voB}, 4, v{voB}", wr=[voB], rd=[voB])
    p.valu(f"v_add_u32 v{voB+1}, 4096, v{voB}", wr=[voB+1], rd=[voB])
    p.valu(f"v_mov_b32 v{vZ}, 0", wr=[vZ])
    p.salu("s_mov_b32 s61, 1")
    p.label(f"{name}_Tround")
    p.reset_tracking()
    p.salu("s_sub_u32 s35, s61, 1"); p.salu("s_lshl_b32 s35, s35, 6"); p.salu("s_lshl_b32 s62, s3, 3"); p.salu("s_add_u32 s62, s62, s35")
    frag_bases("s62")
    p.salu("s_lshr_b32 s51, s4, 1"); p.salu("s_lshl_b32 s51, s51, 2"); p.salu("s_lshl_b32 s33, s61, 6"); p.salu("s_add_u32 s51, s51, s33")
    p.salu("s_cmp_lg_u32 s3, 0")
    p.branch(f"s_cbranch_scc1 {name}_Tgo")
    p.valu(f"v_cmp_eq_u32 vcc, 0, v0", rd=[0], swr=["vcc"])
    p.valu(f"v_mov_b32 v{vZ+1}, s51", wr=[vZ+1])
    p.nop(2)
    p.valu(f"v_cndmask_b32 v{vZ+1}, v{vZ+1}, v{vZ}, vcc", wr=[vZ+1], rd=[vZ+1, vZ])
    p.label(f"{name}_Tpoll")
    p.salu("s_mov_b64 exec, 3")
    p.raw(f"    buffer_load_dword v{vP}, v{vZ+1}, s[16:19], 0 offen sc1")
    p.salu("s_mov_b64 exec, -1")
    p.raw("    s_waitcnt vmcnt(0)")
    p.raw(f"    v_readlane_b32 s33, v{vP}, 0\n    v_readlane_b32 s35, v{vP}, 1\n    s_nop 3")
    p.salu("s_cmp_eq_u32 s33, 256"); p.salu("s_cselect_b32 s60, 1, 0")
    p.salu("s_cmp_eq_u32 s35, 16"); p.salu("s_cselect_b32 s60, s60, 0")
    p.salu("s_cmp_lg_u32 s60, 0")
    p.branch(f"s_cbranch_scc1 {name}_Tgo")
    p.raw(f"    s_sleep {opts.get('tsleep', 16)}")
    p.branch(f"s_branch {name}_Tpoll")
    p.label(f"{name}_Tgo")
    p.barrier()
    st(8)
    p.reset_tracking()
    def issue(i):
        base = STG + (i % 3) * 36
        for nb in range(5):
            p.bload(base + 4*nb, 4, voB + (i >> 2), "s[24:27]", f"s{sAr[nb]}", off=(i & 3) * 1024, tag=f"a{i}", flags=" sc1")
        for q in range(4):
            p.bload(base + 20 + 4*q, 4, voB + (i >> 2), "s[24:27]", f"s{36+q}", off=(i & 3) * 1024, tag=f"b{i}", flags=" sc1")
    issue(0); issue(1)
    for i in range(8):
        base = STG + (i % 3) * 36
        if i + 2 < 8: issue(i + 2)
        for nb in range(5):
            for q in range(4):
                p.mfma16(ACC + (nb*4 + q)*4, base + 4*nb, base + 20 + 4*q)
    if st.on:
        p.raw("    s_cmp_eq_u32 s61, 1\n    s_cbranch_scc0 %s_nst" % name)
        st(11)
        p.label(f"{name}_nst")
    p.salu("s_add_u32 s61, s61, 1")
    p.salu("s_cmp_le_u32 s61, 2")
    p.nop(8)
    p.branch(f"s_cbranch_scc1 {name}_Tround")
    st(9)
    T = 8
    p.salu("s_mul_i32 s33, s3, 20480")
    p.valu(f"v_add_u32 v{T}, s33, v{voB}", wr=[T], rd=[voB])
    for t in range(20):
        p.ds_write("ds_write_b128", T, ACC + 4*t, 4, off=t*1024)
    p.wait(lgkm=0)
    p.barrier()
    p.valu(f"v_and_b32 v{T+1}, 15, v0", wr=[T+1], rd=[0])
    p.valu(f"v_mul_u32_u24 v{T+1}, 1280, v{T+1}", wr=[T+1], rd=[T+1])
    p.valu(f"v_lshrrev_b32 v{T+2}, 4, v0", wr=[T+2], rd=[0])
    p.valu(f"v_lshl_add_u32 v{T+1}, v{T+2}, 3, v{T+1}", wr=[T+1], rd=[T+2, T+1])
    p.salu(f"s_mul_i32 s34, s4, {64*1280}")
    p.salu("s_mul_i32 s33, s5, 160"); p.salu("s_add_u32 s34, s34, s33")
    p.salu("s_lshl_b32 s35, s3, 10")
    p.valu(f"v_add_u32 v{T+3}, s35, v{voB}", wr=[T+3], rd=[voB])
    for rnd in range(3):
        if rnd == 2:
            p.salu("s_cmp_ge_u32 s3, 4")
            p.branch(f"s_cbranch_scc1 {name}_fin")
        p.salu(f"s_add_u32 s40, s3, {8*rnd}")
        p.salu("s_lshr_b32 s41, s40, 2"); p.salu("s_and_b32 s42, s40, 3")
        p.salu("s_lshl_b32 s41, s41, 5")
        p.salu(f"s_mul_i32 s42, s42, {16*1280}")
        p.salu("s_add_u32 s41, s41, s42"); p.salu("s_add_u32 s41, s41, s34")
        for w in range(8):
            off = w * 20480 + rnd * 8192
            if off < 65536:
                p.ds_read("ds_read_b128", ACC + 4*w, 4, T + 3, off=off)
            else:
                p.valu(f"v_add_u32 v{T+4}, {off}, v{T+3}", wr=[T+4], rd=[T+3])
                p.ds_read("ds_read_b128", ACC + 4*w, 4, T + 4)
        for w in range(1, 8):
            for r in range(4):
                p.valu(f"v_add_f32 v{ACC+r}, v{ACC+r}, v{ACC+4*w+r}", wr=[ACC+r], rd=[ACC+r, ACC+4*w+r])
        p.valu(f"v_cvt_pk_bf16_f32 v{ACC+40}, v{ACC}, v{ACC+1}", wr=[ACC+40], rd=[ACC, ACC+1])
        p.valu(f"v_cvt_pk_bf16_f32 v{ACC+41}, v{ACC+2}, v{ACC+3}", wr=[ACC+41], rd=[ACC+2, ACC+3])
        p.bstore(ACC + 40, 2, T + 1, "s[20:23]", "s41")
        p.nop(2)
    p.label(f"{name}_fin")
    if st.on:
        p.raw("    s_waitcnt vmcnt(0)")
        st(10); st.dump("s3")
    p.branch(f"s_branch {name}_done")
    p.label(f"{name}_Aslow")
    p.out.append(Ins("s_nop 0", "nop", states=25))
    p.reset_tracking()
    O = 64; S0 = 128; P0 = 160; KF = 176; VF = 208; Q = 32; LS = 2; T = 4
    M = 5; AL = 6; vK = 7; vV = 8; TM = 9; TN = 10
    srd(p, 8, 38, 0x8000000); srd(p, 12, 40, 0x8000000)
    p.salu("s_lshl_b32 s36, s7, 5"); p.salu("s_add_u32 s36, s36, s6"); p.salu("s_lshl_b32 s33, s46, 4"); p.salu("s_add_u32 s36, s36, s33"); p.salu("s_lshl_b32 s36, s36, 18")
    p.valu(f"v_mbcnt_lo_u32_b32 v{TM}, -1, 0", wr=[TM])
    p.valu(f"v_mbcnt_hi_u32_b32 v{TM}, -1, v{TM}", wr=[TM], rd=[TM])
    p.valu(f"v_and_b32 v{TN}, 31, v{TM}", wr=[TN], rd=[TM])
    p.valu(f"v_lshrrev_b32 v{TM}, 5, v{TM}", wr=[TM], rd=[TM])
    p.valu(f"v_lshlrev_b32 v{vK}, 8, v{TN}", wr=[vK], rd=[TN])
    p.valu(f"v_lshl_add_u32 v{vK}, v{TM}, 4, v{vK}", wr=[vK], rd=[TM, vK])
    p.valu(f"v_lshlrev_b32 v{vV}, 1, v{TN}", wr=[vV], rd=[TN])
    p.valu(f"v_lshl_add_u32 v{vV}, v{TM}, 10, v{vV}", wr=[vV], rd=[TM, vV])
    for r in range(64): p.valu(f"v_mov_b32 v{O+r}, 0", wr=[O+r])
    p.valu(f"v_mov_b32 v{LS}, 0", wr=[LS])
    p.valu(f"v_mov_b32 v{M}, 0xff7fffff", wr=[M])
    p.salu("s_mov_b32 s37, 0")
    p.label(f"{name}_Asl")
    p.reset_tracking()
    for j in range(8): p.bload(KF + 4*j, 4, vK, "s[8:11]", "s36", off=j*32)
    TV = 144
    for ks2 in range(2):
        for bp in range(2):
            for bb in range(2):
                blk = 2*bp + bb
                for i in range(8):
                    key = 16*ks2 + (i if i < 4 else 8 + i - 4)
                    p.salu(f"s_add_u32 s33, s36, {key*256 + blk*64}")
                    p.raw(f"    buffer_load_ushort v{TV + 8*bb + i}, v{vV}, s[12:15], s33 offen")
            p.raw("    s_waitcnt vmcnt(0)")
            for bb in range(2):
                d = VF + (ks2*4 + 2*bp + bb)*4
                for r in range(4):
                    p.valu(f"v_lshl_or_b32 v{d+r}, v{TV+8*bb+2*r+1}, 16, v{TV+8*bb+2*r}", wr=[d+r], rd=[TV+8*bb+2*r+1, TV+8*bb+2*r])
    p.raw("    s_waitcnt vmcnt(0)")
    p.reset_tracking()
    for j in range(8):
        if j == 0: p.mfma32(S0, KF, Q, czero=True)
        else: p.mfma32(S0, KF + 4*j, Q + 4*j)
    p.valu(f"v_max3_f32 v{TM}, v{S0}, v{S0+1}, v{S0+2}", wr=[TM], rd=[S0, S0+1, S0+2])
    for i in range(3, 15, 2): p.valu(f"v_max3_f32 v{TM}, v{TM}, v{S0+i}, v{S0+i+1}", wr=[TM], rd=[TM, S0+i, S0+i+1])
    p.valu(f"v_max_f32 v{TM}, v{TM}, v{S0+15}", wr=[TM], rd=[TM, S0+15])
    p.valu(f"v_mov_b32 v{TN}, v{TM}", wr=[TN], rd=[TM])
    p.perm(f"v_permlane32_swap_b32 v{TM}, v{TN}", [TM, TN])
    p.valu(f"v_max3_f32 v{TM}, v{TM}, v{TN}, v{M}", wr=[TM], rd=[TM, TN, M])
    p.valu(f"v_sub_f32 v{AL}, v{M}, v{TM}", wr=[AL], rd=[M, TM])
    p.trans(f"v_exp_f32 v{AL}, v{AL}", wr=[AL], rd=[AL])
    p.valu(f"v_mov_b32 v{M}, v{TM}", wr=[M], rd=[TM])
    p.valu(f"v_mul_f32 v{LS}, v{LS}, v{AL}", wr=[LS], rd=[LS, AL])
    for r in range(64): p.valu(f"v_mul_f32 v{O+r}, v{O+r}, v{AL}", wr=[O+r], rd=[O+r, AL])
    for i in range(16):
        p.valu(f"v_sub_f32 v{S0+i}, v{S0+i}, v{M}", wr=[S0+i], rd=[S0+i, M])
        p.trans(f"v_exp_f32 v{S0+i}, v{S0+i}", wr=[S0+i], rd=[S0+i])
    for i in range(16): p.valu(f"v_add_f32 v{LS}, v{LS}, v{S0+i}", wr=[LS], rd=[LS, S0+i])
    for i in range(8): p.valu(f"v_cvt_pk_bf16_f32 v{P0+i}, v{S0+2*i}, v{S0+2*i+1}", wr=[P0+i], rd=[S0+2*i, S0+2*i+1])
    for n in range(8): p.mfma32(O + 16*(n & 3), VF + 4*n, P0 + 4*(n >> 2))
    p.nop(16)
    p.salu("s_add_u32 s36, s36, 8192")
    p.salu("s_add_u32 s37, s37, 1")
    p.salu("s_cmp_lt_u32 s37, 32")
    p.branch(f"s_cbranch_scc1 {name}_Asl")
    p.valu(f"v_mov_b32 v{T}, v{LS}", wr=[T], rd=[LS])
    p.perm(f"v_permlane32_swap_b32 v{LS}, v{T}", [LS, T])
    p.valu(f"v_add_f32 v{LS}, v{LS}, v{T}", wr=[LS], rd=[LS, T])
    p.nop(2)
    p.branch(f"s_branch {name}_Anorm")
    p.label(f"{name}_done")
    p.raw("    s_endpgm")
    return p, name

def gen_k2(opts):
    p = Prog()
    name = opts.get("name", "k2_kernel")
    K2F = ["", " nt", " sc1", " sc0 sc1", " sc0"][opts.get("k2nt", 0)]
    st = Stamps(p, opts, key="wgt2")
    p.raw(f".globl {name}\n.p2align 8\n.type {name},@function\n{name}:")
    p.salu("s_cmp_ge_u32 s2, 256")
    p.branch(f"s_cbranch_scc1 {name}_done")
    p.salu("s_load_dwordx2 s[38:39], s[0:1], 40")
    p.salu("s_load_dwordx2 s[44:45], s[0:1], 56")
    p.valu("v_lshrrev_b32 v1, 6, v0", wr=[1], rd=[0])
    p.valu("v_and_b32 v0, 63, v0", wr=[0], rd=[0])
    p.rfl("s3", 1)
    p.salu("s_and_b32 s4, s2, 7")
    p.salu("s_lshr_b32 s5, s2, 3")
    p.salu("s_lshr_b32 s6, s4, 1"); p.salu("s_lshl_b32 s6, s6, 3"); p.salu("s_lshr_b32 s7, s5, 2"); p.salu("s_add_u32 s6, s6, s7")
    p.salu("s_and_b32 s7, s4, 1"); p.salu("s_lshl_b32 s7, s7, 2"); p.salu("s_and_b32 s5, s5, 3"); p.salu("s_add_u32 s7, s7, s5")
    ACC = 64; ST = 144; voB = 2; T = 4
    p.valu(f"v_lshlrev_b32 v{voB}, 4, v0", wr=[voB], rd=[0])
    p.salu("s_lshl_b32 s29, s6, 9"); p.salu("s_lshl_b32 s33, s3, 4"); p.salu("s_add_u32 s29, s29, s33"); p.salu("s_lshl_b32 s29, s29, 10")
    for q in range(4): p.salu(f"s_add_u32 s{48+q}, s29, {q*131072}")
    p.salu("s_mul_i32 s29, s7, 640"); p.salu("s_add_u32 s29, s29, s33"); p.salu("s_lshl_b32 s29, s29, 10")
    for nb in range(5): p.salu(f"s_add_u32 s{52+nb}, s29, {WOT + nb*131072}")
    p.raw("    s_waitcnt lgkmcnt(0)")
    if st.on:
        for k in range(16): p.raw(f"    s_mov_b32 s{70+k}, 0")
    st(0)
    srd(p, 24, 44, 0x2000000)
    srd(p, 12, 38, 2048 * 640 * 2)
    def issue(i):
        base = ST + (i % 3) * 36
        for nb in range(5):
            p.bload(base + 4*nb, 4, voB + (i >> 2), "s[24:27]", f"s{52+nb}", off=(i & 3) * 1024, tag=f"a{i}", flags=K2F)
        for q in range(4):
            p.bload(base + 20 + 4*q, 4, voB + (i >> 2), "s[24:27]", f"s{48+q}", off=(i & 3) * 1024, tag=f"b{i}", flags=K2F)
    for j in range(1, 4): p.valu(f"v_add_u32 v{voB+j}, {4096*j}, v{voB}", wr=[voB+j], rd=[voB])
    issue(0); issue(1)
    for i in range(16):
        p.comment(f"kstep {i}")
        base = ST + (i % 3) * 36
        if i + 2 < 16: issue(i + 2)
        if i == 1: st(1)
        if i == 8: st(2)
        for nb in range(5):
            for q in range(4):
                if i == 0: p.mfma16(ACC + (nb*4 + q)*4, base + 4*nb, base + 20 + 4*q, czero=True)
                else: p.mfma16(ACC + (nb*4 + q)*4, base + 4*nb, base + 20 + 4*q)
    st(3)
    T = 8
    p.salu("s_mul_i32 s33, s3, 20480")
    p.valu(f"v_add_u32 v{T}, s33, v{voB}", wr=[T], rd=[voB])
    for t in range(20):
        p.ds_write("ds_write_b128", T, ACC + 4*t, 4, off=t*1024)
    p.wait(lgkm=0)
    p.barrier()
    p.valu(f"v_and_b32 v{T+1}, 15, v0", wr=[T+1], rd=[0])
    p.valu(f"v_mul_u32_u24 v{T+1}, 1280, v{T+1}", wr=[T+1], rd=[T+1])
    p.valu(f"v_lshrrev_b32 v{T+2}, 4, v0", wr=[T+2], rd=[0])
    p.valu(f"v_lshl_add_u32 v{T+1}, v{T+2}, 3, v{T+1}", wr=[T+1], rd=[T+2, T+1])
    p.salu(f"s_mul_i32 s34, s6, {64*1280}")
    p.salu("s_mul_i32 s33, s7, 160"); p.salu("s_add_u32 s34, s34, s33")
    p.salu("s_lshl_b32 s35, s3, 10")
    p.valu(f"v_add_u32 v{T+3}, s35, v{voB}", wr=[T+3], rd=[voB])
    st(4)
    for rnd in range(3):
        if rnd == 2:
            p.salu("s_cmp_ge_u32 s3, 4")
            p.branch(f"s_cbranch_scc1 {name}_done")
        p.salu(f"s_add_u32 s40, s3, {8*rnd}")
        p.salu("s_lshr_b32 s41, s40, 2"); p.salu("s_and_b32 s42, s40, 3")
        p.salu("s_lshl_b32 s41, s41, 5")
        p.salu(f"s_mul_i32 s42, s42, {16*1280}")
        p.salu("s_add_u32 s41, s41, s42"); p.salu("s_add_u32 s41, s41, s34")
        for w in range(8):
            off = w * 20480 + rnd * 8192
            if off < 65536:
                p.ds_read("ds_read_b128", ACC + 4*w, 4, T + 3, off=off)
            else:
                p.valu(f"v_add_u32 v{T+4}, {off}, v{T+3}", wr=[T+4], rd=[T+3])
                p.ds_read("ds_read_b128", ACC + 4*w, 4, T + 4)
        for w in range(1, 8):
            for r in range(4):
                p.valu(f"v_add_f32 v{ACC+r}, v{ACC+r}, v{ACC+4*w+r}", wr=[ACC+r], rd=[ACC+r, ACC+4*w+r])
        p.valu(f"v_cvt_pk_bf16_f32 v{ACC+40}, v{ACC}, v{ACC+1}", wr=[ACC+40], rd=[ACC, ACC+1])
        p.valu(f"v_cvt_pk_bf16_f32 v{ACC+41}, v{ACC+2}, v{ACC+3}", wr=[ACC+41], rd=[ACC+2, ACC+3])
        p.bstore(ACC + 40, 2, T + 1, "s[12:15]", "s41", flags=["", " nt", " sc1", " sc0 sc1"][opts.get("outf", 0)])
        p.nop(2)
    if st.on:
        p.raw("    s_waitcnt vmcnt(0)")
        st(5); st.dump("s3")
    p.label(f"{name}_done")
    p.raw("    s_endpgm")
    return p, name

def build(path, opts={}):
    KN = "standalone__mha_block_cached__near_ridge_kernel"
    k1, n1 = gen_k1(dict(opts, name=KN))
    hdr = open("standalone__mha_block_cached__near_ridge.s.ref").read().split("; Override")[0]
    o = [hdr.rstrip()]
    o.append("; @launch grid=(256,1,1) block=(512,1,1) lds=163840")
    o.append('.amdgcn_target "amdgcn-amd-amdhsa--gfx950"\n.text')
    o.append(k1.text())
    o.append('.section .rodata,"a"\n.p2align 6')
    o.append(KD.format(name=n1, vgpr=256, sgpr=96, acc=256))
    open(path, "w").write("\n".join(o) + "\n")
    print("nops", k1.nops, "lines", len(k1.out))

if __name__ == "__main__":
    opts = {}
    for a in sys.argv[2:]:
        k, v = a.split("="); opts[k] = int(v)
    build(sys.argv[1], opts)
```

```python
import sys, struct
from fw import *

LOG2E = 1.4426950408889634
QSCALE = LOG2E / (128 ** 0.5)
def f2u(f): return struct.unpack("<I", struct.pack("<f", f))[0]

KVRING = 65536
QHAND = 0
OHAND = 32768
WOT = 0x1800000

def srd(p, dst, ptr, size):
    p.salu(f"s_mov_b32 s{dst}, s{ptr}")
    p.salu(f"s_and_b32 s{dst+1}, s{ptr+1}, 0xffff")
    p.salu(f"s_mov_b32 s{dst+2}, {hex(size)}")
    p.salu(f"s_mov_b32 s{dst+3}, 0x20000")

class Stamps:
    def __init__(s, p, opts, base=0x2000000, key="wgt"): s.p = p; s.on = opts.get(key, 0); s.base = base
    def __call__(s, k):
        if not s.on: return
        s.p.raw(f"    s_memrealtime s[68:69]\n    s_waitcnt lgkmcnt(0)\n    s_mov_b32 s{70+k}, s68")
        s.p.lg = []
    def cyc(s, k):
        if not s.on: return
        s.p.raw(f"    s_memtime s[68:69]\n    s_waitcnt lgkmcnt(0)\n    s_mov_b32 s{70+k}, s68")
        s.p.lg = []
    def dump(s, wavereg):
        if not s.on: return
        t = """    s_waitcnt vmcnt(0)
    s_mov_b32 s60, s44
    s_and_b32 s61, s45, 0xffff
    s_mov_b32 s62, 0x4000000
    s_mov_b32 s63, 0x20000
    s_lshl_b32 s64, s2, 3
    s_add_u32 s64, s64, %s
    s_lshl_b32 s64, s64, 6
    s_add_u32 s64, s64, %s
    v_mov_b32 v20, 0
""" % (wavereg, hex(s.base))
        for q in range(4):
            for i in range(4): t += f"    v_mov_b32 v{16+i}, s{70+4*q+i}\n"
            t += f"    s_nop 1\n    buffer_store_dwordx4 v[16:19], v20, s[60:63], s64 offen offset:{16*q}\n    s_nop 2\n"
        s.p.raw(t + "    s_waitcnt vmcnt(0)")

def gen_k1(opts):
    p = Prog()
    st = Stamps(p, opts)
    NT = " nt"
    WN = [" nt" if opts.get("wnt0", 1) else "", " nt" if opts.get("wnt1", 0) else ""]
    XNT = " nt" if opts.get("xnt", 1) else ""
    cur = [0]
    STF = ["", " nt", " sc1", " sc0 sc1", " sc1 nt", " sc0 sc1 nt"][opts.get("stnt", 3)]
    name = opts.get("name", "k1_kernel")
    p.raw(f".globl {name}\n.p2align 8\n.type {name},@function\n{name}:")
    p.salu("s_cmp_ge_u32 s2, 256")
    p.branch(f"s_cbranch_scc1 {name}_done")
    p.salu("s_load_dwordx8 s[36:43], s[0:1], 0")
    p.salu("s_load_dwordx2 s[44:45], s[0:1], 56")
    p.salu("s_load_dwordx2 s[52:53], s[0:1], 32")
    p.salu("s_load_dwordx4 s[56:59], s[0:1], 40")
    p.valu("v_lshrrev_b32 v1, 6, v0", wr=[1], rd=[0])
    p.valu("v_and_b32 v0, 63, v0", wr=[0], rd=[0])
    p.rfl("s3", 1)
    p.salu("s_and_b32 s4, s2, 7")
    p.salu("s_lshr_b32 s5, s2, 3")
    mp = opts.get("map", 2)
    if mp == 0:
        p.salu("s_lshr_b32 s6, s4, 1"); p.salu("s_lshl_b32 s6, s6, 2"); p.salu("s_and_b32 s7, s5, 3"); p.salu("s_add_u32 s6, s6, s7")
        p.salu("s_and_b32 s7, s4, 1"); p.salu("s_lshl_b32 s7, s7, 3"); p.salu("s_lshr_b32 s5, s5, 2"); p.salu("s_add_u32 s7, s7, s5")
    elif mp == 1:
        p.salu("s_and_b32 s6, s5, 15"); p.salu("s_lshl_b32 s7, s4, 1"); p.salu("s_lshr_b32 s5, s5, 4"); p.salu("s_add_u32 s7, s7, s5")
    elif mp == 2:
        p.salu("s_and_b32 s6, s4, 1"); p.salu("s_lshl_b32 s6, s6, 3"); p.salu("s_and_b32 s7, s5, 7"); p.salu("s_add_u32 s6, s6, s7")
        p.salu("s_lshr_b32 s7, s4, 1"); p.salu("s_lshl_b32 s7, s7, 2"); p.salu("s_lshr_b32 s5, s5, 3"); p.salu("s_add_u32 s7, s7, s5")
    if st.on:
        for k in range(16): p.raw(f"    s_mov_b32 s{70+k}, 0")
    p.raw("    s_waitcnt lgkmcnt(0)")
    st(0)
    p.salu("s_cmp_lt_u32 s3, 4")
    p.branch(f"s_cbranch_scc1 {name}_A")

    QA = 0; XR = 64; WF = 224; voW = 240; aW = 241; voK = 245; voV = 249; voX = 250; aXlo = 252; aWhi = 192; aXhi = 196
    T = 4
    srd(p, 16, 42, 640 * 4096 * 2)
    srd(p, 20, 36, 16 * 128 * 640 * 2)
    p.salu("s_sub_u32 s3, s3, 4")
    p.valu(f"v_lshrrev_b32 v{T}, 4, v0", wr=[T], rd=[0])
    p.valu(f"v_and_b32 v{T+1}, 15, v0", wr=[T+1], rd=[0])
    p.valu(f"v_lshlrev_b32 v{T+2}, 2, v{T}", wr=[T+2], rd=[T])
    p.valu(f"v_xor_b32 v{T+2}, v{T+2}, v{T+1}", wr=[T+2], rd=[T+2, T+1])
    p.valu(f"v_lshlrev_b32 v{T+2}, 4, v{T+2}", wr=[T+2], rd=[T+2])
    p.valu(f"v_lshl_add_u32 v{voW}, v{T}, 13, v{T+2}", wr=[voW], rd=[T, T+2])
    p.valu(f"v_lshl_add_u32 v{voV}, v{T}, 8, v{T+2}", wr=[voV], rd=[T, T+2])
    p.valu(f"v_lshrrev_b32 v{T+2}, 3, v0", wr=[T+2], rd=[0])
    p.valu(f"v_mul_u32_u24 v{T+2}, 1280, v{T+2}", wr=[T+2], rd=[T+2])
    p.valu(f"v_and_b32 v{T+3}, 7, v0", wr=[T+3], rd=[0])
    for e in range(2):
        p.valu(f"v_add_u32 v{T+4}, {4*e}, v{T}", wr=[T+4], rd=[T])
        p.valu(f"v_xor_b32 v{T+4}, v{T+4}, v{T+3}", wr=[T+4], rd=[T+4, T+3])
        p.valu(f"v_lshl_add_u32 v{voX+e}, v{T+4}, 4, v{T+2}", wr=[voX+e], rd=[T+4, T+2])
    p.salu("s_lshl_b32 s28, s3, 17")
    p.salu("s_lshl_b32 s33, s6, 8")
    p.salu("s_add_u32 s28, s28, s33")
    p.salu("s_mul_i32 s29, s7, 163840")
    p.salu(f"s_mul_i32 s33, s3, {32*1280}")
    p.salu("s_add_u32 s29, s29, s33")
    p.salu("s_lshl_b32 s30, s3, 12")
    slots0 = [0, 32768, KVRING + 32768, KVRING + 65536]
    def w_ops(j, slotbase):
        ops = []
        if opts.get("nopld"): return ops
        def f(i):
            p.salu(f"s_add_u32 m0, s30, {slotbase + i*1024}", swr=["m0"])
            p.salu(f"s_add_u32 s33, s28, {(64*j + 4*i) * 8192}")
            p.dma(voW, "s[16:19]", "s33", tag=f"w{j}", flags=WN[cur[0]])
        for i in range(4): ops.append(lambda i=i: f(i))
        return ops
    def x_ops(j, slotbase):
        ops = []
        if opts.get("nopld"): return ops
        def f(i):
            p.salu(f"s_add_u32 m0, s30, {slotbase + 16384 + i*1024}", swr=["m0"])
            p.salu(f"s_add_u32 s33, s29, {j*128 + i*10240}")
            p.dma(voX + (i & 1), "s[20:23]", "s33", tag=f"x{j}", flags=XNT)
        for i in range(4): ops.append(lambda i=i: f(i))
        return ops
    npre = opts.get("npre", 3)
    for j in range(npre):
        for o in w_ops(j, slots0[j]) + x_ops(j, slots0[j]): o()
    srd(p, 8, 38, 0x8000000)
    srd(p, 12, 40, 0x8000000)
    srd(p, 24, 44, 0x2000000)
    for i in range(4):
        p.valu(f"v_add_u32 v{T+2}, {4*i}, v{T}", wr=[T+2], rd=[T])
        p.valu(f"v_xor_b32 v{T+2}, v{T+2}, v{T+1}", wr=[T+2], rd=[T+2, T+1])
        p.valu(f"v_lshlrev_b32 v{T+2}, 4, v{T+2}", wr=[T+2], rd=[T+2])
        p.valu(f"v_lshl_add_u32 v{voK+i}, v{T}, 8, v{T+2}", wr=[voK+i], rd=[T, T+2])
    p.salu("s_lshl_b32 s31, s7, 5")
    p.salu("s_add_u32 s31, s31, s6")
    p.salu("s_lshl_b32 s31, s31, 18")
    p.salu("s_add_u32 s31, s31, s30")
    p.salu(f"s_add_u32 s32, s30, {KVRING}")
    p.salu("s_mov_b32 s34, 0")
    kvn = [0]
    def kv_ops(tag=None):
        ops = []
        tg = tag if tag else f"kv{kvn[0]}"
        kvn[0] += 1
        def k(i):
            if i == 0: p.salu("s_mov_b32 m0, s32", swr=["m0"])
            if not opts.get("nokv"): p.dma(voK + i, "s[8:11]", "s31", off=i * 1024, flags=NT, tag=tg)
        def v(i):
            if i == 0: p.salu("s_add_u32 m0, s32, 16384", swr=["m0"])
            if not opts.get("nokv"): p.dma(voV, "s[12:15]", "s31", off=i * 1024, flags=NT, tag=tg)
            if i == 3:
                p.salu("s_add_u32 s31, s31, 16384")
                p.salu("s_add_u32 s34, s34, 1")
                p.salu("s_cmp_eq_u32 s34, 16")
                p.salu(f"s_cselect_b32 s33, {hex(15 * 262144)}, 0")
                p.salu("s_add_u32 s31, s31, s33")
                p.salu("s_cmp_ge_u32 s34, 32")
                p.salu("s_cselect_b32 s31, 0x8000000, s31")
                p.salu("s_add_u32 s32, s32, 32768")
                p.salu(f"s_cmp_ge_u32 s32, {KVRING + 3*32768}")
                p.salu("s_cselect_b32 s33, 98304, 0")
                p.salu("s_sub_u32 s32, s32, s33")
        for i in range(4): ops.append(lambda i=i: k(i))
        for i in range(4): ops.append(lambda i=i: v(i))
        return ops
    def run(ops):
        for o in ops: o()
    if not opts.get("kv0late"): run(kv_ops())
    L = 0
    p.valu(f"v_lshrrev_b32 v{T+2}, 5, v{L}", wr=[T+2], rd=[L])
    p.valu(f"v_bfe_u32 v{T+4}, v{L}, 2, 2", wr=[T+4], rd=[L])
    p.valu(f"v_lshl_add_u32 v{T+5}, v{T+2}, 3, v{T+4}", wr=[T+5], rd=[T+2, T+4])
    p.valu(f"v_lshlrev_b32 v{T+5}, 8, v{T+5}", wr=[T+5], rd=[T+5])
    p.valu(f"v_bfe_u32 v{T+6}, v{L}, 4, 1", wr=[T+6], rd=[L])
    p.valu(f"v_lshl_add_u32 v{T+5}, v{T+6}, 5, v{T+5}", wr=[T+5], rd=[T+6, T+5])
    p.valu(f"v_and_b32 v{T+6}, 1, v{L}", wr=[T+6], rd=[L])
    p.valu(f"v_lshl_add_u32 v{T+5}, v{T+6}, 4, v{T+5}", wr=[T+5], rd=[T+6, T+5])
    p.valu(f"v_bfe_u32 v{T+6}, v{L}, 1, 1", wr=[T+6], rd=[L])
    p.valu(f"v_lshl_add_u32 v{T+5}, v{T+6}, 3, v{T+5}", wr=[T+5], rd=[T+6, T+5])
    for b in range(4):
        p.valu(f"v_xor_b32 v{T+6}, {b}, v{T+4}", wr=[T+6], rd=[T+4])
        p.valu(f"v_lshl_add_u32 v{aW+b}, v{T+6}, 6, v{T+5}", wr=[aW+b], rd=[T+6, T+5])
        p.valu(f"v_add_u32 v{aWhi+b}, {KVRING+32768}, v{aW+b}", wr=[aWhi+b], rd=[aW+b])
    p.valu(f"v_and_b32 v{T+4}, 31, v{L}", wr=[T+4], rd=[L])
    p.valu(f"v_bfe_u32 v{T+5}, v{L}, 1, 3", wr=[T+5], rd=[L])
    p.valu(f"v_xor_b32 v{T+5}, v{T+5}, v{T+2}", wr=[T+5], rd=[T+5, T+2])
    p.valu(f"v_lshlrev_b32 v{T+5}, 4, v{T+5}", wr=[T+5], rd=[T+5])
    p.valu(f"v_lshl_add_u32 v{T+5}, v{T+4}, 7, v{T+5}", wr=[T+5], rd=[T+4, T+5])
    p.salu("s_add_u32 s33, s30, 16384")
    p.valu(f"v_add_u32 v{T+5}, s33, v{T+5}", wr=[T+5], rd=[T+5])
    for ks in range(4):
        p.valu(f"v_xor_b32 v{aXlo+ks}, {ks*32}, v{T+5}", wr=[aXlo+ks], rd=[T+5])
        p.valu(f"v_add_u32 v{aXhi+ks}, {KVRING+32768}, v{aXlo+ks}", wr=[aXhi+ks], rd=[aXlo+ks])
    p.salu(f"s_mov_b32 s48, {hex(f2u(QSCALE))}")
    def qstep(j, slotbase, groups, xload):
        hi = slotbase >= KVRING
        off0 = slotbase - (KVRING + 32768 if hi else 0)
        aw = aWhi if hi else aW
        ax = aXhi if hi else aXlo
        def wread(ks, blk):
            d = WF + blk * 4
            p.ds_read("ds_read_b64_tr_b16", d, 2, aw + blk, off=off0 + ks*4096)
            p.ds_read("ds_read_b64_tr_b16", d + 2, 2, aw + blk, off=off0 + ks*4096 + 1024)
        X = XR + 16 * j
        if xload: p.ds_read("ds_read_b128", X, 4, ax, off=off0)
        for blk in range(4): wread(0, blk)
        if xload:
            for ks in range(1, 4):
                p.ds_read("ds_read_b128", X + 4*ks, 4, ax + ks, off=off0)
        ops = [o for g in groups for o in g]
        n = len(ops); k = 0
        for ks in range(4):
            for blk in range(4):
                if blk % 2 == 0:
                    pass
                if j == 0 and ks == 0: p.mfma32(QA + 16*blk, WF + blk*4, X, czero=True)
                else: p.mfma32(QA + 16*blk, WF + blk*4, X + ks*4)
                if ks + 1 < 4: wread(ks + 1, blk)
                idx = ks * 4 + blk
                tgt = -(-(idx + 1) * n // 16)
                while k < min(n, tgt):
                    ops[k](); k += 1
        while k < n: ops[k](); k += 1
    def lane_addr(dst, base_s_text):
        p.valu(f"v_mbcnt_lo_u32_b32 v{dst}, -1, 0", wr=[dst])
        p.valu(f"v_mbcnt_hi_u32_b32 v{dst}, -1, v{dst}", wr=[dst], rd=[dst])
        p.valu(f"v_lshlrev_b32 v{dst}, 4, v{dst}", wr=[dst], rd=[dst])
        p.valu(f"v_add_u32 v{dst}, s33, v{dst}", wr=[dst], rd=[dst])
    def qconvert():
        aHW = WF
        p.salu("s_lshl_b32 s33, s3, 13")
        p.salu(f"s_add_u32 s33, s33, {QHAND}")
        lane_addr(aHW, None)
        for blk in range(4):
            for u in range(2):
                base = QA + 16*blk + 8*u
                for i in range(8):
                    p.valu(f"v_mul_f32 v{base+i}, s48, v{base+i}", wr=[base+i], rd=[base+i])
                for i in range(4):
                    p.valu(f"v_cvt_pk_bf16_f32 v{base+i}, v{base+2*i}, v{base+2*i+1}", wr=[base+i], rd=[base+2*i, base+2*i+1])
                p.ds_write("ds_write_b128", aHW, base, 4, off=(blk*2 + u) * 1024)
        p.wait(lgkm=0)
    for j in range(10):
        p.comment(f"P pass0 step {j}")
        p.wait_tag(f"x{j}")
        p.barrier()
        if j == 0: st(1)
        if opts.get("headst"): st(6 + j)
        groups = []
        if j + 3 < 10 and j + 3 >= npre: groups += [w_ops(j + 3, slots0[(j + 3) % 4]), x_ops(j + 3, slots0[(j + 3) % 4])]
        if j in (7, 8) or (opts.get("kv0late") and j == opts.get("kv0late")): groups += [kv_ops()]
        qstep(j, slots0[j % 4], groups, True)
    st(2)
    qconvert()
    p.wait_tag("kv0")
    st(3)
    cur[0] = 1
    ACC = 64
    stage = [[144 + 4*i for i in range(18)], [4*i for i in range(16)] + [216, 220]]
    voB = 224; vZ = 228; vP = 229; vOne = 231; vPo = 232
    def out_map():
        p.salu("s_and_b32 s4, s2, 7"); p.salu("s_lshr_b32 s5, s2, 3")
        p.salu("s_lshr_b32 s33, s4, 1"); p.salu("s_lshl_b32 s33, s33, 3"); p.salu("s_lshr_b32 s35, s5, 2"); p.salu("s_add_u32 s33, s33, s35")
        p.salu("s_and_b32 s4, s4, 1"); p.salu("s_lshl_b32 s4, s4, 2"); p.salu("s_and_b32 s5, s5, 3"); p.salu("s_add_u32 s5, s4, s5")
        p.salu("s_mov_b32 s4, s33")
    def frag_bases(kstep0_reg):
        p.salu("s_lshl_b32 s33, s4, 9"); p.salu(f"s_add_u32 s33, s33, {kstep0_reg}"); p.salu("s_lshl_b32 s33, s33, 10")
        for q in range(4): p.salu(f"s_add_u32 s{36+q}, s33, {q*131072}")
        p.salu("s_mul_i32 s33, s5, 640"); p.salu(f"s_add_u32 s33, s33, {kstep0_reg}"); p.salu("s_lshl_b32 s33, s33, 10")
        for nb in range(5): p.salu(f"s_add_u32 s{sAr[nb]}, s33, {WOT + nb*131072}")
    sAr = [40, 41, 42, 43, 46]
    LDF = " sc1"
    def sig(off_ops):
        p.salu("s_cmp_lg_u32 s3, 0")
        lb = f"{name}_ns{len(p.out)}"
        p.branch(f"s_cbranch_scc1 {lb}")
        for o in off_ops: p.salu(o)
        p.salu("s_mov_b64 exec, 1")
        p.raw(f"    buffer_atomic_add v{vOne}, v{vZ}, s[16:19], s33 offen sc1")
        p.salu("s_mov_b64 exec, -1")
        p.label(lb)
    def signal_w():
        srd(p, 16, 58, 256)
        p.valu(f"v_mov_b32 v{vZ}, 0", wr=[vZ]); p.valu(f"v_mov_b32 v{vOne}, 1", wr=[vOne])
        sig(["s_mov_b32 s33, 0"])
    def signal_and_setup():
        sig(["s_lshl_b32 s33, s7, 2", "s_add_u32 s33, s33, 64"])
        for r in range(80): p.valu(f"v_mov_b32 v{ACC+r}, 0", wr=[ACC+r])
    def poll_issue():
        p.salu("s_mov_b64 exec, 3")
        p.raw(f"    buffer_load_dword v{vP}, v{vPo}, s[16:19], 0 offen sc1")
        p.salu("s_mov_b64 exec, -1")
    def poll_check(dst):
        p.raw(f"    v_readlane_b32 s33, v{vP}, 0\n    v_readlane_b32 s35, v{vP}, 1\n    s_nop 3")
        p.salu("s_cmp_eq_u32 s33, 256"); p.salu("s_cselect_b32 s33, 1, 0")
        p.salu("s_cmp_eq_u32 s35, 16"); p.salu(f"s_cselect_b32 {dst}, s33, 0")
    def o1_issue(par):
        st_ = stage[par]
        for kk in range(2):
            for nb in range(5):
                p.bload(st_[kk*9 + nb], 4, voB, "s[24:27]", f"s{sAr[nb]}", off=kk*1024, flags=LDF)
            for q in range(4):
                p.bload(st_[kk*9 + 5 + q], 4, voB, "s[24:27]", f"s{36+q}", off=kk*1024, flags=LDF)
        for r in sAr + [36, 37, 38, 39]: p.salu(f"s_add_u32 s{r}, s{r}, 2048")
    def o1_compute(par):
        st_ = stage[par]
        p.out.append(Ins("s_nop 0", "nop", states=25))
        for kk in range(2):
            for nb in range(5):
                for q in range(4):
                    p.mfma16(ACC + (nb*4 + q)*4, st_[kk*9 + nb], st_[kk*9 + 5 + q])
    def ohand_store():
        p.comment("O handoff store")
        aO = WF; voO = WF + 1
        p.salu("s_lshl_b32 s33, s3, 13"); p.salu(f"s_add_u32 s33, s33, {OHAND}")
        lane_addr(aO, None)
        for u in range(8): p.ds_read("ds_read_b128", XR + 4*u, 4, aO, off=u * 1024)
        p.valu(f"v_mbcnt_lo_u32_b32 v{voO+1}, -1, 0", wr=[voO+1])
        p.valu(f"v_mbcnt_hi_u32_b32 v{voO+1}, -1, v{voO+1}", wr=[voO+1], rd=[voO+1])
        p.valu(f"v_bfe_u32 v{voO}, v{voO+1}, 4, 1", wr=[voO], rd=[voO+1])
        p.valu(f"v_lshlrev_b32 v{voO}, 17, v{voO}", wr=[voO], rd=[voO])
        p.valu(f"v_and_b32 v{voO+2}, 15, v{voO+1}", wr=[voO+2], rd=[voO+1])
        p.valu(f"v_lshl_add_u32 v{voO}, v{voO+2}, 4, v{voO}", wr=[voO], rd=[voO+2, voO])
        p.valu(f"v_lshrrev_b32 v{voO+2}, 5, v{voO+1}", wr=[voO+2], rd=[voO+1])
        p.valu(f"v_lshl_add_u32 v{voO}, v{voO+2}, 8, v{voO}", wr=[voO], rd=[voO+2, voO])
        p.salu("s_lshl_b32 s35, s7, 3"); p.salu("s_lshl_b32 s33, s3, 1"); p.salu("s_add_u32 s35, s35, s33")
        p.salu("s_lshl_b32 s35, s35, 7"); p.salu("s_lshl_b32 s33, s6, 2"); p.salu("s_add_u32 s35, s35, s33"); p.salu("s_lshl_b32 s35, s35, 10")
        for u in range(8):
            if not opts.get("nost"): p.bstore(XR + 4*u, 4, voO, "s[24:27]", "s35", off=(u >> 1) * 1024 + (u & 1) * 512, tag="ost", flags=STF)
    def wot_issue():
        srd(p, 16, 52, 4096 * 640 * 2)
        Tm = XR
        p.valu(f"v_mbcnt_lo_u32_b32 v{Tm+8}, -1, 0", wr=[Tm+8])
        p.valu(f"v_mbcnt_hi_u32_b32 v{Tm+8}, -1, v{Tm+8}", wr=[Tm+8], rd=[Tm+8])
        p.salu("s_mov_b32 s33, 0x1999999a")
        for i in range(5):
            p.valu(f"v_add_u32 v{Tm+5}, {64*i}, v{Tm+8}", wr=[Tm+5], rd=[Tm+8])
            p.valu(f"v_mul_hi_u32 v{Tm+6}, v{Tm+5}, s33", wr=[Tm+6], rd=[Tm+5])
            p.valu(f"v_mul_u32_u24 v{Tm+7}, 10, v{Tm+6}", wr=[Tm+7], rd=[Tm+6])
            p.valu(f"v_sub_u32 v{Tm+7}, v{Tm+5}, v{Tm+7}", wr=[Tm+7], rd=[Tm+5, Tm+7])
            p.valu(f"v_mul_u32_u24 v{Tm+6}, 1280, v{Tm+6}", wr=[Tm+6], rd=[Tm+6])
            p.valu(f"v_lshl_add_u32 v{Tm+i}, v{Tm+7}, 4, v{Tm+6}", wr=[Tm+i], rd=[Tm+7, Tm+6])
        p.salu("s_lshr_b32 s35, s2, 1"); p.salu(f"s_mul_i32 s35, s35, {32*1280}")
        p.salu("s_and_b32 s33, s2, 1"); p.salu("s_mul_i32 s33, s33, 640"); p.salu("s_add_u32 s35, s35, s33")
        p.salu("s_mul_i32 s33, s3, 160"); p.salu("s_add_u32 s35, s35, s33")
        p.salu("s_mul_i32 s51, s3, 5120"); p.salu(f"s_add_u32 s51, s51, {OHAND}")
        for k in range(5):
            p.salu(f"s_add_u32 m0, s51, {k*1024}", swr=["m0"])
            p.dma(Tm + k, "s[16:19]", "s35", tag="wot", flags=" nt")
    def wot_store():
        Tm = XR
        p.wait_tag("wot")
        L = Tm + 8
        p.valu(f"v_lshrrev_b32 v{Tm}, 5, v{L}", wr=[Tm], rd=[L])
        p.valu(f"v_bfe_u32 v{Tm+1}, v{L}, 4, 1", wr=[Tm+1], rd=[L])
        p.valu(f"v_bfe_u32 v{Tm+2}, v{L}, 2, 2", wr=[Tm+2], rd=[L])
        p.valu(f"v_lshl_add_u32 v{Tm+2}, v{Tm+1}, 2, v{Tm+2}", wr=[Tm+2], rd=[Tm+1, Tm+2])
        p.valu(f"v_lshl_add_u32 v{Tm+2}, v{Tm}, 4, v{Tm+2}", wr=[Tm+2], rd=[Tm, Tm+2])
        p.valu(f"v_mul_u32_u24 v{Tm+2}, 160, v{Tm+2}", wr=[Tm+2], rd=[Tm+2])
        p.valu(f"v_and_b32 v{Tm+1}, 3, v{L}", wr=[Tm+1], rd=[L])
        p.valu(f"v_lshl_add_u32 v{Tm+2}, v{Tm+1}, 3, v{Tm+2}", wr=[Tm+2], rd=[Tm+1, Tm+2])
        p.valu(f"v_add_u32 v{Tm+2}, s51, v{Tm+2}", wr=[Tm+2], rd=[Tm+2])
        for nb in range(5):
            d = Tm + 16 + nb*4
            p.ds_read("ds_read_b64_tr_b16", d, 2, Tm + 2, off=nb*32)
            p.ds_read("ds_read_b64_tr_b16", d + 2, 2, Tm + 2, off=nb*32 + 1280)
        p.valu(f"v_lshlrev_b32 v{Tm+3}, 4, v{L}", wr=[Tm+3], rd=[L])
        p.salu("s_and_b32 s33, s2, 1"); p.salu("s_mul_i32 s33, s33, 20"); p.salu("s_mul_i32 s35, s3, 5"); p.salu("s_add_u32 s33, s33, s35")
        p.salu("s_lshl_b32 s33, s33, 7"); p.salu("s_lshr_b32 s35, s2, 1"); p.salu("s_add_u32 s33, s33, s35"); p.salu("s_lshl_b32 s33, s33, 10")
        p.salu(f"s_add_u32 s35, s33, {hex(WOT)}")
        for nb in range(5):
            p.salu(f"s_add_u32 s33, s35, {nb*131072}")
            p.bstore(Tm + 16 + nb*4, 4, Tm + 3, "s[24:27]", "s33", tag="wotst", flags=STF)
    for t in range(19):
        p.comment(f"P step t={t}")
        p.barrier()
        if t in (16, 17): st({16: 6, 17: 7}[t])
        groups = []
        if t == 13: wot_issue()
        if t == 14: wot_store()
        if t == 16: signal_w()
        if t == 18: signal_and_setup()
        if t >= 1: groups.append(kv_ops())
        j = t - 2
        if t == 1:
            p.salu(f"s_add_u32 s28, s28, {16*256}")
            groups += [w_ops(jj, jj * 16384) for jj in range(3)]
        if 0 <= j < 10:
            if j + 3 < 10: groups.append(w_ops(j + 3, ((j + 3) % 4) * 16384))
            qstep(j, (j % 4) * 16384, groups, False)
        else:
            for g in groups: run(g)
        if t == 12: qconvert()
        p.wait_tag(f"kv{t+1}")
        if 0 <= t - 1 < 10: p.wait_tag(f"w{t-1}")
    st(4)
    st(4)
    p.salu("s_mov_b32 s47, 19")
    p.label(f"{name}_Ploop")
    p.barrier()
    p.reset_tracking()
    run(kv_ops("kvn"))
    p.raw("    s_waitcnt vmcnt(8)")
    p.salu("s_add_u32 s47, s47, 1")
    p.salu("s_cmp_lt_u32 s47, 30")
    p.branch(f"s_cbranch_scc1 {name}_Ploop")
    p.barrier()
    p.reset_tracking()
    out_map()
    p.salu("s_lshr_b32 s51, s4, 1"); p.salu("s_lshl_b32 s51, s51, 2"); p.salu("s_add_u32 s51, s51, 64")
    p.valu(f"v_mbcnt_lo_u32_b32 v{vPo+1}, -1, 0", wr=[vPo+1])
    p.valu(f"v_mbcnt_hi_u32_b32 v{vPo+1}, -1, v{vPo+1}", wr=[vPo+1], rd=[vPo+1])
    p.valu(f"v_cmp_eq_u32 vcc, 0, v{vPo+1}", rd=[vPo+1], swr=["vcc"])
    p.valu(f"v_mov_b32 v{vPo}, s51", wr=[vPo])
    p.nop(2)
    p.valu(f"v_cndmask_b32 v{vPo}, v{vPo}, v{vZ}, vcc", wr=[vPo], rd=[vPo, vZ])
    p.salu("s_cmp_lg_u32 s3, 0")
    p.branch(f"s_cbranch_scc1 {name}_np30")
    poll_issue()
    p.label(f"{name}_np30")
    p.raw("    s_waitcnt vmcnt(1)")
    p.raw("    s_cmp_eq_u32 s3, 0\n    s_cbranch_scc1 %s_w30\n    s_waitcnt vmcnt(0)\n%s_w30:" % (name, name))
    p.barrier()
    p.raw("    s_waitcnt vmcnt(0)")
    p.salu("s_cmp_lg_u32 s3, 0")
    p.branch(f"s_cbranch_scc1 {name}_np31")
    poll_check("s35")
    p.raw(f"    v_mov_b32 v{vP+1}, s35\n    ds_write_b32 v{vZ}, v{vP+1}\n    s_waitcnt lgkmcnt(0)")
    p.label(f"{name}_np31")
    st(5)
    p.raw("    s_waitcnt vmcnt(0)")
    p.barrier()
    p.salu("s_add_u32 s3, s3, 4")
    p.branch(f"s_branch {name}_Tail")

    p.label(f"{name}_A")
    p.out.append(Ins("s_nop 4", "nop", states=25))
    p.reset_tracking()
    O = 64; S0 = 128; S1 = 144; P0 = 160; P1 = 168; KF = 176; VF = 208; Q = 32; C = 16
    aK = 240; aV = 248; LS = 2; T = 4; aH = 14; voO = 15; aOH = 1
    def a_touch():
        TF = " nt"
        D = 200
        k0 = opts.get("touchk0", 4)
        nrow = (10 - k0) * 64
        q = nrow // 4
        srd(p, 16, 42, 640 * 4096 * 2); srd(p, 20, 36, 16 * 128 * 640 * 2)
        ninst = -(-2*q // 64)
        p.salu("s_lshr_b32 s33, s2, 6"); p.salu(f"s_mul_i32 s33, s33, {q}"); p.salu(f"s_add_u32 s33, s33, {k0*64}")
        p.salu("s_lshl_b32 s28, s3, 5"); p.salu("s_add_u32 s33, s33, s28"); p.salu("s_lshl_b32 s33, s33, 13")
        p.salu("s_lshl_b32 s28, s6, 8"); p.salu("s_add_u32 s33, s33, s28")
        p.valu(f"v_lshrrev_b32 v{T}, 1, v0", wr=[T], rd=[0])
        p.valu(f"v_lshlrev_b32 v{T}, 13, v{T}", wr=[T], rd=[T])
        p.valu(f"v_and_b32 v{T+1}, 1, v0", wr=[T+1], rd=[0])
        p.valu(f"v_lshl_add_u32 v{T}, v{T+1}, 7, v{T}", wr=[T], rd=[T+1, T])
        p.bload(D, 1, T, "s[16:19]", "s33", flags=TF)
        if ninst > 4:
            p.salu(f"s_add_u32 s33, s33, {128 << 13}")
            p.bload(D + 1, 1, T, "s[16:19]", "s33", flags=TF)
        p.salu("s_lshr_b32 s33, s2, 3"); p.salu("s_and_b32 s33, s33, 7"); p.salu("s_lshl_b32 s33, s33, 4")
        p.salu("s_lshl_b32 s28, s3, 3"); p.salu("s_add_u32 s33, s33, s28"); p.salu("s_mul_i32 s33, s33, 1280")
        p.salu("s_mul_i32 s28, s7, 163840"); p.salu("s_add_u32 s33, s33, s28"); p.salu(f"s_add_u32 s33, s33, {k0*128}")
        p.salu("s_cmp_ge_u32 s3, 2"); p.salu("s_cselect_b32 s33, 0x8000000, s33")
        p.valu(f"v_lshrrev_b32 v{T}, 3, v0", wr=[T], rd=[0])
        p.valu(f"v_mul_u32_u24 v{T}, 1280, v{T}", wr=[T], rd=[T])
        p.valu(f"v_and_b32 v{T+1}, 7, v0", wr=[T+1], rd=[0])
        p.valu(f"v_lshl_add_u32 v{T}, v{T+1}, 7, v{T}", wr=[T], rd=[T+1, T])
        p.bload(D + 2, 1, T, "s[20:23]", "s33", flags=TF)
        p.reset_tracking()
    srd(p, 24, 44, 128 * 128 * 1024)
    p.valu(f"v_and_b32 v{T+1}, 15, v0", wr=[T+1], rd=[0])
    p.valu(f"v_and_b32 v{T}, 31, v0", wr=[T], rd=[0])
    p.valu(f"v_lshrrev_b32 v{T+2}, 5, v0", wr=[T+2], rd=[0])
    p.valu(f"v_xor_b32 v{T+3}, v{T+2}, v{T+1}", wr=[T+3], rd=[T+2, T+1])
    p.valu(f"v_lshlrev_b32 v{T+3}, 4, v{T+3}", wr=[T+3], rd=[T+3])
    p.valu(f"v_lshl_add_u32 v{T+3}, v{T}, 8, v{T+3}", wr=[T+3], rd=[T, T+3])
    p.valu(f"v_add_u32 v{T+3}, {KVRING}, v{T+3}", wr=[T+3], rd=[T+3])
    for j in range(8):
        p.valu(f"v_xor_b32 v{aK+j}, {j*32}, v{T+3}", wr=[aK+j], rd=[T+3])
    p.valu(f"v_bfe_u32 v{T+4}, v0, 2, 2", wr=[T+4], rd=[0])
    p.valu(f"v_lshl_add_u32 v{T+5}, v{T+2}, 2, v{T+4}", wr=[T+5], rd=[T+2, T+4])
    p.valu(f"v_lshlrev_b32 v{T+5}, 8, v{T+5}", wr=[T+5], rd=[T+5])
    p.valu(f"v_bfe_u32 v{T+6}, v0, 4, 1", wr=[T+6], rd=[0])
    p.valu(f"v_lshl_add_u32 v{T+5}, v{T+6}, 5, v{T+5}", wr=[T+5], rd=[T+6, T+5])
    p.valu(f"v_and_b32 v{T+6}, 3, v0", wr=[T+6], rd=[0])
    p.valu(f"v_lshl_add_u32 v{T+5}, v{T+6}, 3, v{T+5}", wr=[T+5], rd=[T+6, T+5])
    p.valu(f"v_add_u32 v{T+5}, {KVRING + 16384}, v{T+5}", wr=[T+5], rd=[T+5])
    for b in range(4):
        p.valu(f"v_xor_b32 v{T+6}, {b}, v{T+4}", wr=[T+6], rd=[T+4])
        p.valu(f"v_lshl_add_u32 v{aV+b}, v{T+6}, 6, v{T+5}", wr=[aV+b], rd=[T+6, T+5])
    p.valu(f"v_bfe_u32 v{T+6}, v0, 4, 1", wr=[T+6], rd=[0])
    p.valu(f"v_lshlrev_b32 v{T+6}, 17, v{T+6}", wr=[T+6], rd=[T+6])
    p.valu(f"v_lshl_add_u32 v{T+6}, v{T+1}, 4, v{T+6}", wr=[T+6], rd=[T+1, T+6])
    p.valu(f"v_lshl_add_u32 v{voO}, v{T+2}, 8, v{T+6}", wr=[voO], rd=[T+2, T+6])
    p.salu("s_lshl_b32 s34, s7, 3"); p.salu("s_lshl_b32 s33, s3, 1"); p.salu("s_add_u32 s34, s34, s33")
    p.salu("s_lshl_b32 s34, s34, 7"); p.salu("s_lshl_b32 s33, s6, 2"); p.salu("s_add_u32 s34, s34, s33")
    p.salu("s_add_u32 s34, s34, 64"); p.salu("s_lshl_b32 s34, s34, 10")
    p.salu("s_lshl_b32 s33, s3, 13")
    p.valu(f"v_lshlrev_b32 v{aH}, 4, v0", wr=[aH], rd=[0])
    p.valu(f"v_add_u32 v{aH}, s33, v{aH}", wr=[aH], rd=[aH])
    p.valu(f"v_add_u32 v{aOH}, {OHAND}, v{aH}", wr=[aOH], rd=[aH])
    p.salu("s_mov_b32 s49, -65536"); p.salu("s_mov_b32 s50, 32768")
    p.salu("s_mov_b32 s35, 0")
    p.salu("s_mov_b32 s46, 0")
    tb = opts.get("touch", 0)
    if tb == 1:
        p.raw("    s_sleep %d" % opts.get("tdelay", 10))
        a_touch()
    for i in range(10):
        p.barrier()
        if tb == 2 and i == 0: a_touch()
    st(1); st.cyc(5)
    B = [KF, VF]
    def sm_half(S, P, half):
        ops = []
        b0 = 8 * half
        def addcvt(k):
            ops.append(lambda k=k: p.valu(f"v_add_f32 v{LS}, v{LS}, v{S+k}", wr=[LS], rd=[LS, S+k]))
            ops.append(lambda k=k: p.valu(f"v_add_f32 v{LS+1}, v{LS+1}, v{S+k+1}", wr=[LS+1], rd=[LS+1, S+k+1]))
            ops.append(lambda k=k: p.valu(f"v_cvt_pk_bf16_f32 v{P+k//2}, v{S+k}, v{S+k+1}", wr=[P+k//2], rd=[S+k, S+k+1]))
        for i in range(b0, b0 + 8, 2):
            ops.append(lambda i=i: p.trans(f"v_exp_f32 v{S+i}, v{S+i}", wr=[S+i], rd=[S+i]))
            ops.append(lambda i=i: p.trans(f"v_exp_f32 v{S+i+1}, v{S+i+1}", wr=[S+i+1], rd=[S+i+1]))
            if i >= b0 + 2: addcvt(i - 2)
        addcvt(b0 + 6)
        return ops
    def vread(bank, t, n):
        ks2, blk = n >> 2, n & 3
        d = bank + 4 * n
        ks = 2 * t + ks2
        p.ds_read("ds_read_b64_tr_b16", d, 2, aV + blk, off=ks * 4096)
        p.ds_read("ds_read_b64_tr_b16", d + 2, 2, aV + blk, off=ks * 4096 + 2048)
    def spread(ops, slots, i):
        for _ in range(slots[i]):
            if ops: ops.pop(0)()
    def step(first, par):
        KB = B[par]; VB = B[1 - par]
        p.barrier()
        p.reset_tracking()
        if first:
            for j in range(8):
                p.ds_read("ds_read_b128", Q + 4*j, 4, aH, off=QHAND + j * 1024)
        for j in range(8):
            p.ds_read("ds_read_b128", KB + 4*j, 4, aK + j)
        if first:
            p.valu(f"v_mov_b32 v{LS}, 0", wr=[LS]); p.valu(f"v_mov_b32 v{LS+1}, 0", wr=[LS+1])
            sm = []
        else:
            sm = sm_half(S1, P1, 1)
            for _ in range(12): sm.pop(0)()
        for j in range(8):
            if j == 0: p.wait(lgkm=4)
            if j == 4: p.wait(lgkm=4)
            if j == 0:
                if first: p.mfma32(S0, KB, Q, czero=True)
                else: p.mfma32(S0, KB, Q, C=C)
            else:
                p.mfma32(S0, KB + 4*j, Q + 4*j)
            p.ds_read("ds_read_b128", KB + 4*j, 4, aK + j, off=8192)
            spread(sm, [2, 2, 2, 2, 0, 0, 0, 0], j)
        while sm: sm.pop(0)()
        if first:
            p.valu(f"v_max3_f32 v{T}, v{S0}, v{S0+1}, v{S0+2}", wr=[T], rd=[S0, S0+1, S0+2])
            for i in range(3, 15, 2):
                p.valu(f"v_max3_f32 v{T}, v{T}, v{S0+i}, v{S0+i+1}", wr=[T], rd=[T, S0+i, S0+i+1])
            p.valu(f"v_max_f32 v{T}, v{T}, v{S0+15}", wr=[T], rd=[T, S0+15])
            p.valu(f"v_mov_b32 v{T+1}, v{T}", wr=[T+1], rd=[T])
            p.perm(f"v_permlane32_swap_b32 v{T}, v{T+1}", [T, T+1])
            p.valu(f"v_max_f32 v{T}, v{T}, v{T+1}", wr=[T], rd=[T, T+1])
            for i in range(16):
                p.valu(f"v_sub_f32 v{C+i}, 0, v{T}", wr=[C+i], rd=[T])
            for i in range(16):
                p.valu(f"v_sub_f32 v{S0+i}, v{S0+i}, v{T}", wr=[S0+i], rd=[S0+i, T])
        sm = sm_half(S0, P0, 0)
        for n in range(8):
            if n in (2, 5): p.wait(lgkm=(4 if n == 2 else 6))
            if not first:
                p.mfma32(O + 16*(n & 3), VB + 4*n, P1 + 4*(n >> 2))
            vread(VB, 0, n)
            spread(sm, [0, 0, 4, 4, 3, 3, 3, 3], n)
        while sm: sm.pop(0)()
        sm = sm_half(S0, P0, 1)
        for j in range(8):
            if j in (0, 3, 6): p.wait(lgkm=6)
            if j == 0: p.mfma32(S1, KB, Q, C=C)
            else: p.mfma32(S1, KB + 4*j, Q + 4*j)
            vread(KB, 1, j)
            spread(sm, [3, 3, 3, 3, 2, 2, 2, 2], j)
        while sm: sm.pop(0)()
        p.salu("s_add_u32 s35, s35, 1")
        p.salu("s_cmp_eq_u32 s35, 3")
        p.salu("s_cselect_b32 s33, s49, s50")
        p.salu("s_cselect_b32 s35, 0, s35")
        sm = sm_half(S1, P1, 0)
        adv = [(lambda r=r: p.valu(f"v_add_u32 v{r}, s33, v{r}", wr=[r], rd=[r])) for r in list(range(aK, aK+8)) + list(range(aV, aV+4))]
        for n in range(8):
            if first and n < 4: p.mfma32(O + 16*(n & 3), VB + 4*n, P0 + 4*(n >> 2), czero=True)
            else: p.mfma32(O + 16*(n & 3), VB + 4*n, P0 + 4*(n >> 2))
            if n < 2:
                spread(adv, [6, 6], n)
            spread(sm, [0, 0, 4, 4, 3, 3, 3, 3], n)
        while sm: sm.pop(0)()
        p.wait(lgkm=0)
    p.label(f"{name}_Apair")
    step(True, 0)
    p.salu("s_mov_b32 s47, 8")
    p.label(f"{name}_Aloop")
    step(False, 1)
    p.salu("s_cmp_lt_u32 s47, 8")
    p.branch(f"s_cbranch_scc1 {name}_Anw")
    p.raw("    s_waitcnt vmcnt(0)")
    p.label(f"{name}_Anw")
    p.salu("s_sub_u32 s47, s47, 1")
    p.salu("s_cmp_eq_u32 s47, 0")
    p.branch(f"s_cbranch_scc1 {name}_Aepi")
    step(False, 0)
    p.branch(f"s_branch {name}_Aloop")
    p.label(f"{name}_Aepi")
    p.out.append(Ins("s_nop 0", "nop", states=1))
    sm = sm_half(S1, P1, 1)
    while sm: sm.pop(0)()
    for n in range(8):
        p.mfma32(O + 16*(n & 3), B[1] + 4*n, P1 + 4*(n >> 2))
    p.nop(12)
    p.valu(f"v_add_f32 v{LS}, v{LS}, v{LS+1}", wr=[LS], rd=[LS, LS+1])
    p.valu(f"v_mov_b32 v{T}, v{LS}", wr=[T], rd=[LS])
    p.perm(f"v_permlane32_swap_b32 v{LS}, v{T}", [LS, T])
    p.valu(f"v_add_f32 v{LS}, v{LS}, v{T}", wr=[LS], rd=[LS, T])
    p.salu(f"s_mov_b32 s33, {hex(f2u(2.0**30))}")
    p.valu(f"v_cmp_nlt_f32 vcc, v{LS}, s33", rd=[LS], swr=["vcc"]) if False else p.raw(f"    v_cmp_nlt_f32_e64 vcc, v{LS}, s33")
    p.nop(5)
    p.branch(f"s_cbranch_vccnz {name}_Aslow")
    p.label(f"{name}_Anorm")
    p.out.append(Ins("s_nop 0", "nop", states=25))
    p.reset_tracking()
    p.trans(f"v_rcp_f32 v{T}, v{LS}", wr=[T], rd=[LS])
    for blk in range(4):
        for u in range(2):
            for i in range(8):
                r = O + 16*blk + 8*u + i
                p.valu(f"v_mul_f32 v{r}, v{r}, v{T}", wr=[r], rd=[r, T])
            d = S0 + (blk * 2 + u) * 4
            for i in range(4):
                r = O + 16*blk + 8*u + 2*i
                p.valu(f"v_cvt_pk_bf16_f32 v{d+i}, v{r}, v{r+1}", wr=[d+i], rd=[r, r+1])
    p.salu("s_cmp_eq_u32 s46, 1")
    p.branch(f"s_cbranch_scc1 {name}_Afin")
    p.salu(f"s_sub_u32 s33, s34, {64*1024}")
    for u in range(8):
        p.bstore(S0 + 4*u, 4, voO, "s[24:27]", "s33", off=(u >> 1) * 1024 + (u & 1) * 512, tag="ost", flags=STF)
    p.salu("s_mov_b32 s46, 1")
    p.nop(2)
    st(2); st.cyc(6)
    p.branch(f"s_branch {name}_Apair")
    p.label(f"{name}_Afin")
    st(3); st.cyc(7)
    for u in range(8):
        p.bstore(S0 + 4*u, 4, voO, "s[24:27]", "s34", off=(u >> 1) * 1024 + (u & 1) * 512, tag="ost", flags=STF)
    p.raw("    s_waitcnt vmcnt(0)")
    p.barrier()
    st(4)
    srd(p, 16, 58, 256)
    p.salu("s_cmp_lg_u32 s3, 0")
    p.branch(f"s_cbranch_scc1 {name}_nosigB")
    p.valu("v_mov_b32 v228, 0", wr=[228]); p.valu("v_mov_b32 v231, 1", wr=[231])
    p.salu("s_mov_b64 exec, 1")
    p.salu("s_lshl_b32 s33, s7, 2"); p.salu("s_add_u32 s33, s33, 128")
    p.raw("    buffer_atomic_add v231, v228, s[16:19], s33 offen sc1")
    p.salu("s_mov_b64 exec, -1")
    p.label(f"{name}_nosigB")
    for r in range(80): p.valu(f"v_mov_b32 v{64+r}, 0", wr=[64+r])
    p.label(f"{name}_Tail")
    p.out.append(Ins("s_nop 0", "nop", states=25))
    p.reset_tracking()
    ACC = 64; STG = 144; voB = 2; vZ = 6; vP = 8
    srd(p, 24, 44, 0x2000000)
    srd(p, 20, 56, 2048 * 640 * 2)
    out_map()
    p.valu(f"v_mbcnt_lo_u32_b32 v{voB}, -1, 0", wr=[voB])
    p.valu(f"v_mbcnt_hi_u32_b32 v{voB}, -1, v{voB}", wr=[voB], rd=[voB])
    p.valu(f"v_mov_b32 v0, v{voB}", wr=[0], rd=[voB])
    p.valu(f"v_lshlrev_b32 v{voB}, 4, v{voB}", wr=[voB], rd=[voB])
    p.valu(f"v_add_u32 v{voB+1}, 4096, v{voB}", wr=[voB+1], rd=[voB])
    p.valu(f"v_mov_b32 v{vZ}, 0", wr=[vZ])
    ZF = vZ + 1
    def tail_poll(lbl, off_expr):
        p.salu("s_cmp_lg_u32 s3, 0")
        p.branch(f"s_cbranch_scc1 {name}_{lbl}d")
        p.salu("s_mov_b32 s63, 0")
        p.label(f"{name}_{lbl}")
        p.salu("s_mov_b64 exec, 3")
        p.raw(f"    buffer_load_dword v{vP}, v{ZF}, s[16:19], 0 offen sc1")
        p.salu("s_mov_b64 exec, -1")
        p.raw("    s_waitcnt vmcnt(0)")
        p.raw(f"    v_readlane_b32 s33, v{vP}, 0\n    v_readlane_b32 s35, v{vP}, 1\n    s_nop 3")
        p.salu("s_cmp_eq_u32 s33, 256"); p.salu("s_cselect_b32 s60, 1, 0")
        p.salu("s_cmp_eq_u32 s35, 16"); p.salu("s_cselect_b32 s60, s60, 0")
        p.salu("s_cmp_lg_u32 s60, 0")
        p.branch(f"s_cbranch_scc1 {name}_{lbl}d")
        p.raw(f"    s_sleep {opts.get('tsleep', 16)}")
        p.salu("s_add_u32 s63, s63, 1")
        p.salu("s_cmp_lt_u32 s63, 0x80000")
        p.branch(f"s_cbranch_scc1 {name}_{lbl}")
        p.label(f"{name}_{lbl}d")
    def set_zf(off):
        p.salu("s_lshr_b32 s51, s4, 1"); p.salu("s_lshl_b32 s51, s51, 2"); p.salu(f"s_add_u32 s51, s51, {off}")
        p.valu(f"v_cmp_eq_u32 vcc, 0, v0", rd=[0], swr=["vcc"])
        p.valu(f"v_mov_b32 v{ZF}, s51", wr=[ZF])
        p.nop(2)
        p.valu(f"v_cndmask_b32 v{ZF}, v{ZF}, v{vZ}, vcc", wr=[ZF], rd=[ZF, vZ])
    p.raw(f"    ds_read_b32 v{vP}, v{vZ}\n    s_waitcnt lgkmcnt(0)\n    v_readfirstlane_b32 s60, v{vP}\n    s_nop 3")
    p.salu("s_cmp_lg_u32 s60, 0")
    p.branch(f"s_cbranch_scc1 {name}_Tr1ok")
    set_zf(64)
    tail_poll("Tp1", 64)
    p.barrier()
    p.label(f"{name}_Tr1ok")
    st(8)
    p.reset_tracking()
    p.salu("s_lshl_b32 s62, s3, 3")
    frag_bases("s62")
    p.valu(f"v_add_u32 v{voB+2}, 65536, v{voB}", wr=[voB+2], rd=[voB])
    p.valu(f"v_add_u32 v{voB+3}, 65536, v{voB+1}", wr=[voB+3], rd=[voB+1])
    set_zf(128)
    def vo(i): return voB + (2 if i >= 8 else 0) + ((i & 7) >> 2)
    def issueA(i):
        base = STG + (i % 3) * 36
        for nb in range(5):
            p.bload(base + 4*nb, 4, vo(i), "s[24:27]", f"s{sAr[nb]}", off=(i & 3) * 1024, tag=f"a{i}", flags=" sc1")
    def issueB(i):
        base = STG + (i % 3) * 36
        for q in range(4):
            p.bload(base + 20 + 4*q, 4, vo(i), "s[24:27]", f"s{36+q}", off=(i & 3) * 1024, tag=f"b{i}", flags=" sc1")
    issueA(0); issueB(0); issueA(1); issueB(1)
    for i in range(16):
        base = STG + (i % 3) * 36
        if i + 2 < 16:
            if i + 2 == 8:
                issueA(8)
                if st.on: st(11)
                vmsave = list(p.vm)
                tail_poll("Tp2", 128)
                p.barrier()
                p.vm = vmsave
                issueB(8)
            else:
                issueA(i + 2); issueB(i + 2)
        for nb in range(5):
            for q in range(4):
                p.mfma16(ACC + (nb*4 + q)*4, base + 4*nb, base + 20 + 4*q)
    st(9)
    T = 8
    p.salu("s_mul_i32 s33, s3, 20480")
    p.valu(f"v_add_u32 v{T}, s33, v{voB}", wr=[T], rd=[voB])
    for t in range(20):
        p.ds_write("ds_write_b128", T, ACC + 4*t, 4, off=t*1024)
    p.wait(lgkm=0)
    p.barrier()
    p.valu(f"v_and_b32 v{T+1}, 15, v0", wr=[T+1], rd=[0])
    p.valu(f"v_mul_u32_u24 v{T+1}, 1280, v{T+1}", wr=[T+1], rd=[T+1])
    p.valu(f"v_lshrrev_b32 v{T+2}, 4, v0", wr=[T+2], rd=[0])
    p.valu(f"v_lshl_add_u32 v{T+1}, v{T+2}, 3, v{T+1}", wr=[T+1], rd=[T+2, T+1])
    p.salu(f"s_mul_i32 s34, s4, {64*1280}")
    p.salu("s_mul_i32 s33, s5, 160"); p.salu("s_add_u32 s34, s34, s33")
    p.salu("s_lshl_b32 s35, s3, 10")
    p.valu(f"v_add_u32 v{T+3}, s35, v{voB}", wr=[T+3], rd=[voB])
    for rnd in range(3):
        if rnd == 2:
            p.salu("s_cmp_ge_u32 s3, 4")
            p.branch(f"s_cbranch_scc1 {name}_fin")
        p.salu(f"s_add_u32 s40, s3, {8*rnd}")
        p.salu("s_lshr_b32 s41, s40, 2"); p.salu("s_and_b32 s42, s40, 3")
        p.salu("s_lshl_b32 s41, s41, 5")
        p.salu(f"s_mul_i32 s42, s42, {16*1280}")
        p.salu("s_add_u32 s41, s41, s42"); p.salu("s_add_u32 s41, s41, s34")
        for w in range(8):
            off = w * 20480 + rnd * 8192
            if off < 65536:
                p.ds_read("ds_read_b128", ACC + 4*w, 4, T + 3, off=off)
            else:
                p.valu(f"v_add_u32 v{T+4}, {off}, v{T+3}", wr=[T+4], rd=[T+3])
                p.ds_read("ds_read_b128", ACC + 4*w, 4, T + 4)
        for w in range(1, 8):
            for r in range(4):
                p.valu(f"v_add_f32 v{ACC+r}, v{ACC+r}, v{ACC+4*w+r}", wr=[ACC+r], rd=[ACC+r, ACC+4*w+r])
        p.valu(f"v_cvt_pk_bf16_f32 v{ACC+40}, v{ACC}, v{ACC+1}", wr=[ACC+40], rd=[ACC, ACC+1])
        p.valu(f"v_cvt_pk_bf16_f32 v{ACC+41}, v{ACC+2}, v{ACC+3}", wr=[ACC+41], rd=[ACC+2, ACC+3])
        p.bstore(ACC + 40, 2, T + 1, "s[20:23]", "s41", flags=["", " nt", " sc1", " sc0 sc1"][opts.get("outf", 0)])
        p.nop(2)
    p.label(f"{name}_fin")
    if st.on:
        p.raw("    s_waitcnt vmcnt(0)")
        st(10); st.dump("s3")
    p.branch(f"s_branch {name}_done")
    p.label(f"{name}_Aslow")
    p.out.append(Ins("s_nop 0", "nop", states=25))
    p.reset_tracking()
    O = 64; S0 = 128; P0 = 160; KF = 176; VF = 208; Q = 32; LS = 2; T = 4
    M = 5; AL = 6; vK = 7; vV = 8; TM = 9; TN = 10
    srd(p, 8, 38, 0x8000000); srd(p, 12, 40, 0x8000000)
    p.salu("s_lshl_b32 s36, s7, 5"); p.salu("s_add_u32 s36, s36, s6"); p.salu("s_lshl_b32 s33, s46, 4"); p.salu("s_add_u32 s36, s36, s33"); p.salu("s_lshl_b32 s36, s36, 18")
    p.valu(f"v_mbcnt_lo_u32_b32 v{TM}, -1, 0", wr=[TM])
    p.valu(f"v_mbcnt_hi_u32_b32 v{TM}, -1, v{TM}", wr=[TM], rd=[TM])
    p.valu(f"v_and_b32 v{TN}, 31, v{TM}", wr=[TN], rd=[TM])
    p.valu(f"v_lshrrev_b32 v{TM}, 5, v{TM}", wr=[TM], rd=[TM])
    p.valu(f"v_lshlrev_b32 v{vK}, 8, v{TN}", wr=[vK], rd=[TN])
    p.valu(f"v_lshl_add_u32 v{vK}, v{TM}, 4, v{vK}", wr=[vK], rd=[TM, vK])
    p.valu(f"v_lshlrev_b32 v{vV}, 1, v{TN}", wr=[vV], rd=[TN])
    p.valu(f"v_lshl_add_u32 v{vV}, v{TM}, 10, v{vV}", wr=[vV], rd=[TM, vV])
    for r in range(64): p.valu(f"v_mov_b32 v{O+r}, 0", wr=[O+r])
    p.valu(f"v_mov_b32 v{LS}, 0", wr=[LS])
    p.valu(f"v_mov_b32 v{M}, 0xff7fffff", wr=[M])
    p.salu("s_mov_b32 s37, 0")
    p.label(f"{name}_Asl")
    p.reset_tracking()
    for j in range(8): p.bload(KF + 4*j, 4, vK, "s[8:11]", "s36", off=j*32)
    TV = 144
    for ks2 in range(2):
        for bp in range(2):
            for bb in range(2):
                blk = 2*bp + bb
                for i in range(8):
                    key = 16*ks2 + (i if i < 4 else 8 + i - 4)
                    p.salu(f"s_add_u32 s33, s36, {key*256 + blk*64}")
                    p.raw(f"    buffer_load_ushort v{TV + 8*bb + i}, v{vV}, s[12:15], s33 offen")
            p.raw("    s_waitcnt vmcnt(0)")
            for bb in range(2):
                d = VF + (ks2*4 + 2*bp + bb)*4
                for r in range(4):
                    p.valu(f"v_lshl_or_b32 v{d+r}, v{TV+8*bb+2*r+1}, 16, v{TV+8*bb+2*r}", wr=[d+r], rd=[TV+8*bb+2*r+1, TV+8*bb+2*r])
    p.raw("    s_waitcnt vmcnt(0)")
    p.reset_tracking()
    for j in range(8):
        if j == 0: p.mfma32(S0, KF, Q, czero=True)
        else: p.mfma32(S0, KF + 4*j, Q + 4*j)
    p.valu(f"v_max3_f32 v{TM}, v{S0}, v{S0+1}, v{S0+2}", wr=[TM], rd=[S0, S0+1, S0+2])
    for i in range(3, 15, 2): p.valu(f"v_max3_f32 v{TM}, v{TM}, v{S0+i}, v{S0+i+1}", wr=[TM], rd=[TM, S0+i, S0+i+1])
    p.valu(f"v_max_f32 v{TM}, v{TM}, v{S0+15}", wr=[TM], rd=[TM, S0+15])
    p.valu(f"v_mov_b32 v{TN}, v{TM}", wr=[TN], rd=[TM])
    p.perm(f"v_permlane32_swap_b32 v{TM}, v{TN}", [TM, TN])
    p.valu(f"v_max3_f32 v{TM}, v{TM}, v{TN}, v{M}", wr=[TM], rd=[TM, TN, M])
    p.valu(f"v_sub_f32 v{AL}, v{M}, v{TM}", wr=[AL], rd=[M, TM])
    p.trans(f"v_exp_f32 v{AL}, v{AL}", wr=[AL], rd=[AL])
    p.valu(f"v_mov_b32 v{M}, v{TM}", wr=[M], rd=[TM])
    p.valu(f"v_mul_f32 v{LS}, v{LS}, v{AL}", wr=[LS], rd=[LS, AL])
    for r in range(64): p.valu(f"v_mul_f32 v{O+r}, v{O+r}, v{AL}", wr=[O+r], rd=[O+r, AL])
    for i in range(16):
        p.valu(f"v_sub_f32 v{S0+i}, v{S0+i}, v{M}", wr=[S0+i], rd=[S0+i, M])
        p.trans(f"v_exp_f32 v{S0+i}, v{S0+i}", wr=[S0+i], rd=[S0+i])
    for i in range(16): p.valu(f"v_add_f32 v{LS}, v{LS}, v{S0+i}", wr=[LS], rd=[LS, S0+i])
    for i in range(8): p.valu(f"v_cvt_pk_bf16_f32 v{P0+i}, v{S0+2*i}, v{S0+2*i+1}", wr=[P0+i], rd=[S0+2*i, S0+2*i+1])
    for n in range(8): p.mfma32(O + 16*(n & 3), VF + 4*n, P0 + 4*(n >> 2))
    p.nop(16)
    p.salu("s_add_u32 s36, s36, 8192")
    p.salu("s_add_u32 s37, s37, 1")
    p.salu("s_cmp_lt_u32 s37, 32")
    p.branch(f"s_cbranch_scc1 {name}_Asl")
    p.valu(f"v_mov_b32 v{T}, v{LS}", wr=[T], rd=[LS])
    p.perm(f"v_permlane32_swap_b32 v{LS}, v{T}", [LS, T])
    p.valu(f"v_add_f32 v{LS}, v{LS}, v{T}", wr=[LS], rd=[LS, T])
    p.nop(2)
    p.branch(f"s_branch {name}_Anorm")
    p.label(f"{name}_done")
    p.raw("    s_endpgm")
    return p, name

def gen_k2(opts):
    p = Prog()
    name = opts.get("name", "k2_kernel")
    K2F = ["", " nt", " sc1", " sc0 sc1", " sc0"][opts.get("k2nt", 0)]
    st = Stamps(p, opts, key="wgt2")
    p.raw(f".globl {name}\n.p2align 8\n.type {name},@function\n{name}:")
    p.salu("s_cmp_ge_u32 s2, 256")
    p.branch(f"s_cbranch_scc1 {name}_done")
    p.salu("s_load_dwordx2 s[38:39], s[0:1], 40")
    p.salu("s_load_dwordx2 s[44:45], s[0:1], 56")
    p.valu("v_lshrrev_b32 v1, 6, v0", wr=[1], rd=[0])
    p.valu("v_and_b32 v0, 63, v0", wr=[0], rd=[0])
    p.rfl("s3", 1)
    p.salu("s_and_b32 s4, s2, 7")
    p.salu("s_lshr_b32 s5, s2, 3")
    p.salu("s_lshr_b32 s6, s4, 1"); p.salu("s_lshl_b32 s6, s6, 3"); p.salu("s_lshr_b32 s7, s5, 2"); p.salu("s_add_u32 s6, s6, s7")
    p.salu("s_and_b32 s7, s4, 1"); p.salu("s_lshl_b32 s7, s7, 2"); p.salu("s_and_b32 s5, s5, 3"); p.salu("s_add_u32 s7, s7, s5")
    ACC = 64; ST = 144; voB = 2; T = 4
    p.valu(f"v_lshlrev_b32 v{voB}, 4, v0", wr=[voB], rd=[0])
    p.salu("s_lshl_b32 s29, s6, 9"); p.salu("s_lshl_b32 s33, s3, 4"); p.salu("s_add_u32 s29, s29, s33"); p.salu("s_lshl_b32 s29, s29, 10")
    for q in range(4): p.salu(f"s_add_u32 s{48+q}, s29, {q*131072}")
    p.salu("s_mul_i32 s29, s7, 640"); p.salu("s_add_u32 s29, s29, s33"); p.salu("s_lshl_b32 s29, s29, 10")
    for nb in range(5): p.salu(f"s_add_u32 s{52+nb}, s29, {WOT + nb*131072}")
    p.raw("    s_waitcnt lgkmcnt(0)")
    if st.on:
        for k in range(16): p.raw(f"    s_mov_b32 s{70+k}, 0")
    st(0)
    srd(p, 24, 44, 0x2000000)
    srd(p, 12, 38, 2048 * 640 * 2)
    def issue(i):
        base = ST + (i % 3) * 36
        for nb in range(5):
            p.bload(base + 4*nb, 4, voB + (i >> 2), "s[24:27]", f"s{52+nb}", off=(i & 3) * 1024, tag=f"a{i}", flags=K2F)
        for q in range(4):
            p.bload(base + 20 + 4*q, 4, voB + (i >> 2), "s[24:27]", f"s{48+q}", off=(i & 3) * 1024, tag=f"b{i}", flags=K2F)
    for j in range(1, 4): p.valu(f"v_add_u32 v{voB+j}, {4096*j}, v{voB}", wr=[voB+j], rd=[voB])
    issue(0); issue(1)
    for i in range(16):
        p.comment(f"kstep {i}")
        base = ST + (i % 3) * 36
        if i + 2 < 16: issue(i + 2)
        if i == 1: st(1)
        if i == 8: st(2)
        for nb in range(5):
            for q in range(4):
                if i == 0: p.mfma16(ACC + (nb*4 + q)*4, base + 4*nb, base + 20 + 4*q, czero=True)
                else: p.mfma16(ACC + (nb*4 + q)*4, base + 4*nb, base + 20 + 4*q)
    st(3)
    T = 8
    p.salu("s_mul_i32 s33, s3, 20480")
    p.valu(f"v_add_u32 v{T}, s33, v{voB}", wr=[T], rd=[voB])
    for t in range(20):
        p.ds_write("ds_write_b128", T, ACC + 4*t, 4, off=t*1024)
    p.wait(lgkm=0)
    p.barrier()
    p.valu(f"v_and_b32 v{T+1}, 15, v0", wr=[T+1], rd=[0])
    p.valu(f"v_mul_u32_u24 v{T+1}, 1280, v{T+1}", wr=[T+1], rd=[T+1])
    p.valu(f"v_lshrrev_b32 v{T+2}, 4, v0", wr=[T+2], rd=[0])
    p.valu(f"v_lshl_add_u32 v{T+1}, v{T+2}, 3, v{T+1}", wr=[T+1], rd=[T+2, T+1])
    p.salu(f"s_mul_i32 s34, s6, {64*1280}")
    p.salu("s_mul_i32 s33, s7, 160"); p.salu("s_add_u32 s34, s34, s33")
    p.salu("s_lshl_b32 s35, s3, 10")
    p.valu(f"v_add_u32 v{T+3}, s35, v{voB}", wr=[T+3], rd=[voB])
    st(4)
    for rnd in range(3):
        if rnd == 2:
            p.salu("s_cmp_ge_u32 s3, 4")
            p.branch(f"s_cbranch_scc1 {name}_done")
        p.salu(f"s_add_u32 s40, s3, {8*rnd}")
        p.salu("s_lshr_b32 s41, s40, 2"); p.salu("s_and_b32 s42, s40, 3")
        p.salu("s_lshl_b32 s41, s41, 5")
        p.salu(f"s_mul_i32 s42, s42, {16*1280}")
        p.salu("s_add_u32 s41, s41, s42"); p.salu("s_add_u32 s41, s41, s34")
        for w in range(8):
            off = w * 20480 + rnd * 8192
            if off < 65536:
                p.ds_read("ds_read_b128", ACC + 4*w, 4, T + 3, off=off)
            else:
                p.valu(f"v_add_u32 v{T+4}, {off}, v{T+3}", wr=[T+4], rd=[T+3])
                p.ds_read("ds_read_b128", ACC + 4*w, 4, T + 4)
        for w in range(1, 8):
            for r in range(4):
                p.valu(f"v_add_f32 v{ACC+r}, v{ACC+r}, v{ACC+4*w+r}", wr=[ACC+r], rd=[ACC+r, ACC+4*w+r])
        p.valu(f"v_cvt_pk_bf16_f32 v{ACC+40}, v{ACC}, v{ACC+1}", wr=[ACC+40], rd=[ACC, ACC+1])
        p.valu(f"v_cvt_pk_bf16_f32 v{ACC+41}, v{ACC+2}, v{ACC+3}", wr=[ACC+41], rd=[ACC+2, ACC+3])
        p.bstore(ACC + 40, 2, T + 1, "s[12:15]", "s41", flags=["", " nt", " sc1", " sc0 sc1"][opts.get("outf", 0)])
        p.nop(2)
    if st.on:
        p.raw("    s_waitcnt vmcnt(0)")
        st(5); st.dump("s3")
    p.label(f"{name}_done")
    p.raw("    s_endpgm")
    return p, name

def build(path, opts={}):
    KN = "standalone__mha_block_cached__near_ridge_kernel"
    k1, n1 = gen_k1(dict(opts, name=KN))
    hdr = open("standalone__mha_block_cached__near_ridge.s.ref").read().split("; Override")[0]
    o = [hdr.rstrip()]
    o.append("; @launch grid=(256,1,1) block=(512,1,1) lds=163840")
    o.append('.amdgcn_target "amdgcn-amd-amdhsa--gfx950"\n.text')
    o.append(k1.text())
    o.append('.section .rodata,"a"\n.p2align 6')
    o.append(KD.format(name=n1, vgpr=256, sgpr=96, acc=256))
    open(path, "w").write("\n".join(o) + "\n")
    print("nops", k1.nops, "lines", len(k1.out))

if __name__ == "__main__":
    opts = {}
    for a in sys.argv[2:]:
        k, v = a.split("="); opts[k] = int(v)
    build(sys.argv[1], opts)
```

```python
import sys, struct
from fw import *

LOG2E = 1.4426950408889634
QSCALE = LOG2E / (128 ** 0.5)
def f2u(f): return struct.unpack("<I", struct.pack("<f", f))[0]

KVRING = 65536
QHAND = 0
OHAND = 32768
WOT = 0x1800000

def srd(p, dst, ptr, size):
    p.salu(f"s_mov_b32 s{dst}, s{ptr}")
    p.salu(f"s_and_b32 s{dst+1}, s{ptr+1}, 0xffff")
    p.salu(f"s_mov_b32 s{dst+2}, {hex(size)}")
    p.salu(f"s_mov_b32 s{dst+3}, 0x20000")

class Stamps:
    def __init__(s, p, opts, base=0x2000000, key="wgt"): s.p = p; s.on = opts.get(key, 0); s.base = base
    def __call__(s, k):
        if not s.on: return
        s.p.raw(f"    s_memrealtime s[68:69]\n    s_waitcnt lgkmcnt(0)\n    s_mov_b32 s{70+k}, s68")
        s.p.lg = []
    def cyc(s, k):
        if not s.on: return
        s.p.raw(f"    s_memtime s[68:69]\n    s_waitcnt lgkmcnt(0)\n    s_mov_b32 s{70+k}, s68")
        s.p.lg = []
    def dump(s, wavereg):
        if not s.on: return
        t = """    s_waitcnt vmcnt(0)
    s_mov_b32 s60, s44
    s_and_b32 s61, s45, 0xffff
    s_mov_b32 s62, 0x4000000
    s_mov_b32 s63, 0x20000
    s_lshl_b32 s64, s2, 3
    s_add_u32 s64, s64, %s
    s_lshl_b32 s64, s64, 6
    s_add_u32 s64, s64, %s
    v_mov_b32 v20, 0
""" % (wavereg, hex(s.base))
        for q in range(4):
            for i in range(4): t += f"    v_mov_b32 v{16+i}, s{70+4*q+i}\n"
            t += f"    s_nop 1\n    buffer_store_dwordx4 v[16:19], v20, s[60:63], s64 offen offset:{16*q}\n    s_nop 2\n"
        s.p.raw(t + "    s_waitcnt vmcnt(0)")

def gen_k1(opts):
    p = Prog()
    st = Stamps(p, opts)
    NT = " nt"
    WN = [" nt" if opts.get("wnt0", 1) else "", " nt" if opts.get("wnt1", 0) else ""]
    XNT = " nt" if opts.get("xnt", 1) else ""
    cur = [0]
    STF = ["", " nt", " sc1", " sc0 sc1", " sc1 nt", " sc0 sc1 nt"][opts.get("stnt", 3)]
    name = opts.get("name", "k1_kernel")
    p.raw(f".globl {name}\n.p2align 8\n.type {name},@function\n{name}:")
    p.salu("s_cmp_ge_u32 s2, 256")
    p.branch(f"s_cbranch_scc1 {name}_done")
    p.salu("s_load_dwordx8 s[36:43], s[0:1], 0")
    p.salu("s_load_dwordx2 s[44:45], s[0:1], 56")
    p.salu("s_load_dwordx2 s[52:53], s[0:1], 32")
    p.salu("s_load_dwordx4 s[56:59], s[0:1], 40")
    p.valu("v_lshrrev_b32 v1, 6, v0", wr=[1], rd=[0])
    p.valu("v_and_b32 v0, 63, v0", wr=[0], rd=[0])
    p.rfl("s3", 1)
    p.salu("s_and_b32 s4, s2, 7")
    p.salu("s_lshr_b32 s5, s2, 3")
    mp = opts.get("map", 2)
    if mp == 0:
        p.salu("s_lshr_b32 s6, s4, 1"); p.salu("s_lshl_b32 s6, s6, 2"); p.salu("s_and_b32 s7, s5, 3"); p.salu("s_add_u32 s6, s6, s7")
        p.salu("s_and_b32 s7, s4, 1"); p.salu("s_lshl_b32 s7, s7, 3"); p.salu("s_lshr_b32 s5, s5, 2"); p.salu("s_add_u32 s7, s7, s5")
    elif mp == 1:
        p.salu("s_and_b32 s6, s5, 15"); p.salu("s_lshl_b32 s7, s4, 1"); p.salu("s_lshr_b32 s5, s5, 4"); p.salu("s_add_u32 s7, s7, s5")
    elif mp == 2:
        p.salu("s_and_b32 s6, s4, 1"); p.salu("s_lshl_b32 s6, s6, 3"); p.salu("s_and_b32 s7, s5, 7"); p.salu("s_add_u32 s6, s6, s7")
        p.salu("s_lshr_b32 s7, s4, 1"); p.salu("s_lshl_b32 s7, s7, 2"); p.salu("s_lshr_b32 s5, s5, 3"); p.salu("s_add_u32 s7, s7, s5")
    if st.on:
        for k in range(16): p.raw(f"    s_mov_b32 s{70+k}, 0")
    p.raw("    s_waitcnt lgkmcnt(0)")
    st(0)
    p.salu("s_cmp_lt_u32 s3, 4")
    p.branch(f"s_cbranch_scc1 {name}_A")

    QA = 0; XR = 64; WF = 224; voW = 240; aW = 241; voK = 245; voV = 249; voX = 250; aXlo = 252; aWhi = 192; aXhi = 196
    T = 4
    srd(p, 16, 42, 640 * 4096 * 2)
    srd(p, 20, 36, 16 * 128 * 640 * 2)
    p.salu("s_sub_u32 s3, s3, 4")
    p.valu(f"v_lshrrev_b32 v{T}, 4, v0", wr=[T], rd=[0])
    p.valu(f"v_and_b32 v{T+1}, 15, v0", wr=[T+1], rd=[0])
    p.valu(f"v_lshlrev_b32 v{T+2}, 2, v{T}", wr=[T+2], rd=[T])
    p.valu(f"v_xor_b32 v{T+2}, v{T+2}, v{T+1}", wr=[T+2], rd=[T+2, T+1])
    p.valu(f"v_lshlrev_b32 v{T+2}, 4, v{T+2}", wr=[T+2], rd=[T+2])
    p.valu(f"v_lshl_add_u32 v{voW}, v{T}, 13, v{T+2}", wr=[voW], rd=[T, T+2])
    p.valu(f"v_lshl_add_u32 v{voV}, v{T}, 8, v{T+2}", wr=[voV], rd=[T, T+2])
    p.valu(f"v_lshrrev_b32 v{T+2}, 3, v0", wr=[T+2], rd=[0])
    p.valu(f"v_mul_u32_u24 v{T+2}, 1280, v{T+2}", wr=[T+2], rd=[T+2])
    p.valu(f"v_and_b32 v{T+3}, 7, v0", wr=[T+3], rd=[0])
    for e in range(2):
        p.valu(f"v_add_u32 v{T+4}, {4*e}, v{T}", wr=[T+4], rd=[T])
        p.valu(f"v_xor_b32 v{T+4}, v{T+4}, v{T+3}", wr=[T+4], rd=[T+4, T+3])
        p.valu(f"v_lshl_add_u32 v{voX+e}, v{T+4}, 4, v{T+2}", wr=[voX+e], rd=[T+4, T+2])
    p.salu("s_lshl_b32 s28, s3, 17")
    p.salu("s_lshl_b32 s33, s6, 8")
    p.salu("s_add_u32 s28, s28, s33")
    p.salu("s_mul_i32 s29, s7, 163840")
    p.salu(f"s_mul_i32 s33, s3, {32*1280}")
    p.salu("s_add_u32 s29, s29, s33")
    p.salu("s_lshl_b32 s30, s3, 12")
    slots0 = [0, 32768, KVRING + 32768, KVRING + 65536]
    def w_ops(j, slotbase):
        ops = []
        if opts.get("nopld"): return ops
        if opts.get("now1") and cur[0] == 1: return ops
        def f(i):
            p.salu(f"s_add_u32 m0, s30, {slotbase + i*1024}", swr=["m0"])
            p.salu(f"s_add_u32 s33, s28, {(64*j + 4*i) * 8192}")
            p.dma(voW, "s[16:19]", "s33", tag=f"w{j}", flags=WN[cur[0]])
        for i in range(4): ops.append(lambda i=i: f(i))
        return ops
    def x_ops(j, slotbase):
        ops = []
        if opts.get("nopld"): return ops
        def f(i):
            p.salu(f"s_add_u32 m0, s30, {slotbase + 16384 + i*1024}", swr=["m0"])
            p.salu(f"s_add_u32 s33, s29, {j*128 + i*10240}")
            p.dma(voX + (i & 1), "s[20:23]", "s33", tag=f"x{j}", flags=XNT)
        for i in range(4): ops.append(lambda i=i: f(i))
        return ops
    npre = opts.get("npre", 3)
    for j in range(npre):
        for o in w_ops(j, slots0[j]) + x_ops(j, slots0[j]): o()
    srd(p, 8, 38, 0x8000000)
    srd(p, 12, 40, 0x8000000)
    srd(p, 24, 44, 0x2000000)
    for i in range(4):
        p.valu(f"v_add_u32 v{T+2}, {4*i}, v{T}", wr=[T+2], rd=[T])
        p.valu(f"v_xor_b32 v{T+2}, v{T+2}, v{T+1}", wr=[T+2], rd=[T+2, T+1])
        p.valu(f"v_lshlrev_b32 v{T+2}, 4, v{T+2}", wr=[T+2], rd=[T+2])
        p.valu(f"v_lshl_add_u32 v{voK+i}, v{T}, 8, v{T+2}", wr=[voK+i], rd=[T, T+2])
    p.salu("s_lshl_b32 s31, s7, 5")
    p.salu("s_add_u32 s31, s31, s6")
    p.salu("s_lshl_b32 s31, s31, 18")
    p.salu("s_add_u32 s31, s31, s30")
    p.salu(f"s_add_u32 s32, s30, {KVRING}")
    p.salu("s_mov_b32 s34, 0")
    kvn = [0]
    def kv_ops(tag=None):
        ops = []
        tg = tag if tag else f"kv{kvn[0]}"
        kvn[0] += 1
        def k(i):
            if i == 0: p.salu("s_mov_b32 m0, s32", swr=["m0"])
            if not opts.get("nokv"): p.dma(voK + i, "s[8:11]", "s31", off=i * 1024, flags=NT, tag=tg)
        def v(i):
            if i == 0: p.salu("s_add_u32 m0, s32, 16384", swr=["m0"])
            if not opts.get("nokv"): p.dma(voV, "s[12:15]", "s31", off=i * 1024, flags=NT, tag=tg)
            if i == 3:
                p.salu("s_add_u32 s31, s31, 16384")
                p.salu("s_add_u32 s34, s34, 1")
                p.salu("s_cmp_eq_u32 s34, 16")
                p.salu(f"s_cselect_b32 s33, {hex(15 * 262144)}, 0")
                p.salu("s_add_u32 s31, s31, s33")
                p.salu("s_cmp_ge_u32 s34, 32")
                p.salu("s_cselect_b32 s31, 0x8000000, s31")
                p.salu("s_add_u32 s32, s32, 32768")
                p.salu(f"s_cmp_ge_u32 s32, {KVRING + 3*32768}")
                p.salu("s_cselect_b32 s33, 98304, 0")
                p.salu("s_sub_u32 s32, s32, s33")
        for i in range(4): ops.append(lambda i=i: k(i))
        for i in range(4): ops.append(lambda i=i: v(i))
        return ops
    def run(ops):
        for o in ops: o()
    if not opts.get("kv0late"): run(kv_ops())
    L = 0
    p.valu(f"v_lshrrev_b32 v{T+2}, 5, v{L}", wr=[T+2], rd=[L])
    p.valu(f"v_bfe_u32 v{T+4}, v{L}, 2, 2", wr=[T+4], rd=[L])
    p.valu(f"v_lshl_add_u32 v{T+5}, v{T+2}, 3, v{T+4}", wr=[T+5], rd=[T+2, T+4])
    p.valu(f"v_lshlrev_b32 v{T+5}, 8, v{T+5}", wr=[T+5], rd=[T+5])
    p.valu(f"v_bfe_u32 v{T+6}, v{L}, 4, 1", wr=[T+6], rd=[L])
    p.valu(f"v_lshl_add_u32 v{T+5}, v{T+6}, 5, v{T+5}", wr=[T+5], rd=[T+6, T+5])
    p.valu(f"v_and_b32 v{T+6}, 1, v{L}", wr=[T+6], rd=[L])
    p.valu(f"v_lshl_add_u32 v{T+5}, v{T+6}, 4, v{T+5}", wr=[T+5], rd=[T+6, T+5])
    p.valu(f"v_bfe_u32 v{T+6}, v{L}, 1, 1", wr=[T+6], rd=[L])
    p.valu(f"v_lshl_add_u32 v{T+5}, v{T+6}, 3, v{T+5}", wr=[T+5], rd=[T+6, T+5])
    for b in range(4):
        p.valu(f"v_xor_b32 v{T+6}, {b}, v{T+4}", wr=[T+6], rd=[T+4])
        p.valu(f"v_lshl_add_u32 v{aW+b}, v{T+6}, 6, v{T+5}", wr=[aW+b], rd=[T+6, T+5])
        p.valu(f"v_add_u32 v{aWhi+b}, {KVRING+32768}, v{aW+b}", wr=[aWhi+b], rd=[aW+b])
    p.valu(f"v_and_b32 v{T+4}, 31, v{L}", wr=[T+4], rd=[L])
    p.valu(f"v_bfe_u32 v{T+5}, v{L}, 1, 3", wr=[T+5], rd=[L])
    p.valu(f"v_xor_b32 v{T+5}, v{T+5}, v{T+2}", wr=[T+5], rd=[T+5, T+2])
    p.valu(f"v_lshlrev_b32 v{T+5}, 4, v{T+5}", wr=[T+5], rd=[T+5])
    p.valu(f"v_lshl_add_u32 v{T+5}, v{T+4}, 7, v{T+5}", wr=[T+5], rd=[T+4, T+5])
    p.salu("s_add_u32 s33, s30, 16384")
    p.valu(f"v_add_u32 v{T+5}, s33, v{T+5}", wr=[T+5], rd=[T+5])
    for ks in range(4):
        p.valu(f"v_xor_b32 v{aXlo+ks}, {ks*32}, v{T+5}", wr=[aXlo+ks], rd=[T+5])
        p.valu(f"v_add_u32 v{aXhi+ks}, {KVRING+32768}, v{aXlo+ks}", wr=[aXhi+ks], rd=[aXlo+ks])
    p.salu(f"s_mov_b32 s48, {hex(f2u(QSCALE))}")
    def qstep(j, slotbase, groups, xload):
        hi = slotbase >= KVRING
        off0 = slotbase - (KVRING + 32768 if hi else 0)
        aw = aWhi if hi else aW
        ax = aXhi if hi else aXlo
        def wread(ks, blk):
            d = WF + blk * 4
            p.ds_read("ds_read_b64_tr_b16", d, 2, aw + blk, off=off0 + ks*4096)
            p.ds_read("ds_read_b64_tr_b16", d + 2, 2, aw + blk, off=off0 + ks*4096 + 1024)
        X = XR + 16 * j
        if xload: p.ds_read("ds_read_b128", X, 4, ax, off=off0)
        for blk in range(4): wread(0, blk)
        if xload:
            for ks in range(1, 4):
                p.ds_read("ds_read_b128", X + 4*ks, 4, ax + ks, off=off0)
        ops = [o for g in groups for o in g]
        n = len(ops); k = 0
        for ks in range(4):
            for blk in range(4):
                if blk % 2 == 0:
                    pass
                if j == 0 and ks == 0: p.mfma32(QA + 16*blk, WF + blk*4, X, czero=True)
                else: p.mfma32(QA + 16*blk, WF + blk*4, X + ks*4)
                if ks + 1 < 4: wread(ks + 1, blk)
                idx = ks * 4 + blk
                tgt = -(-(idx + 1) * n // 16)
                while k < min(n, tgt):
                    ops[k](); k += 1
        while k < n: ops[k](); k += 1
    def lane_addr(dst, base_s_text):
        p.valu(f"v_mbcnt_lo_u32_b32 v{dst}, -1, 0", wr=[dst])
        p.valu(f"v_mbcnt_hi_u32_b32 v{dst}, -1, v{dst}", wr=[dst], rd=[dst])
        p.valu(f"v_lshlrev_b32 v{dst}, 4, v{dst}", wr=[dst], rd=[dst])
        p.valu(f"v_add_u32 v{dst}, s33, v{dst}", wr=[dst], rd=[dst])
    def qconvert():
        aHW = WF
        p.salu("s_lshl_b32 s33, s3, 13")
        p.salu(f"s_add_u32 s33, s33, {QHAND}")
        lane_addr(aHW, None)
        for blk in range(4):
            for u in range(2):
                base = QA + 16*blk + 8*u
                for i in range(8):
                    p.valu(f"v_mul_f32 v{base+i}, s48, v{base+i}", wr=[base+i], rd=[base+i])
                for i in range(4):
                    p.valu(f"v_cvt_pk_bf16_f32 v{base+i}, v{base+2*i}, v{base+2*i+1}", wr=[base+i], rd=[base+2*i, base+2*i+1])
                p.ds_write("ds_write_b128", aHW, base, 4, off=(blk*2 + u) * 1024)
        p.wait(lgkm=0)
    for j in range(10):
        p.comment(f"P pass0 step {j}")
        p.wait_tag(f"x{j}")
        p.barrier()
        if j == 0: st(1)
        if opts.get("headst"): st(6 + j)
        groups = []
        if j + 3 < 10 and j + 3 >= npre: groups += [w_ops(j + 3, slots0[(j + 3) % 4]), x_ops(j + 3, slots0[(j + 3) % 4])]
        if j in (7, 8) or (opts.get("kv0late") and j == opts.get("kv0late")): groups += [kv_ops()]
        qstep(j, slots0[j % 4], groups, True)
    st(2)
    qconvert()
    p.wait_tag("kv0")
    st(3)
    cur[0] = 1
    ACC = 64
    stage = [[144 + 4*i for i in range(18)], [4*i for i in range(16)] + [216, 220]]
    voB = 224; vZ = 228; vP = 229; vOne = 231; vPo = 232
    def out_map():
        p.salu("s_and_b32 s4, s2, 7"); p.salu("s_lshr_b32 s5, s2, 3")
        p.salu("s_lshr_b32 s33, s4, 1"); p.salu("s_lshl_b32 s33, s33, 3"); p.salu("s_lshr_b32 s35, s5, 2"); p.salu("s_add_u32 s33, s33, s35")
        p.salu("s_and_b32 s4, s4, 1"); p.salu("s_lshl_b32 s4, s4, 2"); p.salu("s_and_b32 s5, s5, 3"); p.salu("s_add_u32 s5, s4, s5")
        p.salu("s_mov_b32 s4, s33")
    def frag_bases(kstep0_reg):
        p.salu("s_lshl_b32 s33, s4, 9"); p.salu(f"s_add_u32 s33, s33, {kstep0_reg}"); p.salu("s_lshl_b32 s33, s33, 10")
        for q in range(4): p.salu(f"s_add_u32 s{36+q}, s33, {q*131072}")
        p.salu("s_mul_i32 s33, s5, 640"); p.salu(f"s_add_u32 s33, s33, {kstep0_reg}"); p.salu("s_lshl_b32 s33, s33, 10")
        for nb in range(5): p.salu(f"s_add_u32 s{sAr[nb]}, s33, {WOT + nb*131072}")
    sAr = [40, 41, 42, 43, 46]
    LDF = " sc1"
    def sig(off_ops):
        p.salu("s_cmp_lg_u32 s3, 0")
        lb = f"{name}_ns{len(p.out)}"
        p.branch(f"s_cbranch_scc1 {lb}")
        for o in off_ops: p.salu(o)
        p.salu("s_mov_b64 exec, 1")
        p.raw(f"    buffer_atomic_add v{vOne}, v{vZ}, s[16:19], s33 offen sc1")
        p.salu("s_mov_b64 exec, -1")
        p.label(lb)
    def signal_w():
        srd(p, 16, 58, 256)
        p.valu(f"v_mov_b32 v{vZ}, 0", wr=[vZ]); p.valu(f"v_mov_b32 v{vOne}, 1", wr=[vOne])
        sig(["s_mov_b32 s33, 0"])
    def signal_and_setup():
        sig(["s_lshl_b32 s33, s7, 2", "s_add_u32 s33, s33, 64"])
        for r in range(80): p.valu(f"v_mov_b32 v{ACC+r}, 0", wr=[ACC+r])
    def poll_issue():
        p.salu("s_mov_b64 exec, 3")
        p.raw(f"    buffer_load_dword v{vP}, v{vPo}, s[16:19], 0 offen sc1")
        p.salu("s_mov_b64 exec, -1")
    def poll_check(dst):
        p.raw(f"    v_readlane_b32 s33, v{vP}, 0\n    v_readlane_b32 s35, v{vP}, 1\n    s_nop 3")
        p.salu("s_cmp_ge_u32 s33, 256"); p.salu("s_cselect_b32 s33, 1, 0")
        p.salu("s_cmp_ge_u32 s35, 16"); p.salu(f"s_cselect_b32 {dst}, s33, 0")
    def o1_issue(par):
        st_ = stage[par]
        for kk in range(2):
            for nb in range(5):
                p.bload(st_[kk*9 + nb], 4, voB, "s[24:27]", f"s{sAr[nb]}", off=kk*1024, flags=LDF)
            for q in range(4):
                p.bload(st_[kk*9 + 5 + q], 4, voB, "s[24:27]", f"s{36+q}", off=kk*1024, flags=LDF)
        for r in sAr + [36, 37, 38, 39]: p.salu(f"s_add_u32 s{r}, s{r}, 2048")
    def o1_compute(par):
        st_ = stage[par]
        p.out.append(Ins("s_nop 0", "nop", states=25))
        for kk in range(2):
            for nb in range(5):
                for q in range(4):
                    p.mfma16(ACC + (nb*4 + q)*4, st_[kk*9 + nb], st_[kk*9 + 5 + q])
    def ohand_store():
        p.comment("O handoff store")
        aO = WF; voO = WF + 1
        p.salu("s_lshl_b32 s33, s3, 13"); p.salu(f"s_add_u32 s33, s33, {OHAND}")
        lane_addr(aO, None)
        for u in range(8): p.ds_read("ds_read_b128", XR + 4*u, 4, aO, off=u * 1024)
        p.valu(f"v_mbcnt_lo_u32_b32 v{voO+1}, -1, 0", wr=[voO+1])
        p.valu(f"v_mbcnt_hi_u32_b32 v{voO+1}, -1, v{voO+1}", wr=[voO+1], rd=[voO+1])
        p.valu(f"v_bfe_u32 v{voO}, v{voO+1}, 4, 1", wr=[voO], rd=[voO+1])
        p.valu(f"v_lshlrev_b32 v{voO}, 17, v{voO}", wr=[voO], rd=[voO])
        p.valu(f"v_and_b32 v{voO+2}, 15, v{voO+1}", wr=[voO+2], rd=[voO+1])
        p.valu(f"v_lshl_add_u32 v{voO}, v{voO+2}, 4, v{voO}", wr=[voO], rd=[voO+2, voO])
        p.valu(f"v_lshrrev_b32 v{voO+2}, 5, v{voO+1}", wr=[voO+2], rd=[voO+1])
        p.valu(f"v_lshl_add_u32 v{voO}, v{voO+2}, 8, v{voO}", wr=[voO], rd=[voO+2, voO])
        p.salu("s_lshl_b32 s35, s7, 3"); p.salu("s_lshl_b32 s33, s3, 1"); p.salu("s_add_u32 s35, s35, s33")
        p.salu("s_lshl_b32 s35, s35, 7"); p.salu("s_lshl_b32 s33, s6, 2"); p.salu("s_add_u32 s35, s35, s33"); p.salu("s_lshl_b32 s35, s35, 10")
        for u in range(8):
            if not opts.get("nost"): p.bstore(XR + 4*u, 4, voO, "s[24:27]", "s35", off=(u >> 1) * 1024 + (u & 1) * 512, tag="ost", flags=STF)
    def wot_issue():
        srd(p, 16, 52, 4096 * 640 * 2)
        Tm = XR
        p.valu(f"v_mbcnt_lo_u32_b32 v{Tm+8}, -1, 0", wr=[Tm+8])
        p.valu(f"v_mbcnt_hi_u32_b32 v{Tm+8}, -1, v{Tm+8}", wr=[Tm+8], rd=[Tm+8])
        p.salu("s_mov_b32 s33, 0x1999999a")
        for i in range(5):
            p.valu(f"v_add_u32 v{Tm+5}, {64*i}, v{Tm+8}", wr=[Tm+5], rd=[Tm+8])
            p.valu(f"v_mul_hi_u32 v{Tm+6}, v{Tm+5}, s33", wr=[Tm+6], rd=[Tm+5])
            p.valu(f"v_mul_u32_u24 v{Tm+7}, 10, v{Tm+6}", wr=[Tm+7], rd=[Tm+6])
            p.valu(f"v_sub_u32 v{Tm+7}, v{Tm+5}, v{Tm+7}", wr=[Tm+7], rd=[Tm+5, Tm+7])
            p.valu(f"v_mul_u32_u24 v{Tm+6}, 1280, v{Tm+6}", wr=[Tm+6], rd=[Tm+6])
            p.valu(f"v_lshl_add_u32 v{Tm+i}, v{Tm+7}, 4, v{Tm+6}", wr=[Tm+i], rd=[Tm+7, Tm+6])
        p.salu("s_lshr_b32 s35, s2, 1"); p.salu(f"s_mul_i32 s35, s35, {32*1280}")
        p.salu("s_and_b32 s33, s2, 1"); p.salu("s_mul_i32 s33, s33, 640"); p.salu("s_add_u32 s35, s35, s33")
        p.salu("s_mul_i32 s33, s3, 160"); p.salu("s_add_u32 s35, s35, s33")
        p.salu("s_mul_i32 s51, s3, 5120"); p.salu(f"s_add_u32 s51, s51, {OHAND}")
        for k in range(5):
            p.salu(f"s_add_u32 m0, s51, {k*1024}", swr=["m0"])
            p.dma(Tm + k, "s[16:19]", "s35", tag="wot", flags=" nt")
    def wot_store():
        Tm = XR
        p.wait_tag("wot")
        L = Tm + 8
        p.valu(f"v_lshrrev_b32 v{Tm}, 5, v{L}", wr=[Tm], rd=[L])
        p.valu(f"v_bfe_u32 v{Tm+1}, v{L}, 4, 1", wr=[Tm+1], rd=[L])
        p.valu(f"v_bfe_u32 v{Tm+2}, v{L}, 2, 2", wr=[Tm+2], rd=[L])
        p.valu(f"v_lshl_add_u32 v{Tm+2}, v{Tm+1}, 2, v{Tm+2}", wr=[Tm+2], rd=[Tm+1, Tm+2])
        p.valu(f"v_lshl_add_u32 v{Tm+2}, v{Tm}, 4, v{Tm+2}", wr=[Tm+2], rd=[Tm, Tm+2])
        p.valu(f"v_mul_u32_u24 v{Tm+2}, 160, v{Tm+2}", wr=[Tm+2], rd=[Tm+2])
        p.valu(f"v_and_b32 v{Tm+1}, 3, v{L}", wr=[Tm+1], rd=[L])
        p.valu(f"v_lshl_add_u32 v{Tm+2}, v{Tm+1}, 3, v{Tm+2}", wr=[Tm+2], rd=[Tm+1, Tm+2])
        p.valu(f"v_add_u32 v{Tm+2}, s51, v{Tm+2}", wr=[Tm+2], rd=[Tm+2])
        for nb in range(5):
            d = Tm + 16 + nb*4
            p.ds_read("ds_read_b64_tr_b16", d, 2, Tm + 2, off=nb*32)
            p.ds_read("ds_read_b64_tr_b16", d + 2, 2, Tm + 2, off=nb*32 + 1280)
        p.valu(f"v_lshlrev_b32 v{Tm+3}, 4, v{L}", wr=[Tm+3], rd=[L])
        p.salu("s_and_b32 s33, s2, 1"); p.salu("s_mul_i32 s33, s33, 20"); p.salu("s_mul_i32 s35, s3, 5"); p.salu("s_add_u32 s33, s33, s35")
        p.salu("s_lshl_b32 s33, s33, 7"); p.salu("s_lshr_b32 s35, s2, 1"); p.salu("s_add_u32 s33, s33, s35"); p.salu("s_lshl_b32 s33, s33, 10")
        p.salu(f"s_add_u32 s35, s33, {hex(WOT)}")
        for nb in range(5):
            p.salu(f"s_add_u32 s33, s35, {nb*131072}")
            p.bstore(Tm + 16 + nb*4, 4, Tm + 3, "s[24:27]", "s33", tag="wotst", flags=STF)
    for t in range(19):
        p.comment(f"P step t={t}")
        p.barrier()
        if t in (16, 17): st({16: 6, 17: 7}[t])
        groups = []
        if t == 13 and not opts.get("nowot"): wot_issue()
        if t == 14 and not opts.get("nowot"): wot_store()
        if t == 16: signal_w()
        if t == 18: signal_and_setup()
        if t >= 1: groups.append(kv_ops())
        j = t - 2
        if t == 1:
            p.salu(f"s_add_u32 s28, s28, {16*256}")
            groups += [w_ops(jj, jj * 16384) for jj in range(3)]
        if 0 <= j < 10:
            if j + 3 < 10: groups.append(w_ops(j + 3, ((j + 3) % 4) * 16384))
            qstep(j, (j % 4) * 16384, groups, False)
        else:
            for g in groups: run(g)
        if t == 12: qconvert()
        p.wait_tag(f"kv{t+1}")
        if 0 <= t - 1 < 10: p.wait_tag(f"w{t-1}")
    st(4)
    st(4)
    p.salu("s_mov_b32 s47, 19")
    p.label(f"{name}_Ploop")
    p.barrier()
    p.reset_tracking()
    run(kv_ops("kvn"))
    p.raw("    s_waitcnt vmcnt(8)")
    p.salu("s_add_u32 s47, s47, 1")
    p.salu("s_cmp_lt_u32 s47, 30")
    p.branch(f"s_cbranch_scc1 {name}_Ploop")
    p.barrier()
    p.reset_tracking()
    out_map()
    p.salu("s_lshr_b32 s51, s4, 1"); p.salu("s_lshl_b32 s51, s51, 2"); p.salu("s_add_u32 s51, s51, 64")
    p.valu(f"v_mbcnt_lo_u32_b32 v{vPo+1}, -1, 0", wr=[vPo+1])
    p.valu(f"v_mbcnt_hi_u32_b32 v{vPo+1}, -1, v{vPo+1}", wr=[vPo+1], rd=[vPo+1])
    p.valu(f"v_cmp_eq_u32 vcc, 0, v{vPo+1}", rd=[vPo+1], swr=["vcc"])
    p.valu(f"v_mov_b32 v{vPo}, s51", wr=[vPo])
    p.nop(2)
    p.valu(f"v_cndmask_b32 v{vPo}, v{vPo}, v{vZ}, vcc", wr=[vPo], rd=[vPo, vZ])
    p.salu("s_cmp_lg_u32 s3, 0")
    p.branch(f"s_cbranch_scc1 {name}_np30")
    poll_issue()
    p.label(f"{name}_np30")
    p.raw("    s_waitcnt vmcnt(1)")
    p.raw("    s_cmp_eq_u32 s3, 0\n    s_cbranch_scc1 %s_w30\n    s_waitcnt vmcnt(0)\n%s_w30:" % (name, name))
    p.barrier()
    p.raw("    s_waitcnt vmcnt(0)")
    p.salu("s_cmp_lg_u32 s3, 0")
    p.branch(f"s_cbranch_scc1 {name}_np31")
    poll_check("s35")
    p.raw(f"    v_mov_b32 v{vP+1}, s35\n    ds_write_b32 v{vZ}, v{vP+1}\n    s_waitcnt lgkmcnt(0)")
    p.label(f"{name}_np31")
    st(5)
    p.raw("    s_waitcnt vmcnt(0)")
    p.barrier()
    p.salu("s_add_u32 s3, s3, 4")
    p.branch(f"s_branch {name}_Tail")

    p.label(f"{name}_A")
    p.out.append(Ins("s_nop 4", "nop", states=25))
    p.reset_tracking()
    O = 64; S0 = 128; S1 = 144; P0 = 160; P1 = 168; KF = 176; VF = 208; Q = 32; C = 16
    aK = 240; aV = 248; LS = 2; T = 4; aH = 14; voO = 15; aOH = 1
    def a_touch():
        TF = " nt"
        D = 200
        k0 = opts.get("touchk0", 4)
        nrow = (10 - k0) * 64
        q = nrow // 4
        srd(p, 16, 42, 640 * 4096 * 2); srd(p, 20, 36, 16 * 128 * 640 * 2)
        ninst = -(-2*q // 64)
        p.salu("s_lshr_b32 s33, s2, 6"); p.salu(f"s_mul_i32 s33, s33, {q}"); p.salu(f"s_add_u32 s33, s33, {k0*64}")
        p.salu("s_lshl_b32 s28, s3, 5"); p.salu("s_add_u32 s33, s33, s28"); p.salu("s_lshl_b32 s33, s33, 13")
        p.salu("s_lshl_b32 s28, s6, 8"); p.salu("s_add_u32 s33, s33, s28")
        p.valu(f"v_lshrrev_b32 v{T}, 1, v0", wr=[T], rd=[0])
        p.valu(f"v_lshlrev_b32 v{T}, 13, v{T}", wr=[T], rd=[T])
        p.valu(f"v_and_b32 v{T+1}, 1, v0", wr=[T+1], rd=[0])
        p.valu(f"v_lshl_add_u32 v{T}, v{T+1}, 7, v{T}", wr=[T], rd=[T+1, T])
        p.bload(D, 1, T, "s[16:19]", "s33", flags=TF)
        if ninst > 4:
            p.salu(f"s_add_u32 s33, s33, {128 << 13}")
            p.bload(D + 1, 1, T, "s[16:19]", "s33", flags=TF)
        p.salu("s_lshr_b32 s33, s2, 3"); p.salu("s_and_b32 s33, s33, 7"); p.salu("s_lshl_b32 s33, s33, 4")
        p.salu("s_lshl_b32 s28, s3, 3"); p.salu("s_add_u32 s33, s33, s28"); p.salu("s_mul_i32 s33, s33, 1280")
        p.salu("s_mul_i32 s28, s7, 163840"); p.salu("s_add_u32 s33, s33, s28"); p.salu(f"s_add_u32 s33, s33, {k0*128}")
        p.salu("s_cmp_ge_u32 s3, 2"); p.salu("s_cselect_b32 s33, 0x8000000, s33")
        p.valu(f"v_lshrrev_b32 v{T}, 3, v0", wr=[T], rd=[0])
        p.valu(f"v_mul_u32_u24 v{T}, 1280, v{T}", wr=[T], rd=[T])
        p.valu(f"v_and_b32 v{T+1}, 7, v0", wr=[T+1], rd=[0])
        p.valu(f"v_lshl_add_u32 v{T}, v{T+1}, 7, v{T}", wr=[T], rd=[T+1, T])
        p.bload(D + 2, 1, T, "s[20:23]", "s33", flags=TF)
        p.reset_tracking()
    srd(p, 24, 44, 128 * 128 * 1024)
    p.valu(f"v_and_b32 v{T+1}, 15, v0", wr=[T+1], rd=[0])
    p.valu(f"v_and_b32 v{T}, 31, v0", wr=[T], rd=[0])
    p.valu(f"v_lshrrev_b32 v{T+2}, 5, v0", wr=[T+2], rd=[0])
    p.valu(f"v_xor_b32 v{T+3}, v{T+2}, v{T+1}", wr=[T+3], rd=[T+2, T+1])
    p.valu(f"v_lshlrev_b32 v{T+3}, 4, v{T+3}", wr=[T+3], rd=[T+3])
    p.valu(f"v_lshl_add_u32 v{T+3}, v{T}, 8, v{T+3}", wr=[T+3], rd=[T, T+3])
    p.valu(f"v_add_u32 v{T+3}, {KVRING}, v{T+3}", wr=[T+3], rd=[T+3])
    for j in range(8):
        p.valu(f"v_xor_b32 v{aK+j}, {j*32}, v{T+3}", wr=[aK+j], rd=[T+3])
    p.valu(f"v_bfe_u32 v{T+4}, v0, 2, 2", wr=[T+4], rd=[0])
    p.valu(f"v_lshl_add_u32 v{T+5}, v{T+2}, 2, v{T+4}", wr=[T+5], rd=[T+2, T+4])
    p.valu(f"v_lshlrev_b32 v{T+5}, 8, v{T+5}", wr=[T+5], rd=[T+5])
    p.valu(f"v_bfe_u32 v{T+6}, v0, 4, 1", wr=[T+6], rd=[0])
    p.valu(f"v_lshl_add_u32 v{T+5}, v{T+6}, 5, v{T+5}", wr=[T+5], rd=[T+6, T+5])
    p.valu(f"v_and_b32 v{T+6}, 3, v0", wr=[T+6], rd=[0])
    p.valu(f"v_lshl_add_u32 v{T+5}, v{T+6}, 3, v{T+5}", wr=[T+5], rd=[T+6, T+5])
    p.valu(f"v_add_u32 v{T+5}, {KVRING + 16384}, v{T+5}", wr=[T+5], rd=[T+5])
    for b in range(4):
        p.valu(f"v_xor_b32 v{T+6}, {b}, v{T+4}", wr=[T+6], rd=[T+4])
        p.valu(f"v_lshl_add_u32 v{aV+b}, v{T+6}, 6, v{T+5}", wr=[aV+b], rd=[T+6, T+5])
    p.valu(f"v_bfe_u32 v{T+6}, v0, 4, 1", wr=[T+6], rd=[0])
    p.valu(f"v_lshlrev_b32 v{T+6}, 17, v{T+6}", wr=[T+6], rd=[T+6])
    p.valu(f"v_lshl_add_u32 v{T+6}, v{T+1}, 4, v{T+6}", wr=[T+6], rd=[T+1, T+6])
    p.valu(f"v_lshl_add_u32 v{voO}, v{T+2}, 8, v{T+6}", wr=[voO], rd=[T+2, T+6])
    p.salu("s_lshl_b32 s34, s7, 3"); p.salu("s_lshl_b32 s33, s3, 1"); p.salu("s_add_u32 s34, s34, s33")
    p.salu("s_lshl_b32 s34, s34, 7"); p.salu("s_lshl_b32 s33, s6, 2"); p.salu("s_add_u32 s34, s34, s33")
    p.salu("s_add_u32 s34, s34, 64"); p.salu("s_lshl_b32 s34, s34, 10")
    p.salu("s_lshl_b32 s33, s3, 13")
    p.valu(f"v_lshlrev_b32 v{aH}, 4, v0", wr=[aH], rd=[0])
    p.valu(f"v_add_u32 v{aH}, s33, v{aH}", wr=[aH], rd=[aH])
    p.valu(f"v_add_u32 v{aOH}, {OHAND}, v{aH}", wr=[aOH], rd=[aH])
    p.salu("s_mov_b32 s49, -65536"); p.salu("s_mov_b32 s50, 32768")
    p.salu("s_mov_b32 s35, 0")
    p.salu("s_mov_b32 s46, 0")
    tb = opts.get("touch", 0)
    if tb == 1:
        p.raw("    s_sleep %d" % opts.get("tdelay", 10))
        a_touch()
    for i in range(10):
        p.barrier()
        if tb == 2 and i == 0: a_touch()
    st(1); st.cyc(5)
    B = [KF, VF]
    def sm_half(S, P, half):
        ops = []
        b0 = 8 * half
        def addcvt(k):
            ops.append(lambda k=k: p.valu(f"v_add_f32 v{LS}, v{LS}, v{S+k}", wr=[LS], rd=[LS, S+k]))
            ops.append(lambda k=k: p.valu(f"v_add_f32 v{LS+1}, v{LS+1}, v{S+k+1}", wr=[LS+1], rd=[LS+1, S+k+1]))
            ops.append(lambda k=k: p.valu(f"v_cvt_pk_bf16_f32 v{P+k//2}, v{S+k}, v{S+k+1}", wr=[P+k//2], rd=[S+k, S+k+1]))
        for i in range(b0, b0 + 8, 2):
            ops.append(lambda i=i: p.trans(f"v_exp_f32 v{S+i}, v{S+i}", wr=[S+i], rd=[S+i]))
            ops.append(lambda i=i: p.trans(f"v_exp_f32 v{S+i+1}, v{S+i+1}", wr=[S+i+1], rd=[S+i+1]))
            if i >= b0 + 2: addcvt(i - 2)
        addcvt(b0 + 6)
        return ops
    def vread(bank, t, n):
        ks2, blk = n >> 2, n & 3
        d = bank + 4 * n
        ks = 2 * t + ks2
        p.ds_read("ds_read_b64_tr_b16", d, 2, aV + blk, off=ks * 4096)
        p.ds_read("ds_read_b64_tr_b16", d + 2, 2, aV + blk, off=ks * 4096 + 2048)
    def spread(ops, slots, i):
        for _ in range(slots[i]):
            if ops: ops.pop(0)()
    def step(first, par):
        KB = B[par]; VB = B[1 - par]
        p.barrier()
        p.reset_tracking()
        if first:
            for j in range(8):
                p.ds_read("ds_read_b128", Q + 4*j, 4, aH, off=QHAND + j * 1024)
        for j in range(8):
            p.ds_read("ds_read_b128", KB + 4*j, 4, aK + j)
        if first:
            p.valu(f"v_mov_b32 v{LS}, 0", wr=[LS]); p.valu(f"v_mov_b32 v{LS+1}, 0", wr=[LS+1])
            sm = []
        else:
            sm = sm_half(S1, P1, 1)
            for _ in range(12): sm.pop(0)()
        for j in range(8):
            if j == 0: p.wait(lgkm=4)
            if j == 4: p.wait(lgkm=4)
            if j == 0:
                if first: p.mfma32(S0, KB, Q, czero=True)
                else: p.mfma32(S0, KB, Q, C=C)
            else:
                p.mfma32(S0, KB + 4*j, Q + 4*j)
            p.ds_read("ds_read_b128", KB + 4*j, 4, aK + j, off=8192)
            spread(sm, [2, 2, 2, 2, 0, 0, 0, 0], j)
        while sm: sm.pop(0)()
        if first:
            p.valu(f"v_max3_f32 v{T}, v{S0}, v{S0+1}, v{S0+2}", wr=[T], rd=[S0, S0+1, S0+2])
            for i in range(3, 15, 2):
                p.valu(f"v_max3_f32 v{T}, v{T}, v{S0+i}, v{S0+i+1}", wr=[T], rd=[T, S0+i, S0+i+1])
            p.valu(f"v_max_f32 v{T}, v{T}, v{S0+15}", wr=[T], rd=[T, S0+15])
            p.valu(f"v_mov_b32 v{T+1}, v{T}", wr=[T+1], rd=[T])
            p.perm(f"v_permlane32_swap_b32 v{T}, v{T+1}", [T, T+1])
            p.valu(f"v_max_f32 v{T}, v{T}, v{T+1}", wr=[T], rd=[T, T+1])
            for i in range(16):
                p.valu(f"v_sub_f32 v{C+i}, 0, v{T}", wr=[C+i], rd=[T])
            for i in range(16):
                p.valu(f"v_sub_f32 v{S0+i}, v{S0+i}, v{T}", wr=[S0+i], rd=[S0+i, T])
        sm = sm_half(S0, P0, 0)
        for n in range(8):
            if n in (2, 5): p.wait(lgkm=(4 if n == 2 else 6))
            if not first:
                p.mfma32(O + 16*(n & 3), VB + 4*n, P1 + 4*(n >> 2))
            vread(VB, 0, n)
            spread(sm, [0, 0, 4, 4, 3, 3, 3, 3], n)
        while sm: sm.pop(0)()
        sm = sm_half(S0, P0, 1)
        for j in range(8):
            if j in (0, 3, 6): p.wait(lgkm=6)
            if j == 0: p.mfma32(S1, KB, Q, C=C)
            else: p.mfma32(S1, KB + 4*j, Q + 4*j)
            vread(KB, 1, j)
            spread(sm, [3, 3, 3, 3, 2, 2, 2, 2], j)
        while sm: sm.pop(0)()
        p.salu("s_add_u32 s35, s35, 1")
        p.salu("s_cmp_eq_u32 s35, 3")
        p.salu("s_cselect_b32 s33, s49, s50")
        p.salu("s_cselect_b32 s35, 0, s35")
        sm = sm_half(S1, P1, 0)
        adv = [(lambda r=r: p.valu(f"v_add_u32 v{r}, s33, v{r}", wr=[r], rd=[r])) for r in list(range(aK, aK+8)) + list(range(aV, aV+4))]
        for n in range(8):
            if first and n < 4: p.mfma32(O + 16*(n & 3), VB + 4*n, P0 + 4*(n >> 2), czero=True)
            else: p.mfma32(O + 16*(n & 3), VB + 4*n, P0 + 4*(n >> 2))
            if n < 2:
                spread(adv, [6, 6], n)
            spread(sm, [0, 0, 4, 4, 3, 3, 3, 3], n)
        while sm: sm.pop(0)()
        p.wait(lgkm=0)
    p.label(f"{name}_Apair")
    step(True, 0)
    p.salu("s_mov_b32 s47, 8")
    p.label(f"{name}_Aloop")
    step(False, 1)
    p.salu("s_cmp_lt_u32 s47, 8")
    p.branch(f"s_cbranch_scc1 {name}_Anw")
    p.raw("    s_waitcnt vmcnt(0)")
    p.label(f"{name}_Anw")
    p.salu("s_sub_u32 s47, s47, 1")
    p.salu("s_cmp_eq_u32 s47, 0")
    p.branch(f"s_cbranch_scc1 {name}_Aepi")
    step(False, 0)
    p.branch(f"s_branch {name}_Aloop")
    p.label(f"{name}_Aepi")
    p.out.append(Ins("s_nop 0", "nop", states=1))
    sm = sm_half(S1, P1, 1)
    while sm: sm.pop(0)()
    for n in range(8):
        p.mfma32(O + 16*(n & 3), B[1] + 4*n, P1 + 4*(n >> 2))
    p.nop(12)
    p.valu(f"v_add_f32 v{LS}, v{LS}, v{LS+1}", wr=[LS], rd=[LS, LS+1])
    p.valu(f"v_mov_b32 v{T}, v{LS}", wr=[T], rd=[LS])
    p.perm(f"v_permlane32_swap_b32 v{LS}, v{T}", [LS, T])
    p.valu(f"v_add_f32 v{LS}, v{LS}, v{T}", wr=[LS], rd=[LS, T])
    p.salu(f"s_mov_b32 s33, {hex(f2u(2.0**30))}")
    p.valu(f"v_cmp_nlt_f32 vcc, v{LS}, s33", rd=[LS], swr=["vcc"]) if False else p.raw(f"    v_cmp_nlt_f32_e64 vcc, v{LS}, s33")
    p.nop(5)
    p.branch(f"s_cbranch_vccnz {name}_Aslow")
    p.label(f"{name}_Anorm")
    p.out.append(Ins("s_nop 0", "nop", states=25))
    p.reset_tracking()
    p.trans(f"v_rcp_f32 v{T}, v{LS}", wr=[T], rd=[LS])
    for blk in range(4):
        for u in range(2):
            for i in range(8):
                r = O + 16*blk + 8*u + i
                p.valu(f"v_mul_f32 v{r}, v{r}, v{T}", wr=[r], rd=[r, T])
            d = S0 + (blk * 2 + u) * 4
            for i in range(4):
                r = O + 16*blk + 8*u + 2*i
                p.valu(f"v_cvt_pk_bf16_f32 v{d+i}, v{r}, v{r+1}", wr=[d+i], rd=[r, r+1])
    p.salu("s_cmp_eq_u32 s46, 1")
    p.branch(f"s_cbranch_scc1 {name}_Afin")
    p.salu(f"s_sub_u32 s33, s34, {64*1024}")
    for u in range(8):
        p.bstore(S0 + 4*u, 4, voO, "s[24:27]", "s33", off=(u >> 1) * 1024 + (u & 1) * 512, tag="ost", flags=STF)
    p.salu("s_mov_b32 s46, 1")
    p.nop(2)
    st(2); st.cyc(6)
    p.branch(f"s_branch {name}_Apair")
    p.label(f"{name}_Afin")
    st(3); st.cyc(7)
    for u in range(8):
        p.bstore(S0 + 4*u, 4, voO, "s[24:27]", "s34", off=(u >> 1) * 1024 + (u & 1) * 512, tag="ost", flags=STF)
    p.raw("    s_waitcnt vmcnt(0)")
    p.barrier()
    st(4)
    srd(p, 16, 58, 256)
    p.salu("s_cmp_lg_u32 s3, 0")
    p.branch(f"s_cbranch_scc1 {name}_nosigB")
    p.valu("v_mov_b32 v228, 0", wr=[228]); p.valu("v_mov_b32 v231, 1", wr=[231])
    p.salu("s_mov_b64 exec, 1")
    p.salu("s_lshl_b32 s33, s7, 2"); p.salu("s_add_u32 s33, s33, 128")
    p.raw("    buffer_atomic_add v231, v228, s[16:19], s33 offen sc1")
    p.salu("s_mov_b64 exec, -1")
    p.label(f"{name}_nosigB")
    for r in range(80): p.valu(f"v_mov_b32 v{64+r}, 0", wr=[64+r])
    p.label(f"{name}_Tail")
    p.out.append(Ins("s_nop 0", "nop", states=25))
    p.reset_tracking()
    ACC = 64; STG = 144; voB = 2; vZ = 6; vP = 8
    srd(p, 24, 44, 0x2000000)
    srd(p, 20, 56, 2048 * 640 * 2)
    out_map()
    p.valu(f"v_mbcnt_lo_u32_b32 v{voB}, -1, 0", wr=[voB])
    p.valu(f"v_mbcnt_hi_u32_b32 v{voB}, -1, v{voB}", wr=[voB], rd=[voB])
    p.valu(f"v_mov_b32 v0, v{voB}", wr=[0], rd=[voB])
    p.valu(f"v_lshlrev_b32 v{voB}, 4, v{voB}", wr=[voB], rd=[voB])
    p.valu(f"v_add_u32 v{voB+1}, 4096, v{voB}", wr=[voB+1], rd=[voB])
    p.valu(f"v_mov_b32 v{vZ}, 0", wr=[vZ])
    ZF = vZ + 1
    def tail_poll(lbl, off_expr):
        p.salu("s_cmp_lg_u32 s3, 0")
        p.branch(f"s_cbranch_scc1 {name}_{lbl}d")
        p.salu("s_mov_b32 s63, 0")
        p.label(f"{name}_{lbl}")
        p.salu("s_mov_b64 exec, 3")
        p.raw(f"    buffer_load_dword v{vP}, v{ZF}, s[16:19], 0 offen sc1")
        p.salu("s_mov_b64 exec, -1")
        p.raw("    s_waitcnt vmcnt(0)")
        p.raw(f"    v_readlane_b32 s33, v{vP}, 0\n    v_readlane_b32 s35, v{vP}, 1\n    s_nop 3")
        p.salu("s_cmp_ge_u32 s33, 256"); p.salu("s_cselect_b32 s60, 1, 0")
        p.salu("s_cmp_ge_u32 s35, 16"); p.salu("s_cselect_b32 s60, s60, 0")
        p.salu("s_cmp_lg_u32 s60, 0")
        p.branch(f"s_cbranch_scc1 {name}_{lbl}d")
        p.raw(f"    s_sleep {opts.get('tsleep', 16)}")
        p.salu("s_add_u32 s63, s63, 1")
        p.salu("s_cmp_lt_u32 s63, 0x80000")
        p.branch(f"s_cbranch_scc1 {name}_{lbl}")
        p.label(f"{name}_{lbl}d")
    def set_zf(off):
        p.salu("s_lshr_b32 s51, s4, 1"); p.salu("s_lshl_b32 s51, s51, 2"); p.salu(f"s_add_u32 s51, s51, {off}")
        p.valu(f"v_cmp_eq_u32 vcc, 0, v0", rd=[0], swr=["vcc"])
        p.valu(f"v_mov_b32 v{ZF}, s51", wr=[ZF])
        p.nop(2)
        p.valu(f"v_cndmask_b32 v{ZF}, v{ZF}, v{vZ}, vcc", wr=[ZF], rd=[ZF, vZ])
    p.raw(f"    ds_read_b32 v{vP}, v{vZ}\n    s_waitcnt lgkmcnt(0)\n    v_readfirstlane_b32 s60, v{vP}\n    s_nop 3")
    p.salu("s_cmp_lg_u32 s60, 0")
    p.branch(f"s_cbranch_scc1 {name}_Tr1ok")
    set_zf(64)
    tail_poll("Tp1", 64)
    p.barrier()
    p.label(f"{name}_Tr1ok")
    st(8)
    p.reset_tracking()
    p.salu("s_lshl_b32 s62, s3, 3")
    frag_bases("s62")
    p.valu(f"v_add_u32 v{voB+2}, 65536, v{voB}", wr=[voB+2], rd=[voB])
    p.valu(f"v_add_u32 v{voB+3}, 65536, v{voB+1}", wr=[voB+3], rd=[voB+1])
    set_zf(128)
    def vo(i): return voB + (2 if i >= 8 else 0) + ((i & 7) >> 2)
    def issueA(i):
        base = STG + (i % 3) * 36
        for nb in range(5):
            p.bload(base + 4*nb, 4, vo(i), "s[24:27]", f"s{sAr[nb]}", off=(i & 3) * 1024, tag=f"a{i}", flags=" sc1")
    def issueB(i):
        base = STG + (i % 3) * 36
        for q in range(4):
            p.bload(base + 20 + 4*q, 4, vo(i), "s[24:27]", f"s{36+q}", off=(i & 3) * 1024, tag=f"b{i}", flags=" sc1")
    issueA(0); issueB(0); issueA(1); issueB(1)
    for i in range(16):
        base = STG + (i % 3) * 36
        if i + 2 < 16:
            if i + 2 == 8:
                issueA(8)
                if st.on: st(11)
                vmsave = list(p.vm)
                tail_poll("Tp2", 128)
                p.barrier()
                p.vm = vmsave
                issueB(8)
            else:
                issueA(i + 2); issueB(i + 2)
        for nb in range(5):
            for q in range(4):
                p.mfma16(ACC + (nb*4 + q)*4, base + 4*nb, base + 20 + 4*q)
    st(9)
    T = 8
    p.salu("s_mul_i32 s33, s3, 20480")
    p.valu(f"v_add_u32 v{T}, s33, v{voB}", wr=[T], rd=[voB])
    for t in range(20):
        p.ds_write("ds_write_b128", T, ACC + 4*t, 4, off=t*1024)
    p.wait(lgkm=0)
    p.barrier()
    p.valu(f"v_and_b32 v{T+1}, 15, v0", wr=[T+1], rd=[0])
    p.valu(f"v_mul_u32_u24 v{T+1}, 1280, v{T+1}", wr=[T+1], rd=[T+1])
    p.valu(f"v_lshrrev_b32 v{T+2}, 4, v0", wr=[T+2], rd=[0])
    p.valu(f"v_lshl_add_u32 v{T+1}, v{T+2}, 3, v{T+1}", wr=[T+1], rd=[T+2, T+1])
    p.salu(f"s_mul_i32 s34, s4, {64*1280}")
    p.salu("s_mul_i32 s33, s5, 160"); p.salu("s_add_u32 s34, s34, s33")
    p.salu("s_lshl_b32 s35, s3, 10")
    p.valu(f"v_add_u32 v{T+3}, s35, v{voB}", wr=[T+3], rd=[voB])
    for rnd in range(3):
        if rnd == 2:
            p.salu("s_cmp_ge_u32 s3, 4")
            p.branch(f"s_cbranch_scc1 {name}_fin")
        p.salu(f"s_add_u32 s40, s3, {8*rnd}")
        p.salu("s_lshr_b32 s41, s40, 2"); p.salu("s_and_b32 s42, s40, 3")
        p.salu("s_lshl_b32 s41, s41, 5")
        p.salu(f"s_mul_i32 s42, s42, {16*1280}")
        p.salu("s_add_u32 s41, s41, s42"); p.salu("s_add_u32 s41, s41, s34")
        for w in range(8):
            off = w * 20480 + rnd * 8192
            if off < 65536:
                p.ds_read("ds_read_b128", ACC + 4*w, 4, T + 3, off=off)
            else:
                p.valu(f"v_add_u32 v{T+4}, {off}, v{T+3}", wr=[T+4], rd=[T+3])
                p.ds_read("ds_read_b128", ACC + 4*w, 4, T + 4)
        for w in range(1, 8):
            for r in range(4):
                p.valu(f"v_add_f32 v{ACC+r}, v{ACC+r}, v{ACC+4*w+r}", wr=[ACC+r], rd=[ACC+r, ACC+4*w+r])
        p.valu(f"v_cvt_pk_bf16_f32 v{ACC+40}, v{ACC}, v{ACC+1}", wr=[ACC+40], rd=[ACC, ACC+1])
        p.valu(f"v_cvt_pk_bf16_f32 v{ACC+41}, v{ACC+2}, v{ACC+3}", wr=[ACC+41], rd=[ACC+2, ACC+3])
        p.bstore(ACC + 40, 2, T + 1, "s[20:23]", "s41", flags=["", " nt", " sc1", " sc0 sc1"][opts.get("outf", 0)])
        p.nop(2)
    p.label(f"{name}_fin")
    if st.on:
        p.raw("    s_waitcnt vmcnt(0)")
        st(10); st.dump("s3")
    p.branch(f"s_branch {name}_done")
    p.label(f"{name}_Aslow")
    p.out.append(Ins("s_nop 0", "nop", states=25))
    p.reset_tracking()
    O = 64; S0 = 128; P0 = 160; KF = 176; VF = 208; Q = 32; LS = 2; T = 4
    M = 5; AL = 6; vK = 7; vV = 8; TM = 9; TN = 10
    srd(p, 8, 38, 0x8000000); srd(p, 12, 40, 0x8000000)
    p.salu("s_lshl_b32 s36, s7, 5"); p.salu("s_add_u32 s36, s36, s6"); p.salu("s_lshl_b32 s33, s46, 4"); p.salu("s_add_u32 s36, s36, s33"); p.salu("s_lshl_b32 s36, s36, 18")
    p.valu(f"v_mbcnt_lo_u32_b32 v{TM}, -1, 0", wr=[TM])
    p.valu(f"v_mbcnt_hi_u32_b32 v{TM}, -1, v{TM}", wr=[TM], rd=[TM])
    p.valu(f"v_and_b32 v{TN}, 31, v{TM}", wr=[TN], rd=[TM])
    p.valu(f"v_lshrrev_b32 v{TM}, 5, v{TM}", wr=[TM], rd=[TM])
    p.valu(f"v_lshlrev_b32 v{vK}, 8, v{TN}", wr=[vK], rd=[TN])
    p.valu(f"v_lshl_add_u32 v{vK}, v{TM}, 4, v{vK}", wr=[vK], rd=[TM, vK])
    p.valu(f"v_lshlrev_b32 v{vV}, 1, v{TN}", wr=[vV], rd=[TN])
    p.valu(f"v_lshl_add_u32 v{vV}, v{TM}, 10, v{vV}", wr=[vV], rd=[TM, vV])
    for r in range(64): p.valu(f"v_mov_b32 v{O+r}, 0", wr=[O+r])
    p.valu(f"v_mov_b32 v{LS}, 0", wr=[LS])
    p.valu(f"v_mov_b32 v{M}, 0xff7fffff", wr=[M])
    p.salu("s_mov_b32 s37, 0")
    p.label(f"{name}_Asl")
    p.reset_tracking()
    for j in range(8): p.bload(KF + 4*j, 4, vK, "s[8:11]", "s36", off=j*32)
    TV = 144
    for ks2 in range(2):
        for bp in range(2):
            for bb in range(2):
                blk = 2*bp + bb
                for i in range(8):
                    key = 16*ks2 + (i if i < 4 else 8 + i - 4)
                    p.salu(f"s_add_u32 s33, s36, {key*256 + blk*64}")
                    p.raw(f"    buffer_load_ushort v{TV + 8*bb + i}, v{vV}, s[12:15], s33 offen")
            p.raw("    s_waitcnt vmcnt(0)")
            for bb in range(2):
                d = VF + (ks2*4 + 2*bp + bb)*4
                for r in range(4):
                    p.valu(f"v_lshl_or_b32 v{d+r}, v{TV+8*bb+2*r+1}, 16, v{TV+8*bb+2*r}", wr=[d+r], rd=[TV+8*bb+2*r+1, TV+8*bb+2*r])
    p.raw("    s_waitcnt vmcnt(0)")
    p.reset_tracking()
    for j in range(8):
        if j == 0: p.mfma32(S0, KF, Q, czero=True)
        else: p.mfma32(S0, KF + 4*j, Q + 4*j)
    p.valu(f"v_max3_f32 v{TM}, v{S0}, v{S0+1}, v{S0+2}", wr=[TM], rd=[S0, S0+1, S0+2])
    for i in range(3, 15, 2): p.valu(f"v_max3_f32 v{TM}, v{TM}, v{S0+i}, v{S0+i+1}", wr=[TM], rd=[TM, S0+i, S0+i+1])
    p.valu(f"v_max_f32 v{TM}, v{TM}, v{S0+15}", wr=[TM], rd=[TM, S0+15])
    p.valu(f"v_mov_b32 v{TN}, v{TM}", wr=[TN], rd=[TM])
    p.perm(f"v_permlane32_swap_b32 v{TM}, v{TN}", [TM, TN])
    p.valu(f"v_max3_f32 v{TM}, v{TM}, v{TN}, v{M}", wr=[TM], rd=[TM, TN, M])
    p.valu(f"v_sub_f32 v{AL}, v{M}, v{TM}", wr=[AL], rd=[M, TM])
    p.trans(f"v_exp_f32 v{AL}, v{AL}", wr=[AL], rd=[AL])
    p.valu(f"v_mov_b32 v{M}, v{TM}", wr=[M], rd=[TM])
    p.valu(f"v_mul_f32 v{LS}, v{LS}, v{AL}", wr=[LS], rd=[LS, AL])
    for r in range(64): p.valu(f"v_mul_f32 v{O+r}, v{O+r}, v{AL}", wr=[O+r], rd=[O+r, AL])
    for i in range(16):
        p.valu(f"v_sub_f32 v{S0+i}, v{S0+i}, v{M}", wr=[S0+i], rd=[S0+i, M])
        p.trans(f"v_exp_f32 v{S0+i}, v{S0+i}", wr=[S0+i], rd=[S0+i])
    for i in range(16): p.valu(f"v_add_f32 v{LS}, v{LS}, v{S0+i}", wr=[LS], rd=[LS, S0+i])
    for i in range(8): p.valu(f"v_cvt_pk_bf16_f32 v{P0+i}, v{S0+2*i}, v{S0+2*i+1}", wr=[P0+i], rd=[S0+2*i, S0+2*i+1])
    for n in range(8): p.mfma32(O + 16*(n & 3), VF + 4*n, P0 + 4*(n >> 2))
    p.nop(16)
    p.salu("s_add_u32 s36, s36, 8192")
    p.salu("s_add_u32 s37, s37, 1")
    p.salu("s_cmp_lt_u32 s37, 32")
    p.branch(f"s_cbranch_scc1 {name}_Asl")
    p.valu(f"v_mov_b32 v{T}, v{LS}", wr=[T], rd=[LS])
    p.perm(f"v_permlane32_swap_b32 v{LS}, v{T}", [LS, T])
    p.valu(f"v_add_f32 v{LS}, v{LS}, v{T}", wr=[LS], rd=[LS, T])
    p.nop(2)
    p.branch(f"s_branch {name}_Anorm")
    p.label(f"{name}_done")
    p.raw("    s_endpgm")
    return p, name

def gen_k2(opts):
    p = Prog()
    name = opts.get("name", "k2_kernel")
    K2F = ["", " nt", " sc1", " sc0 sc1", " sc0"][opts.get("k2nt", 0)]
    st = Stamps(p, opts, key="wgt2")
    p.raw(f".globl {name}\n.p2align 8\n.type {name},@function\n{name}:")
    p.salu("s_cmp_ge_u32 s2, 256")
    p.branch(f"s_cbranch_scc1 {name}_done")
    p.salu("s_load_dwordx2 s[38:39], s[0:1], 40")
    p.salu("s_load_dwordx2 s[44:45], s[0:1], 56")
    p.valu("v_lshrrev_b32 v1, 6, v0", wr=[1], rd=[0])
    p.valu("v_and_b32 v0, 63, v0", wr=[0], rd=[0])
    p.rfl("s3", 1)
    p.salu("s_and_b32 s4, s2, 7")
    p.salu("s_lshr_b32 s5, s2, 3")
    p.salu("s_lshr_b32 s6, s4, 1"); p.salu("s_lshl_b32 s6, s6, 3"); p.salu("s_lshr_b32 s7, s5, 2"); p.salu("s_add_u32 s6, s6, s7")
    p.salu("s_and_b32 s7, s4, 1"); p.salu("s_lshl_b32 s7, s7, 2"); p.salu("s_and_b32 s5, s5, 3"); p.salu("s_add_u32 s7, s7, s5")
    ACC = 64; ST = 144; voB = 2; T = 4
    p.valu(f"v_lshlrev_b32 v{voB}, 4, v0", wr=[voB], rd=[0])
    p.salu("s_lshl_b32 s29, s6, 9"); p.salu("s_lshl_b32 s33, s3, 4"); p.salu("s_add_u32 s29, s29, s33"); p.salu("s_lshl_b32 s29, s29, 10")
    for q in range(4): p.salu(f"s_add_u32 s{48+q}, s29, {q*131072}")
    p.salu("s_mul_i32 s29, s7, 640"); p.salu("s_add_u32 s29, s29, s33"); p.salu("s_lshl_b32 s29, s29, 10")
    for nb in range(5): p.salu(f"s_add_u32 s{52+nb}, s29, {WOT + nb*131072}")
    p.raw("    s_waitcnt lgkmcnt(0)")
    if st.on:
        for k in range(16): p.raw(f"    s_mov_b32 s{70+k}, 0")
    st(0)
    srd(p, 24, 44, 0x2000000)
    srd(p, 12, 38, 2048 * 640 * 2)
    def issue(i):
        base = ST + (i % 3) * 36
        for nb in range(5):
            p.bload(base + 4*nb, 4, voB + (i >> 2), "s[24:27]", f"s{52+nb}", off=(i & 3) * 1024, tag=f"a{i}", flags=K2F)
        for q in range(4):
            p.bload(base + 20 + 4*q, 4, voB + (i >> 2), "s[24:27]", f"s{48+q}", off=(i & 3) * 1024, tag=f"b{i}", flags=K2F)
    for j in range(1, 4): p.valu(f"v_add_u32 v{voB+j}, {4096*j}, v{voB}", wr=[voB+j], rd=[voB])
    issue(0); issue(1)
    for i in range(16):
        p.comment(f"kstep {i}")
        base = ST + (i % 3) * 36
        if i + 2 < 16: issue(i + 2)
        if i == 1: st(1)
        if i == 8: st(2)
        for nb in range(5):
            for q in range(4):
                if i == 0: p.mfma16(ACC + (nb*4 + q)*4, base + 4*nb, base + 20 + 4*q, czero=True)
                else: p.mfma16(ACC + (nb*4 + q)*4, base + 4*nb, base + 20 + 4*q)
    st(3)
    T = 8
    p.salu("s_mul_i32 s33, s3, 20480")
    p.valu(f"v_add_u32 v{T}, s33, v{voB}", wr=[T], rd=[voB])
    for t in range(20):
        p.ds_write("ds_write_b128", T, ACC + 4*t, 4, off=t*1024)
    p.wait(lgkm=0)
    p.barrier()
    p.valu(f"v_and_b32 v{T+1}, 15, v0", wr=[T+1], rd=[0])
    p.valu(f"v_mul_u32_u24 v{T+1}, 1280, v{T+1}", wr=[T+1], rd=[T+1])
    p.valu(f"v_lshrrev_b32 v{T+2}, 4, v0", wr=[T+2], rd=[0])
    p.valu(f"v_lshl_add_u32 v{T+1}, v{T+2}, 3, v{T+1}", wr=[T+1], rd=[T+2, T+1])
    p.salu(f"s_mul_i32 s34, s6, {64*1280}")
    p.salu("s_mul_i32 s33, s7, 160"); p.salu("s_add_u32 s34, s34, s33")
    p.salu("s_lshl_b32 s35, s3, 10")
    p.valu(f"v_add_u32 v{T+3}, s35, v{voB}", wr=[T+3], rd=[voB])
    st(4)
    for rnd in range(3):
        if rnd == 2:
            p.salu("s_cmp_ge_u32 s3, 4")
            p.branch(f"s_cbranch_scc1 {name}_done")
        p.salu(f"s_add_u32 s40, s3, {8*rnd}")
        p.salu("s_lshr_b32 s41, s40, 2"); p.salu("s_and_b32 s42, s40, 3")
        p.salu("s_lshl_b32 s41, s41, 5")
        p.salu(f"s_mul_i32 s42, s42, {16*1280}")
        p.salu("s_add_u32 s41, s41, s42"); p.salu("s_add_u32 s41, s41, s34")
        for w in range(8):
            off = w * 20480 + rnd * 8192
            if off < 65536:
                p.ds_read("ds_read_b128", ACC + 4*w, 4, T + 3, off=off)
            else:
                p.valu(f"v_add_u32 v{T+4}, {off}, v{T+3}", wr=[T+4], rd=[T+3])
                p.ds_read("ds_read_b128", ACC + 4*w, 4, T + 4)
        for w in range(1, 8):
            for r in range(4):
                p.valu(f"v_add_f32 v{ACC+r}, v{ACC+r}, v{ACC+4*w+r}", wr=[ACC+r], rd=[ACC+r, ACC+4*w+r])
        p.valu(f"v_cvt_pk_bf16_f32 v{ACC+40}, v{ACC}, v{ACC+1}", wr=[ACC+40], rd=[ACC, ACC+1])
        p.valu(f"v_cvt_pk_bf16_f32 v{ACC+41}, v{ACC+2}, v{ACC+3}", wr=[ACC+41], rd=[ACC+2, ACC+3])
        p.bstore(ACC + 40, 2, T + 1, "s[12:15]", "s41", flags=["", " nt", " sc1", " sc0 sc1"][opts.get("outf", 0)])
        p.nop(2)
    if st.on:
        p.raw("    s_waitcnt vmcnt(0)")
        st(5); st.dump("s3")
    p.label(f"{name}_done")
    p.raw("    s_endpgm")
    return p, name

def build(path, opts={}):
    KN = "standalone__mha_block_cached__near_ridge_kernel"
    k1, n1 = gen_k1(dict(opts, name=KN))
    hdr = open("standalone__mha_block_cached__near_ridge.s.ref").read().split("; Override")[0]
    o = [hdr.rstrip()]
    o.append("; @launch grid=(256,1,1) block=(512,1,1) lds=163840")
    o.append('.amdgcn_target "amdgcn-amd-amdhsa--gfx950"\n.text')
    o.append(k1.text())
    o.append('.section .rodata,"a"\n.p2align 6')
    o.append(KD.format(name=n1, vgpr=256, sgpr=96, acc=256))
    open(path, "w").write("\n".join(o) + "\n")
    print("nops", k1.nops, "lines", len(k1.out))

if __name__ == "__main__":
    opts = {}
    for a in sys.argv[2:]:
        k, v = a.split("="); opts[k] = int(v)
    build(sys.argv[1], opts)
```

```python
import sys, struct
from fw import *

LOG2E = 1.4426950408889634
QSCALE = LOG2E / (128 ** 0.5)
def f2u(f): return struct.unpack("<I", struct.pack("<f", f))[0]

KVRING = 65536
QHAND = 0
OHAND = 32768
WOT = 0x1800000

def srd(p, dst, ptr, size):
    p.salu(f"s_mov_b32 s{dst}, s{ptr}")
    p.salu(f"s_and_b32 s{dst+1}, s{ptr+1}, 0xffff")
    p.salu(f"s_mov_b32 s{dst+2}, {hex(size)}")
    p.salu(f"s_mov_b32 s{dst+3}, 0x20000")

class Stamps:
    def __init__(s, p, opts, base=0x2000000, key="wgt"): s.p = p; s.on = opts.get(key, 0); s.base = base
    def __call__(s, k):
        if not s.on: return
        s.p.raw(f"    s_memrealtime s[68:69]\n    s_waitcnt lgkmcnt(0)\n    s_mov_b32 s{70+k}, s68")
        s.p.lg = []
    def cyc(s, k):
        if not s.on: return
        s.p.raw(f"    s_memtime s[68:69]\n    s_waitcnt lgkmcnt(0)\n    s_mov_b32 s{70+k}, s68")
        s.p.lg = []
    def dump(s, wavereg):
        if not s.on: return
        t = """    s_waitcnt vmcnt(0)
    s_mov_b32 s60, s44
    s_and_b32 s61, s45, 0xffff
    s_mov_b32 s62, 0x4000000
    s_mov_b32 s63, 0x20000
    s_lshl_b32 s64, s2, 3
    s_add_u32 s64, s64, %s
    s_lshl_b32 s64, s64, 6
    s_add_u32 s64, s64, %s
    v_mov_b32 v20, 0
""" % (wavereg, hex(s.base))
        for q in range(4):
            for i in range(4): t += f"    v_mov_b32 v{16+i}, s{70+4*q+i}\n"
            t += f"    s_nop 1\n    buffer_store_dwordx4 v[16:19], v20, s[60:63], s64 offen offset:{16*q}\n    s_nop 2\n"
        s.p.raw(t + "    s_waitcnt vmcnt(0)")

def gen_k1(opts):
    p = Prog()
    st = Stamps(p, opts)
    NT = [" nt", " sc1 nt", " sc0 nt", "", " sc1"][opts.get("kvf", 0)]
    WN = [" nt" if opts.get("wnt0", 0) else "", " nt" if opts.get("wnt1", 0) else ""]
    XNT = " nt" if opts.get("xnt", 0) else ""
    cur = [0]
    STF = ["", " nt", " sc1", " sc0 sc1", " sc1 nt", " sc0 sc1 nt"][opts.get("stnt", 3)]
    name = opts.get("name", "k1_kernel")
    p.raw(f".globl {name}\n.p2align 8\n.type {name},@function\n{name}:")
    p.salu("s_cmp_ge_u32 s2, 256")
    p.branch(f"s_cbranch_scc1 {name}_done")
    p.salu("s_load_dwordx8 s[36:43], s[0:1], 0")
    p.salu("s_load_dwordx2 s[44:45], s[0:1], 56")
    p.salu("s_load_dwordx2 s[52:53], s[0:1], 32")
    p.salu("s_load_dwordx4 s[56:59], s[0:1], 40")
    p.valu("v_lshrrev_b32 v1, 6, v0", wr=[1], rd=[0])
    p.valu("v_and_b32 v0, 63, v0", wr=[0], rd=[0])
    p.rfl("s3", 1)
    p.salu("s_and_b32 s4, s2, 7")
    p.salu("s_lshr_b32 s5, s2, 3")
    mp = opts.get("map", 2)
    if mp == 0:
        p.salu("s_lshr_b32 s6, s4, 1"); p.salu("s_lshl_b32 s6, s6, 2"); p.salu("s_and_b32 s7, s5, 3"); p.salu("s_add_u32 s6, s6, s7")
        p.salu("s_and_b32 s7, s4, 1"); p.salu("s_lshl_b32 s7, s7, 3"); p.salu("s_lshr_b32 s5, s5, 2"); p.salu("s_add_u32 s7, s7, s5")
    elif mp == 1:
        p.salu("s_and_b32 s6, s5, 15"); p.salu("s_lshl_b32 s7, s4, 1"); p.salu("s_lshr_b32 s5, s5, 4"); p.salu("s_add_u32 s7, s7, s5")
    elif mp == 2:
        p.salu("s_and_b32 s6, s4, 1"); p.salu("s_lshl_b32 s6, s6, 3"); p.salu("s_and_b32 s7, s5, 7"); p.salu("s_add_u32 s6, s6, s7")
        p.salu("s_lshr_b32 s7, s4, 1"); p.salu("s_lshl_b32 s7, s7, 2"); p.salu("s_lshr_b32 s5, s5, 3"); p.salu("s_add_u32 s7, s7, s5")
    if st.on:
        for k in range(16): p.raw(f"    s_mov_b32 s{70+k}, 0")
    p.raw("    s_waitcnt lgkmcnt(0)")
    st(0)
    p.salu("s_cmp_lt_u32 s3, 4")
    p.branch(f"s_cbranch_scc1 {name}_A")

    QA = 0; XR = 64; WF = 224; voW = 240; aW = 241; voK = 245; voV = 249; voX = 250; aXlo = 252; aWhi = 192; aXhi = 196
    T = 4
    srd(p, 16, 42, 640 * 4096 * 2)
    srd(p, 20, 36, 16 * 128 * 640 * 2)
    p.salu("s_sub_u32 s3, s3, 4")
    p.valu(f"v_lshrrev_b32 v{T}, 4, v0", wr=[T], rd=[0])
    p.valu(f"v_and_b32 v{T+1}, 15, v0", wr=[T+1], rd=[0])
    p.valu(f"v_lshlrev_b32 v{T+2}, 2, v{T}", wr=[T+2], rd=[T])
    p.valu(f"v_xor_b32 v{T+2}, v{T+2}, v{T+1}", wr=[T+2], rd=[T+2, T+1])
    p.valu(f"v_lshlrev_b32 v{T+2}, 4, v{T+2}", wr=[T+2], rd=[T+2])
    p.valu(f"v_lshl_add_u32 v{voW}, v{T}, 13, v{T+2}", wr=[voW], rd=[T, T+2])
    p.valu(f"v_lshl_add_u32 v{voV}, v{T}, 8, v{T+2}", wr=[voV], rd=[T, T+2])
    p.valu(f"v_lshrrev_b32 v{T+2}, 3, v0", wr=[T+2], rd=[0])
    p.valu(f"v_mul_u32_u24 v{T+2}, 1280, v{T+2}", wr=[T+2], rd=[T+2])
    p.valu(f"v_and_b32 v{T+3}, 7, v0", wr=[T+3], rd=[0])
    for e in range(2):
        p.valu(f"v_add_u32 v{T+4}, {4*e}, v{T}", wr=[T+4], rd=[T])
        p.valu(f"v_xor_b32 v{T+4}, v{T+4}, v{T+3}", wr=[T+4], rd=[T+4, T+3])
        p.valu(f"v_lshl_add_u32 v{voX+e}, v{T+4}, 4, v{T+2}", wr=[voX+e], rd=[T+4, T+2])
    p.salu("s_lshl_b32 s28, s3, 17")
    p.salu("s_lshl_b32 s33, s6, 8")
    p.salu("s_add_u32 s28, s28, s33")
    p.salu("s_mul_i32 s29, s7, 163840")
    p.salu(f"s_mul_i32 s33, s3, {32*1280}")
    p.salu("s_add_u32 s29, s29, s33")
    p.salu("s_lshl_b32 s30, s3, 12")
    slots0 = [0, 32768, KVRING + 32768, KVRING + 65536]
    def w_ops(j, slotbase):
        ops = []
        if opts.get("nopld"): return ops
        if opts.get("now1") and cur[0] == 1: return ops
        def f(i):
            p.salu(f"s_add_u32 m0, s30, {slotbase + i*1024}", swr=["m0"])
            p.salu(f"s_add_u32 s33, s28, {(64*j + 4*i) * 8192}")
            p.dma(voW, "s[16:19]", "s33", tag=f"w{j}", flags=WN[cur[0]])
        for i in range(4): ops.append(lambda i=i: f(i))
        return ops
    def x_ops(j, slotbase):
        ops = []
        if opts.get("nopld"): return ops
        def f(i):
            p.salu(f"s_add_u32 m0, s30, {slotbase + 16384 + i*1024}", swr=["m0"])
            p.salu(f"s_add_u32 s33, s29, {j*128 + i*10240}")
            p.dma(voX + (i & 1), "s[20:23]", "s33", tag=f"x{j}", flags=XNT)
        for i in range(4): ops.append(lambda i=i: f(i))
        return ops
    npre = opts.get("npre", 3)
    for j in range(npre):
        for o in w_ops(j, slots0[j]) + x_ops(j, slots0[j]): o()
    srd(p, 8, 38, 0x8000000)
    srd(p, 12, 40, 0x8000000)
    srd(p, 24, 44, 0x2000000)
    for i in range(4):
        p.valu(f"v_add_u32 v{T+2}, {4*i}, v{T}", wr=[T+2], rd=[T])
        p.valu(f"v_xor_b32 v{T+2}, v{T+2}, v{T+1}", wr=[T+2], rd=[T+2, T+1])
        p.valu(f"v_lshlrev_b32 v{T+2}, 4, v{T+2}", wr=[T+2], rd=[T+2])
        p.valu(f"v_lshl_add_u32 v{voK+i}, v{T}, 8, v{T+2}", wr=[voK+i], rd=[T, T+2])
    p.salu("s_lshl_b32 s31, s7, 5")
    p.salu("s_add_u32 s31, s31, s6")
    p.salu("s_lshl_b32 s31, s31, 18")
    p.salu("s_add_u32 s31, s31, s30")
    p.salu(f"s_add_u32 s32, s30, {KVRING}")
    p.salu("s_mov_b32 s34, 0")
    kvn = [0]
    def kv_ops(tag=None):
        ops = []
        tg = tag if tag else f"kv{kvn[0]}"
        kvn[0] += 1
        def k(i):
            if i == 0: p.salu("s_mov_b32 m0, s32", swr=["m0"])
            if not opts.get("nokv"): p.dma(voK + i, "s[8:11]", "s31", off=i * 1024, flags=NT, tag=tg)
        def v(i):
            if i == 0: p.salu("s_add_u32 m0, s32, 16384", swr=["m0"])
            if not opts.get("nokv"): p.dma(voV, "s[12:15]", "s31", off=i * 1024, flags=NT, tag=tg)
            if i == 3:
                p.salu("s_add_u32 s31, s31, 16384")
                p.salu("s_add_u32 s34, s34, 1")
                p.salu("s_cmp_eq_u32 s34, 16")
                p.salu(f"s_cselect_b32 s33, {hex(15 * 262144)}, 0")
                p.salu("s_add_u32 s31, s31, s33")
                p.salu("s_cmp_ge_u32 s34, 32")
                p.salu("s_cselect_b32 s31, 0x8000000, s31")
                p.salu("s_add_u32 s32, s32, 32768")
                p.salu(f"s_cmp_ge_u32 s32, {KVRING + 3*32768}")
                p.salu("s_cselect_b32 s33, 98304, 0")
                p.salu("s_sub_u32 s32, s32, s33")
        for i in range(4): ops.append(lambda i=i: k(i))
        for i in range(4): ops.append(lambda i=i: v(i))
        return ops
    def run(ops):
        for o in ops: o()
    if not opts.get("kv0late"): run(kv_ops())
    L = 0
    p.valu(f"v_lshrrev_b32 v{T+2}, 5, v{L}", wr=[T+2], rd=[L])
    p.valu(f"v_bfe_u32 v{T+4}, v{L}, 2, 2", wr=[T+4], rd=[L])
    p.valu(f"v_lshl_add_u32 v{T+5}, v{T+2}, 3, v{T+4}", wr=[T+5], rd=[T+2, T+4])
    p.valu(f"v_lshlrev_b32 v{T+5}, 8, v{T+5}", wr=[T+5], rd=[T+5])
    p.valu(f"v_bfe_u32 v{T+6}, v{L}, 4, 1", wr=[T+6], rd=[L])
    p.valu(f"v_lshl_add_u32 v{T+5}, v{T+6}, 5, v{T+5}", wr=[T+5], rd=[T+6, T+5])
    p.valu(f"v_and_b32 v{T+6}, 1, v{L}", wr=[T+6], rd=[L])
    p.valu(f"v_lshl_add_u32 v{T+5}, v{T+6}, 4, v{T+5}", wr=[T+5], rd=[T+6, T+5])
    p.valu(f"v_bfe_u32 v{T+6}, v{L}, 1, 1", wr=[T+6], rd=[L])
    p.valu(f"v_lshl_add_u32 v{T+5}, v{T+6}, 3, v{T+5}", wr=[T+5], rd=[T+6, T+5])
    for b in range(4):
        p.valu(f"v_xor_b32 v{T+6}, {b}, v{T+4}", wr=[T+6], rd=[T+4])
        p.valu(f"v_lshl_add_u32 v{aW+b}, v{T+6}, 6, v{T+5}", wr=[aW+b], rd=[T+6, T+5])
        p.valu(f"v_add_u32 v{aWhi+b}, {KVRING+32768}, v{aW+b}", wr=[aWhi+b], rd=[aW+b])
    p.valu(f"v_and_b32 v{T+4}, 31, v{L}", wr=[T+4], rd=[L])
    p.valu(f"v_bfe_u32 v{T+5}, v{L}, 1, 3", wr=[T+5], rd=[L])
    p.valu(f"v_xor_b32 v{T+5}, v{T+5}, v{T+2}", wr=[T+5], rd=[T+5, T+2])
    p.valu(f"v_lshlrev_b32 v{T+5}, 4, v{T+5}", wr=[T+5], rd=[T+5])
    p.valu(f"v_lshl_add_u32 v{T+5}, v{T+4}, 7, v{T+5}", wr=[T+5], rd=[T+4, T+5])
    p.salu("s_add_u32 s33, s30, 16384")
    p.valu(f"v_add_u32 v{T+5}, s33, v{T+5}", wr=[T+5], rd=[T+5])
    for ks in range(4):
        p.valu(f"v_xor_b32 v{aXlo+ks}, {ks*32}, v{T+5}", wr=[aXlo+ks], rd=[T+5])
        p.valu(f"v_add_u32 v{aXhi+ks}, {KVRING+32768}, v{aXlo+ks}", wr=[aXhi+ks], rd=[aXlo+ks])
    p.salu(f"s_mov_b32 s48, {hex(f2u(QSCALE))}")
    def qstep(j, slotbase, groups, xload):
        hi = slotbase >= KVRING
        off0 = slotbase - (KVRING + 32768 if hi else 0)
        aw = aWhi if hi else aW
        ax = aXhi if hi else aXlo
        def wread(ks, blk):
            d = WF + blk * 4
            p.ds_read("ds_read_b64_tr_b16", d, 2, aw + blk, off=off0 + ks*4096)
            p.ds_read("ds_read_b64_tr_b16", d + 2, 2, aw + blk, off=off0 + ks*4096 + 1024)
        X = XR + 16 * j
        if xload: p.ds_read("ds_read_b128", X, 4, ax, off=off0)
        for blk in range(4): wread(0, blk)
        if xload:
            for ks in range(1, 4):
                p.ds_read("ds_read_b128", X + 4*ks, 4, ax + ks, off=off0)
        ops = [o for g in groups for o in g]
        n = len(ops); k = 0
        for ks in range(4):
            for blk in range(4):
                if blk % 2 == 0:
                    pass
                if j == 0 and ks == 0: p.mfma32(QA + 16*blk, WF + blk*4, X, czero=True)
                else: p.mfma32(QA + 16*blk, WF + blk*4, X + ks*4)
                if ks + 1 < 4: wread(ks + 1, blk)
                idx = ks * 4 + blk
                tgt = -(-(idx + 1) * n // 16)
                while k < min(n, tgt):
                    ops[k](); k += 1
        while k < n: ops[k](); k += 1
    def lane_addr(dst, base_s_text):
        p.valu(f"v_mbcnt_lo_u32_b32 v{dst}, -1, 0", wr=[dst])
        p.valu(f"v_mbcnt_hi_u32_b32 v{dst}, -1, v{dst}", wr=[dst], rd=[dst])
        p.valu(f"v_lshlrev_b32 v{dst}, 4, v{dst}", wr=[dst], rd=[dst])
        p.valu(f"v_add_u32 v{dst}, s33, v{dst}", wr=[dst], rd=[dst])
    def qconvert():
        aHW = WF
        p.salu("s_lshl_b32 s33, s3, 13")
        p.salu(f"s_add_u32 s33, s33, {QHAND}")
        lane_addr(aHW, None)
        for blk in range(4):
            for u in range(2):
                base = QA + 16*blk + 8*u
                for i in range(8):
                    p.valu(f"v_mul_f32 v{base+i}, s48, v{base+i}", wr=[base+i], rd=[base+i])
                for i in range(4):
                    p.valu(f"v_cvt_pk_bf16_f32 v{base+i}, v{base+2*i}, v{base+2*i+1}", wr=[base+i], rd=[base+2*i, base+2*i+1])
                p.ds_write("ds_write_b128", aHW, base, 4, off=(blk*2 + u) * 1024)
        p.wait(lgkm=0)
    for j in range(10):
        p.comment(f"P pass0 step {j}")
        p.wait_tag(f"x{j}")
        p.barrier()
        if j == 0: st(1)
        if opts.get("headst"): st(6 + j)
        groups = []
        if j + 3 < 10 and j + 3 >= npre: groups += [w_ops(j + 3, slots0[(j + 3) % 4]), x_ops(j + 3, slots0[(j + 3) % 4])]
        if j in (7, 8) or (opts.get("kv0late") and j == opts.get("kv0late")): groups += [kv_ops()]
        qstep(j, slots0[j % 4], groups, True)
    st(2)
    qconvert()
    p.wait_tag("kv0")
    st(3)
    cur[0] = 1
    ACC = 64
    stage = [[144 + 4*i for i in range(18)], [4*i for i in range(16)] + [216, 220]]
    voB = 224; vZ = 228; vP = 229; vOne = 231; vPo = 232
    def out_map():
        p.salu("s_and_b32 s4, s2, 7"); p.salu("s_lshr_b32 s5, s2, 3")
        p.salu("s_lshr_b32 s33, s4, 1"); p.salu("s_lshl_b32 s33, s33, 3"); p.salu("s_lshr_b32 s35, s5, 2"); p.salu("s_add_u32 s33, s33, s35")
        p.salu("s_and_b32 s4, s4, 1"); p.salu("s_lshl_b32 s4, s4, 2"); p.salu("s_and_b32 s5, s5, 3"); p.salu("s_add_u32 s5, s4, s5")
        p.salu("s_mov_b32 s4, s33")
    def frag_bases(kstep0_reg):
        p.salu("s_lshl_b32 s33, s4, 9"); p.salu(f"s_add_u32 s33, s33, {kstep0_reg}"); p.salu("s_lshl_b32 s33, s33, 10")
        for q in range(4): p.salu(f"s_add_u32 s{36+q}, s33, {q*131072}")
        p.salu("s_mul_i32 s33, s5, 640"); p.salu(f"s_add_u32 s33, s33, {kstep0_reg}"); p.salu("s_lshl_b32 s33, s33, 10")
        for nb in range(5): p.salu(f"s_add_u32 s{sAr[nb]}, s33, {WOT + nb*131072}")
    sAr = [40, 41, 42, 43, 46]
    LDF = " sc1"
    def sig(off_ops):
        p.salu("s_cmp_lg_u32 s3, 0")
        lb = f"{name}_ns{len(p.out)}"
        p.branch(f"s_cbranch_scc1 {lb}")
        for o in off_ops: p.salu(o)
        p.salu("s_mov_b64 exec, 1")
        p.raw(f"    buffer_atomic_add v{vOne}, v{vZ}, s[16:19], s33 offen sc1")
        p.salu("s_mov_b64 exec, -1")
        p.label(lb)
    def signal_w():
        srd(p, 16, 58, 256)
        p.valu(f"v_mov_b32 v{vZ}, 0", wr=[vZ]); p.valu(f"v_mov_b32 v{vOne}, 1", wr=[vOne])
        sig(["s_mov_b32 s33, 0"])
    def signal_and_setup():
        sig(["s_lshl_b32 s33, s7, 2", "s_add_u32 s33, s33, 64"])
        for r in range(80): p.valu(f"v_mov_b32 v{ACC+r}, 0", wr=[ACC+r])
    def poll_issue():
        p.salu("s_mov_b64 exec, 3")
        p.raw(f"    buffer_load_dword v{vP}, v{vPo}, s[16:19], 0 offen sc1")
        p.salu("s_mov_b64 exec, -1")
    def poll_check(dst):
        p.raw(f"    v_readlane_b32 s33, v{vP}, 0\n    v_readlane_b32 s35, v{vP}, 1\n    s_nop 3")
        p.salu("s_cmp_ge_u32 s33, 256"); p.salu("s_cselect_b32 s33, 1, 0")
        p.salu("s_cmp_ge_u32 s35, 16"); p.salu(f"s_cselect_b32 {dst}, s33, 0")
    def o1_issue(par):
        st_ = stage[par]
        for kk in range(2):
            for nb in range(5):
                p.bload(st_[kk*9 + nb], 4, voB, "s[24:27]", f"s{sAr[nb]}", off=kk*1024, flags=LDF)
            for q in range(4):
                p.bload(st_[kk*9 + 5 + q], 4, voB, "s[24:27]", f"s{36+q}", off=kk*1024, flags=LDF)
        for r in sAr + [36, 37, 38, 39]: p.salu(f"s_add_u32 s{r}, s{r}, 2048")
    def o1_compute(par):
        st_ = stage[par]
        p.out.append(Ins("s_nop 0", "nop", states=25))
        for kk in range(2):
            for nb in range(5):
                for q in range(4):
                    p.mfma16(ACC + (nb*4 + q)*4, st_[kk*9 + nb], st_[kk*9 + 5 + q])
    def ohand_store():
        p.comment("O handoff store")
        aO = WF; voO = WF + 1
        p.salu("s_lshl_b32 s33, s3, 13"); p.salu(f"s_add_u32 s33, s33, {OHAND}")
        lane_addr(aO, None)
        for u in range(8): p.ds_read("ds_read_b128", XR + 4*u, 4, aO, off=u * 1024)
        p.valu(f"v_mbcnt_lo_u32_b32 v{voO+1}, -1, 0", wr=[voO+1])
        p.valu(f"v_mbcnt_hi_u32_b32 v{voO+1}, -1, v{voO+1}", wr=[voO+1], rd=[voO+1])
        p.valu(f"v_bfe_u32 v{voO}, v{voO+1}, 4, 1", wr=[voO], rd=[voO+1])
        p.valu(f"v_lshlrev_b32 v{voO}, 17, v{voO}", wr=[voO], rd=[voO])
        p.valu(f"v_and_b32 v{voO+2}, 15, v{voO+1}", wr=[voO+2], rd=[voO+1])
        p.valu(f"v_lshl_add_u32 v{voO}, v{voO+2}, 4, v{voO}", wr=[voO], rd=[voO+2, voO])
        p.valu(f"v_lshrrev_b32 v{voO+2}, 5, v{voO+1}", wr=[voO+2], rd=[voO+1])
        p.valu(f"v_lshl_add_u32 v{voO}, v{voO+2}, 8, v{voO}", wr=[voO], rd=[voO+2, voO])
        p.salu("s_lshl_b32 s35, s7, 3"); p.salu("s_lshl_b32 s33, s3, 1"); p.salu("s_add_u32 s35, s35, s33")
        p.salu("s_lshl_b32 s35, s35, 7"); p.salu("s_lshl_b32 s33, s6, 2"); p.salu("s_add_u32 s35, s35, s33"); p.salu("s_lshl_b32 s35, s35, 10")
        for u in range(8):
            if not opts.get("nost"): p.bstore(XR + 4*u, 4, voO, "s[24:27]", "s35", off=(u >> 1) * 1024 + (u & 1) * 512, tag="ost", flags=STF)
    def wot_issue():
        srd(p, 16, 52, 4096 * 640 * 2)
        Tm = XR
        p.valu(f"v_mbcnt_lo_u32_b32 v{Tm+8}, -1, 0", wr=[Tm+8])
        p.valu(f"v_mbcnt_hi_u32_b32 v{Tm+8}, -1, v{Tm+8}", wr=[Tm+8], rd=[Tm+8])
        p.salu("s_mov_b32 s33, 0x1999999a")
        for i in range(5):
            p.valu(f"v_add_u32 v{Tm+5}, {64*i}, v{Tm+8}", wr=[Tm+5], rd=[Tm+8])
            p.valu(f"v_mul_hi_u32 v{Tm+6}, v{Tm+5}, s33", wr=[Tm+6], rd=[Tm+5])
            p.valu(f"v_mul_u32_u24 v{Tm+7}, 10, v{Tm+6}", wr=[Tm+7], rd=[Tm+6])
            p.valu(f"v_sub_u32 v{Tm+7}, v{Tm+5}, v{Tm+7}", wr=[Tm+7], rd=[Tm+5, Tm+7])
            p.valu(f"v_mul_u32_u24 v{Tm+6}, 1280, v{Tm+6}", wr=[Tm+6], rd=[Tm+6])
            p.valu(f"v_lshl_add_u32 v{Tm+i}, v{Tm+7}, 4, v{Tm+6}", wr=[Tm+i], rd=[Tm+7, Tm+6])
        p.salu("s_lshr_b32 s35, s2, 1"); p.salu(f"s_mul_i32 s35, s35, {32*1280}")
        p.salu("s_and_b32 s33, s2, 1"); p.salu("s_mul_i32 s33, s33, 640"); p.salu("s_add_u32 s35, s35, s33")
        p.salu("s_mul_i32 s33, s3, 160"); p.salu("s_add_u32 s35, s35, s33")
        p.salu("s_mul_i32 s51, s3, 5120"); p.salu(f"s_add_u32 s51, s51, {OHAND}")
        for k in range(5):
            p.salu(f"s_add_u32 m0, s51, {k*1024}", swr=["m0"])
            p.dma(Tm + k, "s[16:19]", "s35", tag="wot", flags=(" nt" if opts.get("wof", 1) else ""))
    def wot_store():
        Tm = XR
        p.wait_tag("wot")
        L = Tm + 8
        p.valu(f"v_lshrrev_b32 v{Tm}, 5, v{L}", wr=[Tm], rd=[L])
        p.valu(f"v_bfe_u32 v{Tm+1}, v{L}, 4, 1", wr=[Tm+1], rd=[L])
        p.valu(f"v_bfe_u32 v{Tm+2}, v{L}, 2, 2", wr=[Tm+2], rd=[L])
        p.valu(f"v_lshl_add_u32 v{Tm+2}, v{Tm+1}, 2, v{Tm+2}", wr=[Tm+2], rd=[Tm+1, Tm+2])
        p.valu(f"v_lshl_add_u32 v{Tm+2}, v{Tm}, 4, v{Tm+2}", wr=[Tm+2], rd=[Tm, Tm+2])
        p.valu(f"v_mul_u32_u24 v{Tm+2}, 160, v{Tm+2}", wr=[Tm+2], rd=[Tm+2])
        p.valu(f"v_and_b32 v{Tm+1}, 3, v{L}", wr=[Tm+1], rd=[L])
        p.valu(f"v_lshl_add_u32 v{Tm+2}, v{Tm+1}, 3, v{Tm+2}", wr=[Tm+2], rd=[Tm+1, Tm+2])
        p.valu(f"v_add_u32 v{Tm+2}, s51, v{Tm+2}", wr=[Tm+2], rd=[Tm+2])
        for nb in range(5):
            d = Tm + 16 + nb*4
            p.ds_read("ds_read_b64_tr_b16", d, 2, Tm + 2, off=nb*32)
            p.ds_read("ds_read_b64_tr_b16", d + 2, 2, Tm + 2, off=nb*32 + 1280)
        p.valu(f"v_lshlrev_b32 v{Tm+3}, 4, v{L}", wr=[Tm+3], rd=[L])
        p.salu("s_and_b32 s33, s2, 1"); p.salu("s_mul_i32 s33, s33, 20"); p.salu("s_mul_i32 s35, s3, 5"); p.salu("s_add_u32 s33, s33, s35")
        p.salu("s_lshl_b32 s33, s33, 7"); p.salu("s_lshr_b32 s35, s2, 1"); p.salu("s_add_u32 s33, s33, s35"); p.salu("s_lshl_b32 s33, s33, 10")
        p.salu(f"s_add_u32 s35, s33, {hex(WOT)}")
        for nb in range(5):
            p.salu(f"s_add_u32 s33, s35, {nb*131072}")
            p.bstore(Tm + 16 + nb*4, 4, Tm + 3, "s[24:27]", "s33", tag="wotst", flags=STF)
    for t in range(19):
        p.comment(f"P step t={t}")
        p.barrier()
        if t in (16, 17): st({16: 6, 17: 7}[t])
        groups = []
        if t == 13 and not opts.get("nowot"): wot_issue()
        if t == 14 and not opts.get("nowot"): wot_store()
        if t == 16: signal_w()
        if t == 18: signal_and_setup()
        if t >= 1: groups.append(kv_ops())
        j = t - 2
        if t == 1:
            p.salu(f"s_add_u32 s28, s28, {16*256}")
            groups += [w_ops(jj, jj * 16384) for jj in range(3)]
        if 0 <= j < 10:
            if j + 3 < 10: groups.append(w_ops(j + 3, ((j + 3) % 4) * 16384))
            qstep(j, (j % 4) * 16384, groups, False)
        else:
            for g in groups: run(g)
        if t == 12: qconvert()
        p.wait_tag(f"kv{t+1}")
        if 0 <= t - 1 < 10: p.wait_tag(f"w{t-1}")
    st(4)
    st(4)
    p.salu("s_mov_b32 s47, 19")
    p.label(f"{name}_Ploop")
    p.barrier()
    p.reset_tracking()
    run(kv_ops("kvn"))
    p.raw("    s_waitcnt vmcnt(8)")
    p.salu("s_add_u32 s47, s47, 1")
    p.salu("s_cmp_lt_u32 s47, 30")
    p.branch(f"s_cbranch_scc1 {name}_Ploop")
    p.barrier()
    p.reset_tracking()
    out_map()
    p.salu("s_lshr_b32 s51, s4, 1"); p.salu("s_lshl_b32 s51, s51, 2"); p.salu("s_add_u32 s51, s51, 64")
    p.valu(f"v_mbcnt_lo_u32_b32 v{vPo+1}, -1, 0", wr=[vPo+1])
    p.valu(f"v_mbcnt_hi_u32_b32 v{vPo+1}, -1, v{vPo+1}", wr=[vPo+1], rd=[vPo+1])
    p.valu(f"v_cmp_eq_u32 vcc, 0, v{vPo+1}", rd=[vPo+1], swr=["vcc"])
    p.valu(f"v_mov_b32 v{vPo}, s51", wr=[vPo])
    p.nop(2)
    p.valu(f"v_cndmask_b32 v{vPo}, v{vPo}, v{vZ}, vcc", wr=[vPo], rd=[vPo, vZ])
    p.salu("s_cmp_lg_u32 s3, 0")
    p.branch(f"s_cbranch_scc1 {name}_np30")
    poll_issue()
    p.label(f"{name}_np30")
    p.raw("    s_waitcnt vmcnt(1)")
    p.raw("    s_cmp_eq_u32 s3, 0\n    s_cbranch_scc1 %s_w30\n    s_waitcnt vmcnt(0)\n%s_w30:" % (name, name))
    p.barrier()
    p.raw("    s_waitcnt vmcnt(0)")
    p.salu("s_cmp_lg_u32 s3, 0")
    p.branch(f"s_cbranch_scc1 {name}_np31")
    poll_check("s35")
    p.raw(f"    v_mov_b32 v{vP+1}, s35\n    ds_write_b32 v{vZ}, v{vP+1}\n    s_waitcnt lgkmcnt(0)")
    p.label(f"{name}_np31")
    st(5)
    p.raw("    s_waitcnt vmcnt(0)")
    p.barrier()
    p.salu("s_add_u32 s3, s3, 4")
    p.branch(f"s_branch {name}_Tail")

    p.label(f"{name}_A")
    p.out.append(Ins("s_nop 4", "nop", states=25))
    p.reset_tracking()
    O = 64; S0 = 128; S1 = 144; P0 = 160; P1 = 168; KF = 176; VF = 208; Q = 32; C = 16
    aK = 240; aV = 248; LS = 2; T = 4; aH = 14; voO = 15; aOH = 1
    def a_touch():
        TF = " nt"
        D = 200
        k0 = opts.get("touchk0", 4)
        nrow = (10 - k0) * 64
        q = nrow // 4
        srd(p, 16, 42, 640 * 4096 * 2); srd(p, 20, 36, 16 * 128 * 640 * 2)
        ninst = -(-2*q // 64)
        p.salu("s_lshr_b32 s33, s2, 6"); p.salu(f"s_mul_i32 s33, s33, {q}"); p.salu(f"s_add_u32 s33, s33, {k0*64}")
        p.salu("s_lshl_b32 s28, s3, 5"); p.salu("s_add_u32 s33, s33, s28"); p.salu("s_lshl_b32 s33, s33, 13")
        p.salu("s_lshl_b32 s28, s6, 8"); p.salu("s_add_u32 s33, s33, s28")
        p.valu(f"v_lshrrev_b32 v{T}, 1, v0", wr=[T], rd=[0])
        p.valu(f"v_lshlrev_b32 v{T}, 13, v{T}", wr=[T], rd=[T])
        p.valu(f"v_and_b32 v{T+1}, 1, v0", wr=[T+1], rd=[0])
        p.valu(f"v_lshl_add_u32 v{T}, v{T+1}, 7, v{T}", wr=[T], rd=[T+1, T])
        p.bload(D, 1, T, "s[16:19]", "s33", flags=TF)
        if ninst > 4:
            p.salu(f"s_add_u32 s33, s33, {128 << 13}")
            p.bload(D + 1, 1, T, "s[16:19]", "s33", flags=TF)
        p.salu("s_lshr_b32 s33, s2, 3"); p.salu("s_and_b32 s33, s33, 7"); p.salu("s_lshl_b32 s33, s33, 4")
        p.salu("s_lshl_b32 s28, s3, 3"); p.salu("s_add_u32 s33, s33, s28"); p.salu("s_mul_i32 s33, s33, 1280")
        p.salu("s_mul_i32 s28, s7, 163840"); p.salu("s_add_u32 s33, s33, s28"); p.salu(f"s_add_u32 s33, s33, {k0*128}")
        p.salu("s_cmp_ge_u32 s3, 2"); p.salu("s_cselect_b32 s33, 0x8000000, s33")
        p.valu(f"v_lshrrev_b32 v{T}, 3, v0", wr=[T], rd=[0])
        p.valu(f"v_mul_u32_u24 v{T}, 1280, v{T}", wr=[T], rd=[T])
        p.valu(f"v_and_b32 v{T+1}, 7, v0", wr=[T+1], rd=[0])
        p.valu(f"v_lshl_add_u32 v{T}, v{T+1}, 7, v{T}", wr=[T], rd=[T+1, T])
        p.bload(D + 2, 1, T, "s[20:23]", "s33", flags=TF)
        p.reset_tracking()
    srd(p, 24, 44, 128 * 128 * 1024)
    p.valu(f"v_and_b32 v{T+1}, 15, v0", wr=[T+1], rd=[0])
    p.valu(f"v_and_b32 v{T}, 31, v0", wr=[T], rd=[0])
    p.valu(f"v_lshrrev_b32 v{T+2}, 5, v0", wr=[T+2], rd=[0])
    p.valu(f"v_xor_b32 v{T+3}, v{T+2}, v{T+1}", wr=[T+3], rd=[T+2, T+1])
    p.valu(f"v_lshlrev_b32 v{T+3}, 4, v{T+3}", wr=[T+3], rd=[T+3])
    p.valu(f"v_lshl_add_u32 v{T+3}, v{T}, 8, v{T+3}", wr=[T+3], rd=[T, T+3])
    p.valu(f"v_add_u32 v{T+3}, {KVRING}, v{T+3}", wr=[T+3], rd=[T+3])
    for j in range(8):
        p.valu(f"v_xor_b32 v{aK+j}, {j*32}, v{T+3}", wr=[aK+j], rd=[T+3])
    p.valu(f"v_bfe_u32 v{T+4}, v0, 2, 2", wr=[T+4], rd=[0])
    p.valu(f"v_lshl_add_u32 v{T+5}, v{T+2}, 2, v{T+4}", wr=[T+5], rd=[T+2, T+4])
    p.valu(f"v_lshlrev_b32 v{T+5}, 8, v{T+5}", wr=[T+5], rd=[T+5])
    p.valu(f"v_bfe_u32 v{T+6}, v0, 4, 1", wr=[T+6], rd=[0])
    p.valu(f"v_lshl_add_u32 v{T+5}, v{T+6}, 5, v{T+5}", wr=[T+5], rd=[T+6, T+5])
    p.valu(f"v_and_b32 v{T+6}, 3, v0", wr=[T+6], rd=[0])
    p.valu(f"v_lshl_add_u32 v{T+5}, v{T+6}, 3, v{T+5}", wr=[T+5], rd=[T+6, T+5])
    p.valu(f"v_add_u32 v{T+5}, {KVRING + 16384}, v{T+5}", wr=[T+5], rd=[T+5])
    for b in range(4):
        p.valu(f"v_xor_b32 v{T+6}, {b}, v{T+4}", wr=[T+6], rd=[T+4])
        p.valu(f"v_lshl_add_u32 v{aV+b}, v{T+6}, 6, v{T+5}", wr=[aV+b], rd=[T+6, T+5])
    p.valu(f"v_bfe_u32 v{T+6}, v0, 4, 1", wr=[T+6], rd=[0])
    p.valu(f"v_lshlrev_b32 v{T+6}, 17, v{T+6}", wr=[T+6], rd=[T+6])
    p.valu(f"v_lshl_add_u32 v{T+6}, v{T+1}, 4, v{T+6}", wr=[T+6], rd=[T+1, T+6])
    p.valu(f"v_lshl_add_u32 v{voO}, v{T+2}, 8, v{T+6}", wr=[voO], rd=[T+2, T+6])
    p.salu("s_lshl_b32 s34, s7, 3"); p.salu("s_lshl_b32 s33, s3, 1"); p.salu("s_add_u32 s34, s34, s33")
    p.salu("s_lshl_b32 s34, s34, 7"); p.salu("s_lshl_b32 s33, s6, 2"); p.salu("s_add_u32 s34, s34, s33")
    p.salu("s_add_u32 s34, s34, 64"); p.salu("s_lshl_b32 s34, s34, 10")
    p.salu("s_lshl_b32 s33, s3, 13")
    p.valu(f"v_lshlrev_b32 v{aH}, 4, v0", wr=[aH], rd=[0])
    p.valu(f"v_add_u32 v{aH}, s33, v{aH}", wr=[aH], rd=[aH])
    p.valu(f"v_add_u32 v{aOH}, {OHAND}, v{aH}", wr=[aOH], rd=[aH])
    p.salu("s_mov_b32 s49, -65536"); p.salu("s_mov_b32 s50, 32768")
    p.salu("s_mov_b32 s35, 0")
    p.salu("s_mov_b32 s46, 0")
    tb = opts.get("touch", 0)
    if tb == 1:
        p.raw("    s_sleep %d" % opts.get("tdelay", 10))
        a_touch()
    for i in range(10):
        p.barrier()
        if tb == 2 and i == 0: a_touch()
    st(1); st.cyc(5)
    B = [KF, VF]
    def sm_half(S, P, half):
        ops = []
        b0 = 8 * half
        def addcvt(k):
            ops.append(lambda k=k: p.valu(f"v_add_f32 v{LS}, v{LS}, v{S+k}", wr=[LS], rd=[LS, S+k]))
            ops.append(lambda k=k: p.valu(f"v_add_f32 v{LS+1}, v{LS+1}, v{S+k+1}", wr=[LS+1], rd=[LS+1, S+k+1]))
            ops.append(lambda k=k: p.valu(f"v_cvt_pk_bf16_f32 v{P+k//2}, v{S+k}, v{S+k+1}", wr=[P+k//2], rd=[S+k, S+k+1]))
        for i in range(b0, b0 + 8, 2):
            ops.append(lambda i=i: p.trans(f"v_exp_f32 v{S+i}, v{S+i}", wr=[S+i], rd=[S+i]))
            ops.append(lambda i=i: p.trans(f"v_exp_f32 v{S+i+1}, v{S+i+1}", wr=[S+i+1], rd=[S+i+1]))
            if i >= b0 + 2: addcvt(i - 2)
        addcvt(b0 + 6)
        return ops
    def vread(bank, t, n):
        ks2, blk = n >> 2, n & 3
        d = bank + 4 * n
        ks = 2 * t + ks2
        p.ds_read("ds_read_b64_tr_b16", d, 2, aV + blk, off=ks * 4096)
        p.ds_read("ds_read_b64_tr_b16", d + 2, 2, aV + blk, off=ks * 4096 + 2048)
    def spread(ops, slots, i):
        for _ in range(slots[i]):
            if ops: ops.pop(0)()
    def step(first, par):
        KB = B[par]; VB = B[1 - par]
        p.barrier()
        p.reset_tracking()
        if first:
            for j in range(8):
                p.ds_read("ds_read_b128", Q + 4*j, 4, aH, off=QHAND + j * 1024)
        for j in range(8):
            p.ds_read("ds_read_b128", KB + 4*j, 4, aK + j)
        if first:
            p.valu(f"v_mov_b32 v{LS}, 0", wr=[LS]); p.valu(f"v_mov_b32 v{LS+1}, 0", wr=[LS+1])
            sm = []
        else:
            sm = sm_half(S1, P1, 1)
            for _ in range(12): sm.pop(0)()
        for j in range(8):
            if j == 0: p.wait(lgkm=4)
            if j == 4: p.wait(lgkm=4)
            if j == 0:
                if first: p.mfma32(S0, KB, Q, czero=True)
                else: p.mfma32(S0, KB, Q, C=C)
            else:
                p.mfma32(S0, KB + 4*j, Q + 4*j)
            p.ds_read("ds_read_b128", KB + 4*j, 4, aK + j, off=8192)
            spread(sm, [2, 2, 2, 2, 0, 0, 0, 0], j)
        while sm: sm.pop(0)()
        if first:
            p.valu(f"v_max3_f32 v{T}, v{S0}, v{S0+1}, v{S0+2}", wr=[T], rd=[S0, S0+1, S0+2])
            for i in range(3, 15, 2):
                p.valu(f"v_max3_f32 v{T}, v{T}, v{S0+i}, v{S0+i+1}", wr=[T], rd=[T, S0+i, S0+i+1])
            p.valu(f"v_max_f32 v{T}, v{T}, v{S0+15}", wr=[T], rd=[T, S0+15])
            p.valu(f"v_mov_b32 v{T+1}, v{T}", wr=[T+1], rd=[T])
            p.perm(f"v_permlane32_swap_b32 v{T}, v{T+1}", [T, T+1])
            p.valu(f"v_max_f32 v{T}, v{T}, v{T+1}", wr=[T], rd=[T, T+1])
            for i in range(16):
                p.valu(f"v_sub_f32 v{C+i}, 0, v{T}", wr=[C+i], rd=[T])
            for i in range(16):
                p.valu(f"v_sub_f32 v{S0+i}, v{S0+i}, v{T}", wr=[S0+i], rd=[S0+i, T])
        sm = sm_half(S0, P0, 0)
        for n in range(8):
            if n in (2, 5): p.wait(lgkm=(4 if n == 2 else 6))
            if not first:
                p.mfma32(O + 16*(n & 3), VB + 4*n, P1 + 4*(n >> 2))
            vread(VB, 0, n)
            spread(sm, [0, 0, 4, 4, 3, 3, 3, 3], n)
        while sm: sm.pop(0)()
        sm = sm_half(S0, P0, 1)
        for j in range(8):
            if j in (0, 3, 6): p.wait(lgkm=6)
            if j == 0: p.mfma32(S1, KB, Q, C=C)
            else: p.mfma32(S1, KB + 4*j, Q + 4*j)
            vread(KB, 1, j)
            spread(sm, [3, 3, 3, 3, 2, 2, 2, 2], j)
        while sm: sm.pop(0)()
        p.salu("s_add_u32 s35, s35, 1")
        p.salu("s_cmp_eq_u32 s35, 3")
        p.salu("s_cselect_b32 s33, s49, s50")
        p.salu("s_cselect_b32 s35, 0, s35")
        sm = sm_half(S1, P1, 0)
        adv = [(lambda r=r: p.valu(f"v_add_u32 v{r}, s33, v{r}", wr=[r], rd=[r])) for r in list(range(aK, aK+8)) + list(range(aV, aV+4))]
        for n in range(8):
            if first and n < 4: p.mfma32(O + 16*(n & 3), VB + 4*n, P0 + 4*(n >> 2), czero=True)
            else: p.mfma32(O + 16*(n & 3), VB + 4*n, P0 + 4*(n >> 2))
            if n < 2:
                spread(adv, [6, 6], n)
            spread(sm, [0, 0, 4, 4, 3, 3, 3, 3], n)
        while sm: sm.pop(0)()
        p.wait(lgkm=0)
    p.label(f"{name}_Apair")
    step(True, 0)
    p.salu("s_mov_b32 s47, 8")
    p.label(f"{name}_Aloop")
    step(False, 1)
    p.salu("s_cmp_lt_u32 s47, 8")
    p.branch(f"s_cbranch_scc1 {name}_Anw")
    p.raw("    s_waitcnt vmcnt(0)")
    p.label(f"{name}_Anw")
    p.salu("s_sub_u32 s47, s47, 1")
    p.salu("s_cmp_eq_u32 s47, 0")
    p.branch(f"s_cbranch_scc1 {name}_Aepi")
    step(False, 0)
    p.branch(f"s_branch {name}_Aloop")
    p.label(f"{name}_Aepi")
    p.out.append(Ins("s_nop 0", "nop", states=1))
    sm = sm_half(S1, P1, 1)
    while sm: sm.pop(0)()
    for n in range(8):
        p.mfma32(O + 16*(n & 3), B[1] + 4*n, P1 + 4*(n >> 2))
    p.nop(12)
    p.valu(f"v_add_f32 v{LS}, v{LS}, v{LS+1}", wr=[LS], rd=[LS, LS+1])
    p.valu(f"v_mov_b32 v{T}, v{LS}", wr=[T], rd=[LS])
    p.perm(f"v_permlane32_swap_b32 v{LS}, v{T}", [LS, T])
    p.valu(f"v_add_f32 v{LS}, v{LS}, v{T}", wr=[LS], rd=[LS, T])
    p.salu(f"s_mov_b32 s33, {hex(f2u(2.0**30))}")
    p.valu(f"v_cmp_nlt_f32 vcc, v{LS}, s33", rd=[LS], swr=["vcc"]) if False else p.raw(f"    v_cmp_nlt_f32_e64 vcc, v{LS}, s33")
    p.nop(5)
    p.branch(f"s_cbranch_vccnz {name}_Aslow")
    p.label(f"{name}_Anorm")
    p.out.append(Ins("s_nop 0", "nop", states=25))
    p.reset_tracking()
    p.trans(f"v_rcp_f32 v{T}, v{LS}", wr=[T], rd=[LS])
    for blk in range(4):
        for u in range(2):
            for i in range(8):
                r = O + 16*blk + 8*u + i
                p.valu(f"v_mul_f32 v{r}, v{r}, v{T}", wr=[r], rd=[r, T])
            d = S0 + (blk * 2 + u) * 4
            for i in range(4):
                r = O + 16*blk + 8*u + 2*i
                p.valu(f"v_cvt_pk_bf16_f32 v{d+i}, v{r}, v{r+1}", wr=[d+i], rd=[r, r+1])
    p.salu("s_cmp_eq_u32 s46, 1")
    p.branch(f"s_cbranch_scc1 {name}_Afin")
    p.salu(f"s_sub_u32 s33, s34, {64*1024}")
    for u in range(8):
        p.bstore(S0 + 4*u, 4, voO, "s[24:27]", "s33", off=(u >> 1) * 1024 + (u & 1) * 512, tag="ost", flags=STF)
    p.salu("s_mov_b32 s46, 1")
    p.nop(2)
    st(2); st.cyc(6)
    p.branch(f"s_branch {name}_Apair")
    p.label(f"{name}_Afin")
    st(3); st.cyc(7)
    for u in range(8):
        p.bstore(S0 + 4*u, 4, voO, "s[24:27]", "s34", off=(u >> 1) * 1024 + (u & 1) * 512, tag="ost", flags=STF)
    p.raw("    s_waitcnt vmcnt(0)")
    p.barrier()
    st(4)
    srd(p, 16, 58, 256)
    p.salu("s_cmp_lg_u32 s3, 0")
    p.branch(f"s_cbranch_scc1 {name}_nosigB")
    p.valu("v_mov_b32 v228, 0", wr=[228]); p.valu("v_mov_b32 v231, 1", wr=[231])
    p.salu("s_mov_b64 exec, 1")
    p.salu("s_lshl_b32 s33, s7, 2"); p.salu("s_add_u32 s33, s33, 128")
    p.raw("    buffer_atomic_add v231, v228, s[16:19], s33 offen sc1")
    p.salu("s_mov_b64 exec, -1")
    p.label(f"{name}_nosigB")
    for r in range(80): p.valu(f"v_mov_b32 v{64+r}, 0", wr=[64+r])
    p.label(f"{name}_Tail")
    p.out.append(Ins("s_nop 0", "nop", states=25))
    p.reset_tracking()
    ACC = 64; STG = 144; voB = 2; vZ = 6; vP = 8
    srd(p, 24, 44, 0x2000000)
    srd(p, 20, 56, 2048 * 640 * 2)
    out_map()
    p.valu(f"v_mbcnt_lo_u32_b32 v{voB}, -1, 0", wr=[voB])
    p.valu(f"v_mbcnt_hi_u32_b32 v{voB}, -1, v{voB}", wr=[voB], rd=[voB])
    p.valu(f"v_mov_b32 v0, v{voB}", wr=[0], rd=[voB])
    p.valu(f"v_lshlrev_b32 v{voB}, 4, v{voB}", wr=[voB], rd=[voB])
    p.valu(f"v_add_u32 v{voB+1}, 4096, v{voB}", wr=[voB+1], rd=[voB])
    p.valu(f"v_mov_b32 v{vZ}, 0", wr=[vZ])
    ZF = vZ + 1
    def tail_poll(lbl, off_expr):
        p.salu("s_cmp_lg_u32 s3, 0")
        p.branch(f"s_cbranch_scc1 {name}_{lbl}d")
        p.salu("s_mov_b32 s63, 0")
        p.label(f"{name}_{lbl}")
        p.salu("s_mov_b64 exec, 3")
        p.raw(f"    buffer_load_dword v{vP}, v{ZF}, s[16:19], 0 offen sc1")
        p.salu("s_mov_b64 exec, -1")
        p.raw("    s_waitcnt vmcnt(0)")
        p.raw(f"    v_readlane_b32 s33, v{vP}, 0\n    v_readlane_b32 s35, v{vP}, 1\n    s_nop 3")
        p.salu("s_cmp_ge_u32 s33, 256"); p.salu("s_cselect_b32 s60, 1, 0")
        p.salu("s_cmp_ge_u32 s35, 16"); p.salu("s_cselect_b32 s60, s60, 0")
        p.salu("s_cmp_lg_u32 s60, 0")
        p.branch(f"s_cbranch_scc1 {name}_{lbl}d")
        p.raw(f"    s_sleep {opts.get('tsleep', 16)}")
        p.salu("s_add_u32 s63, s63, 1")
        p.salu("s_cmp_lt_u32 s63, 0x80000")
        p.branch(f"s_cbranch_scc1 {name}_{lbl}")
        p.label(f"{name}_{lbl}d")
    def set_zf(off):
        p.salu("s_lshr_b32 s51, s4, 1"); p.salu("s_lshl_b32 s51, s51, 2"); p.salu(f"s_add_u32 s51, s51, {off}")
        p.valu(f"v_cmp_eq_u32 vcc, 0, v0", rd=[0], swr=["vcc"])
        p.valu(f"v_mov_b32 v{ZF}, s51", wr=[ZF])
        p.nop(2)
        p.valu(f"v_cndmask_b32 v{ZF}, v{ZF}, v{vZ}, vcc", wr=[ZF], rd=[ZF, vZ])
    p.raw(f"    ds_read_b32 v{vP}, v{vZ}\n    s_waitcnt lgkmcnt(0)\n    v_readfirstlane_b32 s60, v{vP}\n    s_nop 3")
    p.salu("s_cmp_lg_u32 s60, 0")
    p.branch(f"s_cbranch_scc1 {name}_Tr1ok")
    set_zf(64)
    tail_poll("Tp1", 64)
    p.barrier()
    p.label(f"{name}_Tr1ok")
    st(8)
    p.reset_tracking()
    p.salu("s_lshl_b32 s62, s3, 3")
    frag_bases("s62")
    p.valu(f"v_add_u32 v{voB+2}, 65536, v{voB}", wr=[voB+2], rd=[voB])
    p.valu(f"v_add_u32 v{voB+3}, 65536, v{voB+1}", wr=[voB+3], rd=[voB+1])
    set_zf(128)
    def vo(i): return voB + (2 if i >= 8 else 0) + ((i & 7) >> 2)
    def issueA(i):
        base = STG + (i % 3) * 36
        for nb in range(5):
            p.bload(base + 4*nb, 4, vo(i), "s[24:27]", f"s{sAr[nb]}", off=(i & 3) * 1024, tag=f"a{i}", flags=" sc1")
    def issueB(i):
        base = STG + (i % 3) * 36
        for q in range(4):
            p.bload(base + 20 + 4*q, 4, vo(i), "s[24:27]", f"s{36+q}", off=(i & 3) * 1024, tag=f"b{i}", flags=" sc1")
    issueA(0); issueB(0); issueA(1); issueB(1)
    for i in range(16):
        base = STG + (i % 3) * 36
        if i + 2 < 16:
            if i + 2 == 8:
                issueA(8)
                if st.on: st(11)
                vmsave = list(p.vm)
                tail_poll("Tp2", 128)
                p.barrier()
                p.vm = vmsave
                issueB(8)
            else:
                issueA(i + 2); issueB(i + 2)
        for nb in range(5):
            for q in range(4):
                p.mfma16(ACC + (nb*4 + q)*4, base + 4*nb, base + 20 + 4*q)
    st(9)
    T = 8
    p.salu("s_mul_i32 s33, s3, 20480")
    p.valu(f"v_add_u32 v{T}, s33, v{voB}", wr=[T], rd=[voB])
    for t in range(20):
        p.ds_write("ds_write_b128", T, ACC + 4*t, 4, off=t*1024)
    p.wait(lgkm=0)
    p.barrier()
    p.valu(f"v_and_b32 v{T+1}, 15, v0", wr=[T+1], rd=[0])
    p.valu(f"v_mul_u32_u24 v{T+1}, 1280, v{T+1}", wr=[T+1], rd=[T+1])
    p.valu(f"v_lshrrev_b32 v{T+2}, 4, v0", wr=[T+2], rd=[0])
    p.valu(f"v_lshl_add_u32 v{T+1}, v{T+2}, 3, v{T+1}", wr=[T+1], rd=[T+2, T+1])
    p.salu(f"s_mul_i32 s34, s4, {64*1280}")
    p.salu("s_mul_i32 s33, s5, 160"); p.salu("s_add_u32 s34, s34, s33")
    p.salu("s_lshl_b32 s35, s3, 10")
    p.valu(f"v_add_u32 v{T+3}, s35, v{voB}", wr=[T+3], rd=[voB])
    for rnd in range(3):
        if rnd == 2:
            p.salu("s_cmp_ge_u32 s3, 4")
            p.branch(f"s_cbranch_scc1 {name}_fin")
        p.salu(f"s_add_u32 s40, s3, {8*rnd}")
        p.salu("s_lshr_b32 s41, s40, 2"); p.salu("s_and_b32 s42, s40, 3")
        p.salu("s_lshl_b32 s41, s41, 5")
        p.salu(f"s_mul_i32 s42, s42, {16*1280}")
        p.salu("s_add_u32 s41, s41, s42"); p.salu("s_add_u32 s41, s41, s34")
        for w in range(8):
            off = w * 20480 + rnd * 8192
            if off < 65536:
                p.ds_read("ds_read_b128", ACC + 4*w, 4, T + 3, off=off)
            else:
                p.valu(f"v_add_u32 v{T+4}, {off}, v{T+3}", wr=[T+4], rd=[T+3])
                p.ds_read("ds_read_b128", ACC + 4*w, 4, T + 4)
        for w in range(1, 8):
            for r in range(4):
                p.valu(f"v_add_f32 v{ACC+r}, v{ACC+r}, v{ACC+4*w+r}", wr=[ACC+r], rd=[ACC+r, ACC+4*w+r])
        p.valu(f"v_cvt_pk_bf16_f32 v{ACC+40}, v{ACC}, v{ACC+1}", wr=[ACC+40], rd=[ACC, ACC+1])
        p.valu(f"v_cvt_pk_bf16_f32 v{ACC+41}, v{ACC+2}, v{ACC+3}", wr=[ACC+41], rd=[ACC+2, ACC+3])
        p.bstore(ACC + 40, 2, T + 1, "s[20:23]", "s41", flags=["", " nt", " sc1", " sc0 sc1"][opts.get("outf", 0)])
        p.nop(2)
    p.label(f"{name}_fin")
    if st.on:
        p.raw("    s_waitcnt vmcnt(0)")
        st(10); st.dump("s3")
    p.branch(f"s_branch {name}_done")
    p.label(f"{name}_Aslow")
    p.out.append(Ins("s_nop 0", "nop", states=25))
    p.reset_tracking()
    O = 64; S0 = 128; P0 = 160; KF = 176; VF = 208; Q = 32; LS = 2; T = 4
    M = 5; AL = 6; vK = 7; vV = 8; TM = 9; TN = 10
    srd(p, 8, 38, 0x8000000); srd(p, 12, 40, 0x8000000)
    p.salu("s_lshl_b32 s36, s7, 5"); p.salu("s_add_u32 s36, s36, s6"); p.salu("s_lshl_b32 s33, s46, 4"); p.salu("s_add_u32 s36, s36, s33"); p.salu("s_lshl_b32 s36, s36, 18")
    p.valu(f"v_mbcnt_lo_u32_b32 v{TM}, -1, 0", wr=[TM])
    p.valu(f"v_mbcnt_hi_u32_b32 v{TM}, -1, v{TM}", wr=[TM], rd=[TM])
    p.valu(f"v_and_b32 v{TN}, 31, v{TM}", wr=[TN], rd=[TM])
    p.valu(f"v_lshrrev_b32 v{TM}, 5, v{TM}", wr=[TM], rd=[TM])
    p.valu(f"v_lshlrev_b32 v{vK}, 8, v{TN}", wr=[vK], rd=[TN])
    p.valu(f"v_lshl_add_u32 v{vK}, v{TM}, 4, v{vK}", wr=[vK], rd=[TM, vK])
    p.valu(f"v_lshlrev_b32 v{vV}, 1, v{TN}", wr=[vV], rd=[TN])
    p.valu(f"v_lshl_add_u32 v{vV}, v{TM}, 10, v{vV}", wr=[vV], rd=[TM, vV])
    for r in range(64): p.valu(f"v_mov_b32 v{O+r}, 0", wr=[O+r])
    p.valu(f"v_mov_b32 v{LS}, 0", wr=[LS])
    p.valu(f"v_mov_b32 v{M}, 0xff7fffff", wr=[M])
    p.salu("s_mov_b32 s37, 0")
    p.label(f"{name}_Asl")
    p.reset_tracking()
    for j in range(8): p.bload(KF + 4*j, 4, vK, "s[8:11]", "s36", off=j*32)
    TV = 144
    for ks2 in range(2):
        for bp in range(2):
            for bb in range(2):
                blk = 2*bp + bb
                for i in range(8):
                    key = 16*ks2 + (i if i < 4 else 8 + i - 4)
                    p.salu(f"s_add_u32 s33, s36, {key*256 + blk*64}")
                    p.raw(f"    buffer_load_ushort v{TV + 8*bb + i}, v{vV}, s[12:15], s33 offen")
            p.raw("    s_waitcnt vmcnt(0)")
            for bb in range(2):
                d = VF + (ks2*4 + 2*bp + bb)*4
                for r in range(4):
                    p.valu(f"v_lshl_or_b32 v{d+r}, v{TV+8*bb+2*r+1}, 16, v{TV+8*bb+2*r}", wr=[d+r], rd=[TV+8*bb+2*r+1, TV+8*bb+2*r])
    p.raw("    s_waitcnt vmcnt(0)")
    p.reset_tracking()
    for j in range(8):
        if j == 0: p.mfma32(S0, KF, Q, czero=True)
        else: p.mfma32(S0, KF + 4*j, Q + 4*j)
    p.valu(f"v_max3_f32 v{TM}, v{S0}, v{S0+1}, v{S0+2}", wr=[TM], rd=[S0, S0+1, S0+2])
    for i in range(3, 15, 2): p.valu(f"v_max3_f32 v{TM}, v{TM}, v{S0+i}, v{S0+i+1}", wr=[TM], rd=[TM, S0+i, S0+i+1])
    p.valu(f"v_max_f32 v{TM}, v{TM}, v{S0+15}", wr=[TM], rd=[TM, S0+15])
    p.valu(f"v_mov_b32 v{TN}, v{TM}", wr=[TN], rd=[TM])
    p.perm(f"v_permlane32_swap_b32 v{TM}, v{TN}", [TM, TN])
    p.valu(f"v_max3_f32 v{TM}, v{TM}, v{TN}, v{M}", wr=[TM], rd=[TM, TN, M])
    p.valu(f"v_sub_f32 v{AL}, v{M}, v{TM}", wr=[AL], rd=[M, TM])
    p.trans(f"v_exp_f32 v{AL}, v{AL}", wr=[AL], rd=[AL])
    p.valu(f"v_mov_b32 v{M}, v{TM}", wr=[M], rd=[TM])
    p.valu(f"v_mul_f32 v{LS}, v{LS}, v{AL}", wr=[LS], rd=[LS, AL])
    for r in range(64): p.valu(f"v_mul_f32 v{O+r}, v{O+r}, v{AL}", wr=[O+r], rd=[O+r, AL])
    for i in range(16):
        p.valu(f"v_sub_f32 v{S0+i}, v{S0+i}, v{M}", wr=[S0+i], rd=[S0+i, M])
        p.trans(f"v_exp_f32 v{S0+i}, v{S0+i}", wr=[S0+i], rd=[S0+i])
    for i in range(16): p.valu(f"v_add_f32 v{LS}, v{LS}, v{S0+i}", wr=[LS], rd=[LS, S0+i])
    for i in range(8): p.valu(f"v_cvt_pk_bf16_f32 v{P0+i}, v{S0+2*i}, v{S0+2*i+1}", wr=[P0+i], rd=[S0+2*i, S0+2*i+1])
    for n in range(8): p.mfma32(O + 16*(n & 3), VF + 4*n, P0 + 4*(n >> 2))
    p.nop(16)
    p.salu("s_add_u32 s36, s36, 8192")
    p.salu("s_add_u32 s37, s37, 1")
    p.salu("s_cmp_lt_u32 s37, 32")
    p.branch(f"s_cbranch_scc1 {name}_Asl")
    p.valu(f"v_mov_b32 v{T}, v{LS}", wr=[T], rd=[LS])
    p.perm(f"v_permlane32_swap_b32 v{LS}, v{T}", [LS, T])
    p.valu(f"v_add_f32 v{LS}, v{LS}, v{T}", wr=[LS], rd=[LS, T])
    p.nop(2)
    p.branch(f"s_branch {name}_Anorm")
    p.label(f"{name}_done")
    p.raw("    s_endpgm")
    return p, name

def gen_k2(opts):
    p = Prog()
    name = opts.get("name", "k2_kernel")
    K2F = ["", " nt", " sc1", " sc0 sc1", " sc0"][opts.get("k2nt", 0)]
    st = Stamps(p, opts, key="wgt2")
    p.raw(f".globl {name}\n.p2align 8\n.type {name},@function\n{name}:")
    p.salu("s_cmp_ge_u32 s2, 256")
    p.branch(f"s_cbranch_scc1 {name}_done")
    p.salu("s_load_dwordx2 s[38:39], s[0:1], 40")
    p.salu("s_load_dwordx2 s[44:45], s[0:1], 56")
    p.valu("v_lshrrev_b32 v1, 6, v0", wr=[1], rd=[0])
    p.valu("v_and_b32 v0, 63, v0", wr=[0], rd=[0])
    p.rfl("s3", 1)
    p.salu("s_and_b32 s4, s2, 7")
    p.salu("s_lshr_b32 s5, s2, 3")
    p.salu("s_lshr_b32 s6, s4, 1"); p.salu("s_lshl_b32 s6, s6, 3"); p.salu("s_lshr_b32 s7, s5, 2"); p.salu("s_add_u32 s6, s6, s7")
    p.salu("s_and_b32 s7, s4, 1"); p.salu("s_lshl_b32 s7, s7, 2"); p.salu("s_and_b32 s5, s5, 3"); p.salu("s_add_u32 s7, s7, s5")
    ACC = 64; ST = 144; voB = 2; T = 4
    p.valu(f"v_lshlrev_b32 v{voB}, 4, v0", wr=[voB], rd=[0])
    p.salu("s_lshl_b32 s29, s6, 9"); p.salu("s_lshl_b32 s33, s3, 4"); p.salu("s_add_u32 s29, s29, s33"); p.salu("s_lshl_b32 s29, s29, 10")
    for q in range(4): p.salu(f"s_add_u32 s{48+q}, s29, {q*131072}")
    p.salu("s_mul_i32 s29, s7, 640"); p.salu("s_add_u32 s29, s29, s33"); p.salu("s_lshl_b32 s29, s29, 10")
    for nb in range(5): p.salu(f"s_add_u32 s{52+nb}, s29, {WOT + nb*131072}")
    p.raw("    s_waitcnt lgkmcnt(0)")
    if st.on:
        for k in range(16): p.raw(f"    s_mov_b32 s{70+k}, 0")
    st(0)
    srd(p, 24, 44, 0x2000000)
    srd(p, 12, 38, 2048 * 640 * 2)
    def issue(i):
        base = ST + (i % 3) * 36
        for nb in range(5):
            p.bload(base + 4*nb, 4, voB + (i >> 2), "s[24:27]", f"s{52+nb}", off=(i & 3) * 1024, tag=f"a{i}", flags=K2F)
        for q in range(4):
            p.bload(base + 20 + 4*q, 4, voB + (i >> 2), "s[24:27]", f"s{48+q}", off=(i & 3) * 1024, tag=f"b{i}", flags=K2F)
    for j in range(1, 4): p.valu(f"v_add_u32 v{voB+j}, {4096*j}, v{voB}", wr=[voB+j], rd=[voB])
    issue(0); issue(1)
    for i in range(16):
        p.comment(f"kstep {i}")
        base = ST + (i % 3) * 36
        if i + 2 < 16: issue(i + 2)
        if i == 1: st(1)
        if i == 8: st(2)
        for nb in range(5):
            for q in range(4):
                if i == 0: p.mfma16(ACC + (nb*4 + q)*4, base + 4*nb, base + 20 + 4*q, czero=True)
                else: p.mfma16(ACC + (nb*4 + q)*4, base + 4*nb, base + 20 + 4*q)
    st(3)
    T = 8
    p.salu("s_mul_i32 s33, s3, 20480")
    p.valu(f"v_add_u32 v{T}, s33, v{voB}", wr=[T], rd=[voB])
    for t in range(20):
        p.ds_write("ds_write_b128", T, ACC + 4*t, 4, off=t*1024)
    p.wait(lgkm=0)
    p.barrier()
    p.valu(f"v_and_b32 v{T+1}, 15, v0", wr=[T+1], rd=[0])
    p.valu(f"v_mul_u32_u24 v{T+1}, 1280, v{T+1}", wr=[T+1], rd=[T+1])
    p.valu(f"v_lshrrev_b32 v{T+2}, 4, v0", wr=[T+2], rd=[0])
    p.valu(f"v_lshl_add_u32 v{T+1}, v{T+2}, 3, v{T+1}", wr=[T+1], rd=[T+2, T+1])
    p.salu(f"s_mul_i32 s34, s6, {64*1280}")
    p.salu("s_mul_i32 s33, s7, 160"); p.salu("s_add_u32 s34, s34, s33")
    p.salu("s_lshl_b32 s35, s3, 10")
    p.valu(f"v_add_u32 v{T+3}, s35, v{voB}", wr=[T+3], rd=[voB])
    st(4)
    for rnd in range(3):
        if rnd == 2:
            p.salu("s_cmp_ge_u32 s3, 4")
            p.branch(f"s_cbranch_scc1 {name}_done")
        p.salu(f"s_add_u32 s40, s3, {8*rnd}")
        p.salu("s_lshr_b32 s41, s40, 2"); p.salu("s_and_b32 s42, s40, 3")
        p.salu("s_lshl_b32 s41, s41, 5")
        p.salu(f"s_mul_i32 s42, s42, {16*1280}")
        p.salu("s_add_u32 s41, s41, s42"); p.salu("s_add_u32 s41, s41, s34")
        for w in range(8):
            off = w * 20480 + rnd * 8192
            if off < 65536:
                p.ds_read("ds_read_b128", ACC + 4*w, 4, T + 3, off=off)
            else:
                p.valu(f"v_add_u32 v{T+4}, {off}, v{T+3}", wr=[T+4], rd=[T+3])
                p.ds_read("ds_read_b128", ACC + 4*w, 4, T + 4)
        for w in range(1, 8):
            for r in range(4):
                p.valu(f"v_add_f32 v{ACC+r}, v{ACC+r}, v{ACC+4*w+r}", wr=[ACC+r], rd=[ACC+r, ACC+4*w+r])
        p.valu(f"v_cvt_pk_bf16_f32 v{ACC+40}, v{ACC}, v{ACC+1}", wr=[ACC+40], rd=[ACC, ACC+1])
        p.valu(f"v_cvt_pk_bf16_f32 v{ACC+41}, v{ACC+2}, v{ACC+3}", wr=[ACC+41], rd=[ACC+2, ACC+3])
        p.bstore(ACC + 40, 2, T + 1, "s[12:15]", "s41", flags=["", " nt", " sc1", " sc0 sc1"][opts.get("outf", 0)])
        p.nop(2)
    if st.on:
        p.raw("    s_waitcnt vmcnt(0)")
        st(5); st.dump("s3")
    p.label(f"{name}_done")
    p.raw("    s_endpgm")
    return p, name

def build(path, opts={}):
    KN = "standalone__mha_block_cached__near_ridge_kernel"
    k1, n1 = gen_k1(dict(opts, name=KN))
    hdr = open("standalone__mha_block_cached__near_ridge.s.ref").read().split("; Override")[0]
    o = [hdr.rstrip()]
    o.append("; @launch grid=(256,1,1) block=(512,1,1) lds=163840")
    o.append('.amdgcn_target "amdgcn-amd-amdhsa--gfx950"\n.text')
    o.append(k1.text())
    o.append('.section .rodata,"a"\n.p2align 6')
    o.append(KD.format(name=n1, vgpr=256, sgpr=96, acc=256))
    open(path, "w").write("\n".join(o) + "\n")
    print("nops", k1.nops, "lines", len(k1.out))

if __name__ == "__main__":
    opts = {}
    for a in sys.argv[2:]:
        k, v = a.split("="); opts[k] = int(v)
    build(sys.argv[1], opts)
```

```python
import sys, struct
from fw import *

LOG2E = 1.4426950408889634
QSCALE = LOG2E / (128 ** 0.5)
def f2u(f): return struct.unpack("<I", struct.pack("<f", f))[0]

KVRING = 65536
QHAND = 0
OHAND = 32768
WOT = 0x1800000

def srd(p, dst, ptr, size):
    p.salu(f"s_mov_b32 s{dst}, s{ptr}")
    p.salu(f"s_and_b32 s{dst+1}, s{ptr+1}, 0xffff")
    p.salu(f"s_mov_b32 s{dst+2}, {hex(size)}")
    p.salu(f"s_mov_b32 s{dst+3}, 0x20000")

class Stamps:
    def __init__(s, p, opts, base=0x2000000, key="wgt"): s.p = p; s.on = opts.get(key, 0); s.base = base
    def __call__(s, k):
        if not s.on: return
        s.p.raw(f"    s_memrealtime s[68:69]\n    s_waitcnt lgkmcnt(0)\n    s_mov_b32 s{70+k}, s68")
        s.p.lg = []
    def cyc(s, k):
        if not s.on: return
        s.p.raw(f"    s_memtime s[68:69]\n    s_waitcnt lgkmcnt(0)\n    s_mov_b32 s{70+k}, s68")
        s.p.lg = []
    def dump(s, wavereg):
        if not s.on: return
        t = """    s_waitcnt vmcnt(0)
    s_mov_b32 s60, s44
    s_and_b32 s61, s45, 0xffff
    s_mov_b32 s62, 0x4000000
    s_mov_b32 s63, 0x20000
    s_lshl_b32 s64, s2, 3
    s_add_u32 s64, s64, %s
    s_lshl_b32 s64, s64, 6
    s_add_u32 s64, s64, %s
    v_mov_b32 v20, 0
""" % (wavereg, hex(s.base))
        for q in range(4):
            for i in range(4): t += f"    v_mov_b32 v{16+i}, s{70+4*q+i}\n"
            t += f"    s_nop 1\n    buffer_store_dwordx4 v[16:19], v20, s[60:63], s64 offen offset:{16*q}\n    s_nop 2\n"
        s.p.raw(t + "    s_waitcnt vmcnt(0)")

def gen_k1(opts):
    p = Prog()
    st = Stamps(p, opts)
    NT = " nt"
    WN = [" nt" if opts.get("wnt0", 1) else "", " nt" if opts.get("wnt1", 0) else ""]
    XNT = " nt" if opts.get("xnt", 1) else ""
    cur = [0]
    STF = ["", " nt", " sc1", " sc0 sc1", " sc1 nt", " sc0 sc1 nt"][opts.get("stnt", 3)]
    name = opts.get("name", "k1_kernel")
    p.raw(f".globl {name}\n.p2align 8\n.type {name},@function\n{name}:")
    p.salu("s_cmp_ge_u32 s2, 256")
    p.branch(f"s_cbranch_scc1 {name}_done")
    p.salu("s_load_dwordx8 s[36:43], s[0:1], 0")
    p.salu("s_load_dwordx2 s[44:45], s[0:1], 56")
    p.salu("s_load_dwordx2 s[52:53], s[0:1], 32")
    p.salu("s_load_dwordx4 s[56:59], s[0:1], 40")
    p.valu("v_lshrrev_b32 v1, 6, v0", wr=[1], rd=[0])
    p.valu("v_and_b32 v0, 63, v0", wr=[0], rd=[0])
    p.rfl("s3", 1)
    p.salu("s_and_b32 s4, s2, 7")
    p.salu("s_lshr_b32 s5, s2, 3")
    mp = opts.get("map", 2)
    if mp == 0:
        p.salu("s_lshr_b32 s6, s4, 1"); p.salu("s_lshl_b32 s6, s6, 2"); p.salu("s_and_b32 s7, s5, 3"); p.salu("s_add_u32 s6, s6, s7")
        p.salu("s_and_b32 s7, s4, 1"); p.salu("s_lshl_b32 s7, s7, 3"); p.salu("s_lshr_b32 s5, s5, 2"); p.salu("s_add_u32 s7, s7, s5")
    elif mp == 1:
        p.salu("s_and_b32 s6, s5, 15"); p.salu("s_lshl_b32 s7, s4, 1"); p.salu("s_lshr_b32 s5, s5, 4"); p.salu("s_add_u32 s7, s7, s5")
    elif mp == 2:
        p.salu("s_and_b32 s6, s4, 1"); p.salu("s_lshl_b32 s6, s6, 3"); p.salu("s_and_b32 s7, s5, 7"); p.salu("s_add_u32 s6, s6, s7")
        p.salu("s_lshr_b32 s7, s4, 1"); p.salu("s_lshl_b32 s7, s7, 2"); p.salu("s_lshr_b32 s5, s5, 3"); p.salu("s_add_u32 s7, s7, s5")
    if st.on:
        for k in range(16): p.raw(f"    s_mov_b32 s{70+k}, 0")
    p.raw("    s_waitcnt lgkmcnt(0)")
    st(0)
    p.salu("s_cmp_lt_u32 s3, 4")
    p.branch(f"s_cbranch_scc1 {name}_A")

    HS = 49152
    def head(team, kv_ops=None, run=None):
        A_ = team == "A"
        HA = 64 if A_ else 0
        HW = 176 if A_ else 192
        HX = 208 if A_ else 160
        aWh = 128 if A_ else 96
        aXh = aWh + 12
        voWh = 152 if A_ else 240
        voXh = 250
        T = 4
        DST = 32 if A_ else 128
        wofs = 0 if A_ else 16384
        srd(p, 16, 42, 640 * 4096 * 2)
        if not A_: srd(p, 20, 36, 16 * 128 * 640 * 2)
        p.valu(f"v_lshrrev_b32 v{T}, 4, v0", wr=[T], rd=[0])
        p.valu(f"v_and_b32 v{T+1}, 15, v0", wr=[T+1], rd=[0])
        p.valu(f"v_lshlrev_b32 v{T+2}, 2, v{T}", wr=[T+2], rd=[T])
        p.valu(f"v_xor_b32 v{T+2}, v{T+2}, v{T+1}", wr=[T+2], rd=[T+2, T+1])
        p.valu(f"v_lshlrev_b32 v{T+2}, 4, v{T+2}", wr=[T+2], rd=[T+2])
        p.valu(f"v_lshl_add_u32 v{voWh}, v{T}, 13, v{T+2}", wr=[voWh], rd=[T, T+2])
        if not A_:
            p.valu(f"v_lshl_add_u32 v249, v{T}, 8, v{T+2}", wr=[249], rd=[T, T+2])
            p.valu(f"v_lshrrev_b32 v{T+2}, 3, v0", wr=[T+2], rd=[0])
            p.valu(f"v_mul_u32_u24 v{T+2}, 1280, v{T+2}", wr=[T+2], rd=[T+2])
            p.valu(f"v_and_b32 v{T+3}, 7, v0", wr=[T+3], rd=[0])
            for e in range(2):
                p.valu(f"v_add_u32 v{T+4}, {4*e}, v{T}", wr=[T+4], rd=[T])
                p.valu(f"v_xor_b32 v{T+4}, v{T+4}, v{T+3}", wr=[T+4], rd=[T+4, T+3])
                p.valu(f"v_lshl_add_u32 v{voXh+e}, v{T+4}, 4, v{T+2}", wr=[voXh+e], rd=[T+4, T+2])
        p.salu("s_lshl_b32 s28, s3, 17"); p.salu("s_lshl_b32 s33, s6, 8"); p.salu("s_add_u32 s28, s28, s33")
        if not A_:
            p.salu("s_add_u32 s28, s28, 4096")
            p.salu("s_mul_i32 s29, s7, 163840"); p.salu(f"s_mul_i32 s33, s3, {32*1280}"); p.salu("s_add_u32 s29, s29, s33")
        p.salu("s_lshl_b32 s30, s3, 12")
        HF = " nt" if opts.get("hnt", 1) else ""
        def tile_ops(j):
            ops = []
            sb = (j % 3) * HS
            def fw(i):
                p.salu(f"s_add_u32 m0, s30, {sb + wofs + i*1024}", swr=["m0"])
                p.salu(f"s_add_u32 s33, s28, {(64*j + 4*i) * 8192}")
                p.dma(voWh, "s[16:19]", "s33", tag=f"h{j}", flags=HF)
            def fx(i):
                p.salu(f"s_add_u32 m0, s30, {sb + 32768 + i*1024}", swr=["m0"])
                p.salu(f"s_add_u32 s33, s29, {j*128 + i*10240}")
                p.dma(voXh + (i & 1), "s[20:23]", "s33", tag=f"h{j}", flags=HF)
            if opts.get("nohld"): return ops
            if not A_:
                for i in range(4): ops.append(lambda i=i: fx(i))
            for i in range(4): ops.append(lambda i=i: fw(i))
            return ops
        for j in range(3):
            for o in tile_ops(j): o()
        if opts.get("touch", 1):
            D = 252 if A_ else 252
            TT = T + 7
            p.salu("s_lshr_b32 s33, s2, 6"); p.salu("s_mul_i32 s33, s33, 112"); p.salu("s_lshl_b32 s51, s3, 5"); p.salu("s_add_u32 s33, s33, s51")
            p.salu("s_add_u32 s33, s33, 192"); p.salu("s_lshl_b32 s33, s33, 13"); p.salu("s_lshl_b32 s51, s6, 8"); p.salu("s_add_u32 s33, s33, s51")
            if not A_: p.salu("s_add_u32 s33, s33, 4096")
            p.valu(f"v_lshrrev_b32 v{TT}, 1, v0", wr=[TT], rd=[0])
            p.valu(f"v_lshlrev_b32 v{TT}, 13, v{TT}", wr=[TT], rd=[TT])
            p.valu(f"v_and_b32 v{TT+1}, 1, v0", wr=[TT+1], rd=[0])
            p.valu(f"v_lshl_add_u32 v{TT}, v{TT+1}, 7, v{TT}", wr=[TT], rd=[TT+1, TT])
            p.bload(D, 1, TT, "s[16:19]", "s33", flags=HF, tag="touch")
            if not A_:
                p.salu("s_lshr_b32 s33, s2, 3"); p.salu("s_and_b32 s33, s33, 7"); p.salu("s_lshl_b32 s33, s33, 4")
                p.salu("s_lshl_b32 s35, s3, 3"); p.salu("s_add_u32 s33, s33, s35"); p.salu("s_mul_i32 s33, s33, 1280")
                p.salu("s_mul_i32 s35, s7, 163840"); p.salu("s_add_u32 s33, s33, s35"); p.salu("s_add_u32 s33, s33, 384")
                p.salu("s_cmp_ge_u32 s3, 2"); p.salu("s_cselect_b32 s33, 0x8000000, s33")
                p.valu(f"v_lshrrev_b32 v{TT}, 3, v0", wr=[TT], rd=[0])
                p.valu(f"v_mul_u32_u24 v{TT}, 1280, v{TT}", wr=[TT], rd=[TT])
                p.valu(f"v_and_b32 v{TT+1}, 7, v0", wr=[TT+1], rd=[0])
                p.valu(f"v_lshl_add_u32 v{TT}, v{TT+1}, 7, v{TT}", wr=[TT], rd=[TT+1, TT])
                p.bload(D + 1, 1, TT, "s[20:23]", "s33", flags=HF, tag="touch")
        L = 0
        p.valu(f"v_lshrrev_b32 v{T+2}, 5, v{L}", wr=[T+2], rd=[L])
        p.valu(f"v_bfe_u32 v{T+4}, v{L}, 2, 2", wr=[T+4], rd=[L])
        p.valu(f"v_lshl_add_u32 v{T+5}, v{T+2}, 3, v{T+4}", wr=[T+5], rd=[T+2, T+4])
        p.valu(f"v_lshlrev_b32 v{T+5}, 8, v{T+5}", wr=[T+5], rd=[T+5])
        p.valu(f"v_bfe_u32 v{T+6}, v{L}, 4, 1", wr=[T+6], rd=[L])
        p.valu(f"v_lshl_add_u32 v{T+5}, v{T+6}, 5, v{T+5}", wr=[T+5], rd=[T+6, T+5])
        p.valu(f"v_and_b32 v{T+6}, 1, v{L}", wr=[T+6], rd=[L])
        p.valu(f"v_lshl_add_u32 v{T+5}, v{T+6}, 4, v{T+5}", wr=[T+5], rd=[T+6, T+5])
        p.valu(f"v_bfe_u32 v{T+6}, v{L}, 1, 1", wr=[T+6], rd=[L])
        p.valu(f"v_lshl_add_u32 v{T+5}, v{T+6}, 3, v{T+5}", wr=[T+5], rd=[T+6, T+5])
        p.valu(f"v_add_u32 v{T+5}, {wofs}, v{T+5}", wr=[T+5], rd=[T+5])
        for b in range(4):
            p.valu(f"v_xor_b32 v{T+6}, {b}, v{T+4}", wr=[T+6], rd=[T+4])
            p.valu(f"v_lshl_add_u32 v{aWh+b}, v{T+6}, 6, v{T+5}", wr=[aWh+b], rd=[T+6, T+5])
            for sl in (1, 2): p.valu(f"v_add_u32 v{aWh+4*sl+b}, {sl*HS}, v{aWh+b}", wr=[aWh+4*sl+b], rd=[aWh+b])
        p.valu(f"v_and_b32 v{T+4}, 31, v{L}", wr=[T+4], rd=[L])
        p.valu(f"v_bfe_u32 v{T+5}, v{L}, 1, 3", wr=[T+5], rd=[L])
        p.valu(f"v_xor_b32 v{T+5}, v{T+5}, v{T+2}", wr=[T+5], rd=[T+5, T+2])
        p.valu(f"v_lshlrev_b32 v{T+5}, 4, v{T+5}", wr=[T+5], rd=[T+5])
        p.valu(f"v_lshl_add_u32 v{T+5}, v{T+4}, 7, v{T+5}", wr=[T+5], rd=[T+4, T+5])
        p.salu("s_add_u32 s33, s30, 32768")
        p.valu(f"v_add_u32 v{T+5}, s33, v{T+5}", wr=[T+5], rd=[T+5])
        for ks in range(4):
            p.valu(f"v_xor_b32 v{aXh+ks}, {ks*32}, v{T+5}", wr=[aXh+ks], rd=[T+5])
            for sl in (1, 2): p.valu(f"v_add_u32 v{aXh+4*sl+ks}, {sl*HS}, v{aXh+ks}", wr=[aXh+4*sl+ks], rd=[aXh+ks])
        p.salu(f"s_mov_b32 s48, {hex(f2u(QSCALE))}")
        if not A_: kv_setup()
        for j in range(10):
            p.comment(f"head {team} step {j}")
            p.wait_tag(f"h{j}")
            p.barrier()
            if j == 0: st(1)
            sl = j % 3
            ops = tile_ops(j + 2) if 1 <= j <= 7 else []
            if not A_:
                if j == 8: ops = ops + kv_ops()
                if j == 9: ops = ops + kv_ops() + kv_ops()
            def wread(ks, blk):
                d = HW + (ks % 2) * 16 + blk * 4
                p.ds_read("ds_read_b64_tr_b16", d, 2, aWh + 4*sl + blk, off=ks*4096)
                p.ds_read("ds_read_b64_tr_b16", d + 2, 2, aWh + 4*sl + blk, off=ks*4096 + 1024)
            p.ds_read("ds_read_b128", HX, 4, aXh + 4*sl)
            for blk in range(4): wread(0, blk)
            for ks in range(1, 4): p.ds_read("ds_read_b128", HX + 4*ks, 4, aXh + 4*sl + ks)
            n = len(ops); k = 0
            for ks in range(4):
                if ks + 1 < 4:
                    for blk in range(4): wread(ks + 1, blk)
                    p.wait(lgkm=8)
                else:
                    p.wait(lgkm=0)
                for blk in range(4):
                    if j == 0 and ks == 0: p.mfma32(HA + 16*blk, HW + blk*4, HX, czero=True)
                    else: p.mfma32(HA + 16*blk, HW + (ks % 2)*16 + blk*4, HX + ks*4)
                    tgt = -(-(ks*4 + blk + 1) * n // 16)
                    while k < min(n, tgt):
                        ops[k](); k += 1
            while k < n: ops[k](); k += 1
        st(2)
        for blk in range(4):
            for u in range(2):
                base = HA + 16*blk + 8*u
                for i in range(8):
                    p.valu(f"v_mul_f32 v{base+i}, s48, v{base+i}", wr=[base+i], rd=[base+i])
                for i in range(4):
                    p.valu(f"v_cvt_pk_bf16_f32 v{DST+(blk*2+u)*4+i}, v{base+2*i}, v{base+2*i+1}", wr=[DST+(blk*2+u)*4+i], rd=[base+2*i, base+2*i+1])

    QA = 0; XR = 64; WF = 224; voW = 240; aW = 241; voK = 245; voV = 249; voX = 250; aXlo = 252; aWhi = 192; aXhi = 196
    T = 4
    p.salu("s_sub_u32 s3, s3, 4")
    QP = 128
    def kv_setup():
        srd(p, 8, 38, 0x8000000)
        srd(p, 12, 40, 0x8000000)
        srd(p, 24, 44, 0x2000000)
        T = 4
        for i in range(4):
            p.valu(f"v_add_u32 v{T+2}, {4*i}, v{T}", wr=[T+2], rd=[T])
            p.valu(f"v_xor_b32 v{T+2}, v{T+2}, v{T+1}", wr=[T+2], rd=[T+2, T+1])
            p.valu(f"v_lshlrev_b32 v{T+2}, 4, v{T+2}", wr=[T+2], rd=[T+2])
            p.valu(f"v_lshl_add_u32 v{voK+i}, v{T}, 8, v{T+2}", wr=[voK+i], rd=[T, T+2])
        p.salu("s_lshl_b32 s31, s7, 5"); p.salu("s_add_u32 s31, s31, s6"); p.salu("s_lshl_b32 s31, s31, 18"); p.salu("s_add_u32 s31, s31, s30")
        p.salu(f"s_add_u32 s32, s30, {KVRING}")
        p.salu("s_mov_b32 s34, 0")
    kvn = [0]
    def kv_ops(tag=None):
        ops = []
        tg = tag if tag else f"kv{kvn[0]}"
        kvn[0] += 1
        def k(i):
            if i == 0: p.salu("s_mov_b32 m0, s32", swr=["m0"])
            if not opts.get("nokv"): p.dma(voK + i, "s[8:11]", "s31", off=i * 1024, flags=NT, tag=tg)
        def v(i):
            if i == 0: p.salu("s_add_u32 m0, s32, 16384", swr=["m0"])
            if not opts.get("nokv"): p.dma(voV, "s[12:15]", "s31", off=i * 1024, flags=NT, tag=tg)
            if i == 3:
                p.salu("s_add_u32 s31, s31, 16384")
                p.salu("s_add_u32 s34, s34, 1")
                p.salu("s_cmp_eq_u32 s34, 16")
                p.salu(f"s_cselect_b32 s33, {hex(15 * 262144)}, 0")
                p.salu("s_add_u32 s31, s31, s33")
                p.salu("s_cmp_ge_u32 s34, 32")
                p.salu("s_cselect_b32 s31, 0x8000000, s31")
                p.salu("s_add_u32 s32, s32, 32768")
                p.salu(f"s_cmp_ge_u32 s32, {KVRING + 3*32768}")
                p.salu("s_cselect_b32 s33, 98304, 0")
                p.salu("s_sub_u32 s32, s32, s33")
        for i in range(4): ops.append(lambda i=i: k(i))
        for i in range(4): ops.append(lambda i=i: v(i))
        return ops
    def run(ops):
        for o in ops: o()
    def lane_addr(dst, base_s_text):
        p.valu(f"v_mbcnt_lo_u32_b32 v{dst}, -1, 0", wr=[dst])
        p.valu(f"v_mbcnt_hi_u32_b32 v{dst}, -1, v{dst}", wr=[dst], rd=[dst])
        p.valu(f"v_lshlrev_b32 v{dst}, 4, v{dst}", wr=[dst], rd=[dst])
        p.valu(f"v_add_u32 v{dst}, s33, v{dst}", wr=[dst], rd=[dst])
    def q2_write():
        aHW = WF
        p.salu("s_lshl_b32 s33, s3, 13")
        p.salu(f"s_add_u32 s33, s33, {QHAND}")
        lane_addr(aHW, None)
        for u in range(8): p.ds_write("ds_write_b128", aHW, QP + 4*u, 4, off=u * 1024)
        p.wait(lgkm=0)
    head("P", kv_ops, run)
    p.wait_tag("kv0")
    st(3)
    cur[0] = 1
    ACC = 64
    stage = [[144 + 4*i for i in range(18)], [4*i for i in range(16)] + [216, 220]]
    voB = 224; vZ = 228; vP = 229; vOne = 231; vPo = 232
    def out_map():
        p.salu("s_and_b32 s4, s2, 7"); p.salu("s_lshr_b32 s5, s2, 3")
        p.salu("s_lshr_b32 s33, s4, 1"); p.salu("s_lshl_b32 s33, s33, 3"); p.salu("s_lshr_b32 s35, s5, 2"); p.salu("s_add_u32 s33, s33, s35")
        p.salu("s_and_b32 s4, s4, 1"); p.salu("s_lshl_b32 s4, s4, 2"); p.salu("s_and_b32 s5, s5, 3"); p.salu("s_add_u32 s5, s4, s5")
        p.salu("s_mov_b32 s4, s33")
    def frag_bases(kstep0_reg):
        p.salu("s_lshl_b32 s33, s4, 9"); p.salu(f"s_add_u32 s33, s33, {kstep0_reg}"); p.salu("s_lshl_b32 s33, s33, 10")
        for q in range(4): p.salu(f"s_add_u32 s{36+q}, s33, {q*131072}")
        p.salu("s_mul_i32 s33, s5, 640"); p.salu(f"s_add_u32 s33, s33, {kstep0_reg}"); p.salu("s_lshl_b32 s33, s33, 10")
        for nb in range(5): p.salu(f"s_add_u32 s{sAr[nb]}, s33, {WOT + nb*131072}")
    sAr = [40, 41, 42, 43, 46]
    LDF = " sc1"
    def sig(off_ops):
        p.salu("s_cmp_lg_u32 s3, 0")
        lb = f"{name}_ns{len(p.out)}"
        p.branch(f"s_cbranch_scc1 {lb}")
        for o in off_ops: p.salu(o)
        p.salu("s_mov_b64 exec, 1")
        p.raw(f"    buffer_atomic_add v{vOne}, v{vZ}, s[16:19], s33 offen sc1")
        p.salu("s_mov_b64 exec, -1")
        p.label(lb)
    def signal_w():
        srd(p, 16, 58, 256)
        p.valu(f"v_mov_b32 v{vZ}, 0", wr=[vZ]); p.valu(f"v_mov_b32 v{vOne}, 1", wr=[vOne])
        sig(["s_mov_b32 s33, 0"])
    def signal_and_setup():
        sig(["s_lshl_b32 s33, s7, 2", "s_add_u32 s33, s33, 64"])
        for r in range(80): p.valu(f"v_mov_b32 v{ACC+r}, 0", wr=[ACC+r])
    def poll_issue():
        p.salu("s_mov_b64 exec, 3")
        p.raw(f"    buffer_load_dword v{vP}, v{vPo}, s[16:19], 0 offen sc1")
        p.salu("s_mov_b64 exec, -1")
    def poll_check(dst):
        p.raw(f"    v_readlane_b32 s33, v{vP}, 0\n    v_readlane_b32 s35, v{vP}, 1\n    s_nop 3")
        p.salu("s_cmp_ge_u32 s33, 256"); p.salu("s_cselect_b32 s33, 1, 0")
        p.salu("s_cmp_ge_u32 s35, 16"); p.salu(f"s_cselect_b32 {dst}, s33, 0")
    def o1_issue(par):
        st_ = stage[par]
        for kk in range(2):
            for nb in range(5):
                p.bload(st_[kk*9 + nb], 4, voB, "s[24:27]", f"s{sAr[nb]}", off=kk*1024, flags=LDF)
            for q in range(4):
                p.bload(st_[kk*9 + 5 + q], 4, voB, "s[24:27]", f"s{36+q}", off=kk*1024, flags=LDF)
        for r in sAr + [36, 37, 38, 39]: p.salu(f"s_add_u32 s{r}, s{r}, 2048")
    def o1_compute(par):
        st_ = stage[par]
        p.out.append(Ins("s_nop 0", "nop", states=25))
        for kk in range(2):
            for nb in range(5):
                for q in range(4):
                    p.mfma16(ACC + (nb*4 + q)*4, st_[kk*9 + nb], st_[kk*9 + 5 + q])
    def ohand_store():
        p.comment("O handoff store")
        aO = WF; voO = WF + 1
        p.salu("s_lshl_b32 s33, s3, 13"); p.salu(f"s_add_u32 s33, s33, {OHAND}")
        lane_addr(aO, None)
        for u in range(8): p.ds_read("ds_read_b128", XR + 4*u, 4, aO, off=u * 1024)
        p.valu(f"v_mbcnt_lo_u32_b32 v{voO+1}, -1, 0", wr=[voO+1])
        p.valu(f"v_mbcnt_hi_u32_b32 v{voO+1}, -1, v{voO+1}", wr=[voO+1], rd=[voO+1])
        p.valu(f"v_bfe_u32 v{voO}, v{voO+1}, 4, 1", wr=[voO], rd=[voO+1])
        p.valu(f"v_lshlrev_b32 v{voO}, 17, v{voO}", wr=[voO], rd=[voO])
        p.valu(f"v_and_b32 v{voO+2}, 15, v{voO+1}", wr=[voO+2], rd=[voO+1])
        p.valu(f"v_lshl_add_u32 v{voO}, v{voO+2}, 4, v{voO}", wr=[voO], rd=[voO+2, voO])
        p.valu(f"v_lshrrev_b32 v{voO+2}, 5, v{voO+1}", wr=[voO+2], rd=[voO+1])
        p.valu(f"v_lshl_add_u32 v{voO}, v{voO+2}, 8, v{voO}", wr=[voO], rd=[voO+2, voO])
        p.salu("s_lshl_b32 s35, s7, 3"); p.salu("s_lshl_b32 s33, s3, 1"); p.salu("s_add_u32 s35, s35, s33")
        p.salu("s_lshl_b32 s35, s35, 7"); p.salu("s_lshl_b32 s33, s6, 2"); p.salu("s_add_u32 s35, s35, s33"); p.salu("s_lshl_b32 s35, s35, 10")
        for u in range(8):
            if not opts.get("nost"): p.bstore(XR + 4*u, 4, voO, "s[24:27]", "s35", off=(u >> 1) * 1024 + (u & 1) * 512, tag="ost", flags=STF)
    def wot_issue():
        srd(p, 16, 52, 4096 * 640 * 2)
        Tm = XR
        p.valu(f"v_mbcnt_lo_u32_b32 v{Tm+8}, -1, 0", wr=[Tm+8])
        p.valu(f"v_mbcnt_hi_u32_b32 v{Tm+8}, -1, v{Tm+8}", wr=[Tm+8], rd=[Tm+8])
        p.salu("s_mov_b32 s33, 0x1999999a")
        for i in range(5):
            p.valu(f"v_add_u32 v{Tm+5}, {64*i}, v{Tm+8}", wr=[Tm+5], rd=[Tm+8])
            p.valu(f"v_mul_hi_u32 v{Tm+6}, v{Tm+5}, s33", wr=[Tm+6], rd=[Tm+5])
            p.valu(f"v_mul_u32_u24 v{Tm+7}, 10, v{Tm+6}", wr=[Tm+7], rd=[Tm+6])
            p.valu(f"v_sub_u32 v{Tm+7}, v{Tm+5}, v{Tm+7}", wr=[Tm+7], rd=[Tm+5, Tm+7])
            p.valu(f"v_mul_u32_u24 v{Tm+6}, 1280, v{Tm+6}", wr=[Tm+6], rd=[Tm+6])
            p.valu(f"v_lshl_add_u32 v{Tm+i}, v{Tm+7}, 4, v{Tm+6}", wr=[Tm+i], rd=[Tm+7, Tm+6])
        p.salu("s_lshr_b32 s35, s2, 1"); p.salu(f"s_mul_i32 s35, s35, {32*1280}")
        p.salu("s_and_b32 s33, s2, 1"); p.salu("s_mul_i32 s33, s33, 640"); p.salu("s_add_u32 s35, s35, s33")
        p.salu("s_mul_i32 s33, s3, 160"); p.salu("s_add_u32 s35, s35, s33")
        p.salu("s_mul_i32 s51, s3, 5120"); p.salu(f"s_add_u32 s51, s51, {OHAND}")
        for k in range(5):
            p.salu(f"s_add_u32 m0, s51, {k*1024}", swr=["m0"])
            p.dma(Tm + k, "s[16:19]", "s35", tag="wot", flags=" nt")
    def wot_store():
        Tm = XR
        p.wait_tag("wot")
        L = Tm + 8
        p.valu(f"v_lshrrev_b32 v{Tm}, 5, v{L}", wr=[Tm], rd=[L])
        p.valu(f"v_bfe_u32 v{Tm+1}, v{L}, 4, 1", wr=[Tm+1], rd=[L])
        p.valu(f"v_bfe_u32 v{Tm+2}, v{L}, 2, 2", wr=[Tm+2], rd=[L])
        p.valu(f"v_lshl_add_u32 v{Tm+2}, v{Tm+1}, 2, v{Tm+2}", wr=[Tm+2], rd=[Tm+1, Tm+2])
        p.valu(f"v_lshl_add_u32 v{Tm+2}, v{Tm}, 4, v{Tm+2}", wr=[Tm+2], rd=[Tm, Tm+2])
        p.valu(f"v_mul_u32_u24 v{Tm+2}, 160, v{Tm+2}", wr=[Tm+2], rd=[Tm+2])
        p.valu(f"v_and_b32 v{Tm+1}, 3, v{L}", wr=[Tm+1], rd=[L])
        p.valu(f"v_lshl_add_u32 v{Tm+2}, v{Tm+1}, 3, v{Tm+2}", wr=[Tm+2], rd=[Tm+1, Tm+2])
        p.valu(f"v_add_u32 v{Tm+2}, s51, v{Tm+2}", wr=[Tm+2], rd=[Tm+2])
        for nb in range(5):
            d = Tm + 16 + nb*4
            p.ds_read("ds_read_b64_tr_b16", d, 2, Tm + 2, off=nb*32)
            p.ds_read("ds_read_b64_tr_b16", d + 2, 2, Tm + 2, off=nb*32 + 1280)
        p.valu(f"v_lshlrev_b32 v{Tm+3}, 4, v{L}", wr=[Tm+3], rd=[L])
        p.salu("s_and_b32 s33, s2, 1"); p.salu("s_mul_i32 s33, s33, 20"); p.salu("s_mul_i32 s35, s3, 5"); p.salu("s_add_u32 s33, s33, s35")
        p.salu("s_lshl_b32 s33, s33, 7"); p.salu("s_lshr_b32 s35, s2, 1"); p.salu("s_add_u32 s33, s33, s35"); p.salu("s_lshl_b32 s33, s33, 10")
        p.salu(f"s_add_u32 s35, s33, {hex(WOT)}")
        for nb in range(5):
            p.salu(f"s_add_u32 s33, s35, {nb*131072}")
            p.bstore(Tm + 16 + nb*4, 4, Tm + 3, "s[24:27]", "s33", tag="wotst", flags=STF)
    for t in range(19):
        p.comment(f"P step t={t}")
        p.barrier()
        if t in (16, 17): st({16: 6, 17: 7}[t])
        groups = []
        if t == 13: wot_issue()
        if t == 14: wot_store()
        if t == 16: signal_w()
        if t == 18: signal_and_setup()
        if t >= 1: groups.append(kv_ops())
        for g in groups: run(g)
        if t == 14: q2_write()
        p.wait_tag(f"kv{t+1}")
    st(4)
    st(4)
    p.salu("s_mov_b32 s47, 19")
    p.label(f"{name}_Ploop")
    p.barrier()
    p.reset_tracking()
    run(kv_ops("kvn"))
    p.raw("    s_waitcnt vmcnt(8)")
    p.salu("s_add_u32 s47, s47, 1")
    p.salu("s_cmp_lt_u32 s47, 32")
    p.branch(f"s_cbranch_scc1 {name}_Ploop")
    st(5)
    p.raw("    s_waitcnt vmcnt(0)")
    p.barrier()
    p.salu("s_add_u32 s3, s3, 4")
    p.branch(f"s_branch {name}_Tail")

    p.label(f"{name}_A")
    p.out.append(Ins("s_nop 4", "nop", states=25))
    p.reset_tracking()
    O = 64; S0 = 128; S1 = 144; P0 = 160; P1 = 168; KF = 176; VF = 208; Q = 32; C = 16
    aK = 240; aV = 248; LS = 2; T = 4; aH = 14; voO = 15; aOH = 1
    if opts.get("touch"):
        TF = " nt" if opts.get("touch") == 1 else ""
        D = 200
        srd(p, 16, 42, 640 * 4096 * 2)
        srd(p, 20, 36, 16 * 128 * 640 * 2)
        p.salu("s_lshr_b32 s33, s2, 6")
        p.salu("s_mul_i32 s33, s33, 160")
        p.salu("s_lshl_b32 s33, s33, 13")
        p.salu("s_lshl_b32 s34, s6, 8"); p.salu("s_add_u32 s33, s33, s34")
        p.salu("s_lshl_b32 s34, s3, 18")
        p.salu("s_add_u32 s34, s34, s33")
        p.valu(f"v_lshrrev_b32 v{T}, 1, v0", wr=[T], rd=[0])
        p.valu(f"v_lshlrev_b32 v{T}, 13, v{T}", wr=[T], rd=[T])
        p.valu(f"v_and_b32 v{T+1}, 1, v0", wr=[T+1], rd=[0])
        p.valu(f"v_lshl_add_u32 v{T}, v{T+1}, 7, v{T}", wr=[T], rd=[T+1, T])
        p.bload(D, 1, T, "s[16:19]", "s34", flags=TF)
        p.salu(f"s_add_u32 s34, s33, {4 << 18}")
        p.bload(D + 1, 1, T, "s[16:19]", "s34", flags=TF)
        p.salu("s_lshr_b32 s33, s2, 3"); p.salu("s_and_b32 s33, s33, 7"); p.salu("s_mul_i32 s33, s33, 160")
        p.salu("s_lshl_b32 s34, s3, 6"); p.salu("s_add_u32 s33, s33, s34"); p.salu("s_lshl_b32 s33, s33, 7")
        p.salu("s_mul_i32 s34, s7, 163840"); p.salu("s_add_u32 s33, s33, s34")
        p.valu(f"v_lshlrev_b32 v{T+1}, 7, v0", wr=[T+1], rd=[0])
        p.bload(D + 2, 1, T + 1, "s[20:23]", "s33", flags=TF)
        nk = opts.get("kvtouch", 0)
        if nk:
            srd(p, 8, 38, 0x8000000); srd(p, 12, 40, 0x8000000)
            p.salu("s_lshl_b32 s33, s7, 5"); p.salu("s_add_u32 s33, s33, s6"); p.salu("s_lshl_b32 s33, s33, 18")
            p.salu("s_and_b32 s34, s3, 1"); p.salu("s_lshl_b32 s34, s34, 13"); p.salu("s_add_u32 s33, s33, s34")
            p.salu("s_cmp_ge_u32 s3, 2")
            p.salu("s_cselect_b32 s8, s12, s8"); p.salu("s_cselect_b32 s9, s13, s9")
            for t in range(nk):
                p.salu(f"s_add_u32 s34, s33, {t*16384}")
                p.bload(D + 3 + t, 1, T + 1, "s[8:11]", "s34", flags=" nt")
        p.reset_tracking()
    srd(p, 24, 44, 128 * 128 * 1024)
    p.valu(f"v_and_b32 v{T+1}, 15, v0", wr=[T+1], rd=[0])
    p.valu(f"v_and_b32 v{T}, 31, v0", wr=[T], rd=[0])
    p.valu(f"v_lshrrev_b32 v{T+2}, 5, v0", wr=[T+2], rd=[0])
    p.valu(f"v_xor_b32 v{T+3}, v{T+2}, v{T+1}", wr=[T+3], rd=[T+2, T+1])
    p.valu(f"v_lshlrev_b32 v{T+3}, 4, v{T+3}", wr=[T+3], rd=[T+3])
    p.valu(f"v_lshl_add_u32 v{T+3}, v{T}, 8, v{T+3}", wr=[T+3], rd=[T, T+3])
    p.valu(f"v_add_u32 v{T+3}, {KVRING}, v{T+3}", wr=[T+3], rd=[T+3])
    for j in range(8):
        p.valu(f"v_xor_b32 v{aK+j}, {j*32}, v{T+3}", wr=[aK+j], rd=[T+3])
    p.valu(f"v_bfe_u32 v{T+4}, v0, 2, 2", wr=[T+4], rd=[0])
    p.valu(f"v_lshl_add_u32 v{T+5}, v{T+2}, 2, v{T+4}", wr=[T+5], rd=[T+2, T+4])
    p.valu(f"v_lshlrev_b32 v{T+5}, 8, v{T+5}", wr=[T+5], rd=[T+5])
    p.valu(f"v_bfe_u32 v{T+6}, v0, 4, 1", wr=[T+6], rd=[0])
    p.valu(f"v_lshl_add_u32 v{T+5}, v{T+6}, 5, v{T+5}", wr=[T+5], rd=[T+6, T+5])
    p.valu(f"v_and_b32 v{T+6}, 3, v0", wr=[T+6], rd=[0])
    p.valu(f"v_lshl_add_u32 v{T+5}, v{T+6}, 3, v{T+5}", wr=[T+5], rd=[T+6, T+5])
    p.valu(f"v_add_u32 v{T+5}, {KVRING + 16384}, v{T+5}", wr=[T+5], rd=[T+5])
    for b in range(4):
        p.valu(f"v_xor_b32 v{T+6}, {b}, v{T+4}", wr=[T+6], rd=[T+4])
        p.valu(f"v_lshl_add_u32 v{aV+b}, v{T+6}, 6, v{T+5}", wr=[aV+b], rd=[T+6, T+5])
    p.valu(f"v_bfe_u32 v{T+6}, v0, 4, 1", wr=[T+6], rd=[0])
    p.valu(f"v_lshlrev_b32 v{T+6}, 17, v{T+6}", wr=[T+6], rd=[T+6])
    p.valu(f"v_lshl_add_u32 v{T+6}, v{T+1}, 4, v{T+6}", wr=[T+6], rd=[T+1, T+6])
    p.valu(f"v_lshl_add_u32 v{voO}, v{T+2}, 8, v{T+6}", wr=[voO], rd=[T+2, T+6])
    p.salu("s_lshl_b32 s34, s7, 3"); p.salu("s_lshl_b32 s33, s3, 1"); p.salu("s_add_u32 s34, s34, s33")
    p.salu("s_lshl_b32 s34, s34, 7"); p.salu("s_lshl_b32 s33, s6, 2"); p.salu("s_add_u32 s34, s34, s33")
    p.salu("s_add_u32 s34, s34, 64"); p.salu("s_lshl_b32 s34, s34, 10")
    p.salu("s_lshl_b32 s33, s3, 13")
    p.valu(f"v_lshlrev_b32 v{aH}, 4, v0", wr=[aH], rd=[0])
    p.valu(f"v_add_u32 v{aH}, s33, v{aH}", wr=[aH], rd=[aH])
    p.valu(f"v_add_u32 v{aOH}, {OHAND}, v{aH}", wr=[aOH], rd=[aH])
    p.salu("s_mov_b32 s49, -65536"); p.salu("s_mov_b32 s50, 32768")
    p.salu("s_mov_b32 s35, 0")
    p.salu("s_mov_b32 s46, 0")
    head("A")
    st(1); st.cyc(5)
    B = [KF, VF]
    def sm_half(S, P, half):
        ops = []
        b0 = 8 * half
        def addcvt(k):
            ops.append(lambda k=k: p.valu(f"v_add_f32 v{LS}, v{LS}, v{S+k}", wr=[LS], rd=[LS, S+k]))
            ops.append(lambda k=k: p.valu(f"v_add_f32 v{LS+1}, v{LS+1}, v{S+k+1}", wr=[LS+1], rd=[LS+1, S+k+1]))
            ops.append(lambda k=k: p.valu(f"v_cvt_pk_bf16_f32 v{P+k//2}, v{S+k}, v{S+k+1}", wr=[P+k//2], rd=[S+k, S+k+1]))
        for i in range(b0, b0 + 8, 2):
            ops.append(lambda i=i: p.trans(f"v_exp_f32 v{S+i}, v{S+i}", wr=[S+i], rd=[S+i]))
            ops.append(lambda i=i: p.trans(f"v_exp_f32 v{S+i+1}, v{S+i+1}", wr=[S+i+1], rd=[S+i+1]))
            if i >= b0 + 2: addcvt(i - 2)
        addcvt(b0 + 6)
        return ops
    def vread(bank, t, n):
        ks2, blk = n >> 2, n & 3
        d = bank + 4 * n
        ks = 2 * t + ks2
        p.ds_read("ds_read_b64_tr_b16", d, 2, aV + blk, off=ks * 4096)
        p.ds_read("ds_read_b64_tr_b16", d + 2, 2, aV + blk, off=ks * 4096 + 2048)
    def spread(ops, slots, i):
        for _ in range(slots[i]):
            if ops: ops.pop(0)()
    def step(first, par):
        KB = B[par]; VB = B[1 - par]
        p.barrier()
        p.reset_tracking()
        if first:
            p.salu("s_cmp_eq_u32 s46, 0")
            p.branch(f"s_cbranch_scc1 {name}_noq")
            for j in range(8):
                p.ds_read("ds_read_b128", Q + 4*j, 4, aH, off=QHAND + j * 1024)
            p.wait(lgkm=0)
            p.label(f"{name}_noq")
        for j in range(8):
            p.ds_read("ds_read_b128", KB + 4*j, 4, aK + j)
        if first:
            p.valu(f"v_mov_b32 v{LS}, 0", wr=[LS]); p.valu(f"v_mov_b32 v{LS+1}, 0", wr=[LS+1])
            sm = []
        else:
            sm = sm_half(S1, P1, 1)
            for _ in range(12): sm.pop(0)()
        for j in range(8):
            if j == 0: p.wait(lgkm=4)
            if j == 4: p.wait(lgkm=4)
            if j == 0:
                if first: p.mfma32(S0, KB, Q, czero=True)
                else: p.mfma32(S0, KB, Q, C=C)
            else:
                p.mfma32(S0, KB + 4*j, Q + 4*j)
            p.ds_read("ds_read_b128", KB + 4*j, 4, aK + j, off=8192)
            spread(sm, [2, 2, 2, 2, 0, 0, 0, 0], j)
        while sm: sm.pop(0)()
        if first:
            p.valu(f"v_max3_f32 v{T}, v{S0}, v{S0+1}, v{S0+2}", wr=[T], rd=[S0, S0+1, S0+2])
            for i in range(3, 15, 2):
                p.valu(f"v_max3_f32 v{T}, v{T}, v{S0+i}, v{S0+i+1}", wr=[T], rd=[T, S0+i, S0+i+1])
            p.valu(f"v_max_f32 v{T}, v{T}, v{S0+15}", wr=[T], rd=[T, S0+15])
            p.valu(f"v_mov_b32 v{T+1}, v{T}", wr=[T+1], rd=[T])
            p.perm(f"v_permlane32_swap_b32 v{T}, v{T+1}", [T, T+1])
            p.valu(f"v_max_f32 v{T}, v{T}, v{T+1}", wr=[T], rd=[T, T+1])
            for i in range(16):
                p.valu(f"v_sub_f32 v{C+i}, 0, v{T}", wr=[C+i], rd=[T])
            for i in range(16):
                p.valu(f"v_sub_f32 v{S0+i}, v{S0+i}, v{T}", wr=[S0+i], rd=[S0+i, T])
        sm = sm_half(S0, P0, 0)
        for n in range(8):
            if n in (2, 5): p.wait(lgkm=(4 if n == 2 else 6))
            if not first:
                p.mfma32(O + 16*(n & 3), VB + 4*n, P1 + 4*(n >> 2))
            vread(VB, 0, n)
            spread(sm, [0, 0, 4, 4, 3, 3, 3, 3], n)
        while sm: sm.pop(0)()
        sm = sm_half(S0, P0, 1)
        for j in range(8):
            if j in (0, 3, 6): p.wait(lgkm=6)
            if j == 0: p.mfma32(S1, KB, Q, C=C)
            else: p.mfma32(S1, KB + 4*j, Q + 4*j)
            vread(KB, 1, j)
            spread(sm, [3, 3, 3, 3, 2, 2, 2, 2], j)
        while sm: sm.pop(0)()
        p.salu("s_add_u32 s35, s35, 1")
        p.salu("s_cmp_eq_u32 s35, 3")
        p.salu("s_cselect_b32 s33, s49, s50")
        p.salu("s_cselect_b32 s35, 0, s35")
        sm = sm_half(S1, P1, 0)
        adv = [(lambda r=r: p.valu(f"v_add_u32 v{r}, s33, v{r}", wr=[r], rd=[r])) for r in list(range(aK, aK+8)) + list(range(aV, aV+4))]
        for n in range(8):
            if first and n < 4: p.mfma32(O + 16*(n & 3), VB + 4*n, P0 + 4*(n >> 2), czero=True)
            else: p.mfma32(O + 16*(n & 3), VB + 4*n, P0 + 4*(n >> 2))
            if n < 2:
                spread(adv, [6, 6], n)
            spread(sm, [0, 0, 4, 4, 3, 3, 3, 3], n)
        while sm: sm.pop(0)()
        p.wait(lgkm=0)
    p.label(f"{name}_Apair")
    step(True, 0)
    p.salu("s_mov_b32 s47, 8")
    p.label(f"{name}_Aloop")
    step(False, 1)
    p.salu("s_cmp_lt_u32 s47, 8")
    p.branch(f"s_cbranch_scc1 {name}_Anw")
    p.raw("    s_waitcnt vmcnt(0)")
    p.label(f"{name}_Anw")
    p.salu("s_sub_u32 s47, s47, 1")
    p.salu("s_cmp_eq_u32 s47, 0")
    p.branch(f"s_cbranch_scc1 {name}_Aepi")
    step(False, 0)
    p.branch(f"s_branch {name}_Aloop")
    p.label(f"{name}_Aepi")
    p.out.append(Ins("s_nop 0", "nop", states=1))
    sm = sm_half(S1, P1, 1)
    while sm: sm.pop(0)()
    for n in range(8):
        p.mfma32(O + 16*(n & 3), B[1] + 4*n, P1 + 4*(n >> 2))
    p.nop(12)
    p.valu(f"v_add_f32 v{LS}, v{LS}, v{LS+1}", wr=[LS], rd=[LS, LS+1])
    p.valu(f"v_mov_b32 v{T}, v{LS}", wr=[T], rd=[LS])
    p.perm(f"v_permlane32_swap_b32 v{LS}, v{T}", [LS, T])
    p.valu(f"v_add_f32 v{LS}, v{LS}, v{T}", wr=[LS], rd=[LS, T])
    p.trans(f"v_rcp_f32 v{T}, v{LS}", wr=[T], rd=[LS])
    for blk in range(4):
        for u in range(2):
            for i in range(8):
                r = O + 16*blk + 8*u + i
                p.valu(f"v_mul_f32 v{r}, v{r}, v{T}", wr=[r], rd=[r, T])
            d = S0 + (blk * 2 + u) * 4
            for i in range(4):
                r = O + 16*blk + 8*u + 2*i
                p.valu(f"v_cvt_pk_bf16_f32 v{d+i}, v{r}, v{r+1}", wr=[d+i], rd=[r, r+1])
    p.salu("s_cmp_eq_u32 s46, 1")
    p.branch(f"s_cbranch_scc1 {name}_Afin")
    p.salu(f"s_sub_u32 s33, s34, {64*1024}")
    for u in range(8):
        p.bstore(S0 + 4*u, 4, voO, "s[24:27]", "s33", off=(u >> 1) * 1024 + (u & 1) * 512, tag="ost", flags=STF)
    p.salu("s_mov_b32 s46, 1")
    p.nop(2)
    st(2); st.cyc(6)
    p.branch(f"s_branch {name}_Apair")
    p.label(f"{name}_Afin")
    st(3); st.cyc(7)
    for u in range(8):
        p.bstore(S0 + 4*u, 4, voO, "s[24:27]", "s34", off=(u >> 1) * 1024 + (u & 1) * 512, tag="ost", flags=STF)
    p.raw("    s_waitcnt vmcnt(0)")
    p.barrier()
    st(4)
    srd(p, 16, 58, 256)
    p.salu("s_cmp_lg_u32 s3, 0")
    p.branch(f"s_cbranch_scc1 {name}_nosigB")
    p.valu("v_mov_b32 v228, 0", wr=[228]); p.valu("v_mov_b32 v231, 1", wr=[231])
    p.salu("s_mov_b64 exec, 1")
    p.salu("s_lshl_b32 s33, s7, 2"); p.salu("s_add_u32 s33, s33, 128")
    p.raw("    buffer_atomic_add v231, v228, s[16:19], s33 offen sc1")
    p.salu("s_mov_b64 exec, -1")
    p.label(f"{name}_nosigB")
    for r in range(80): p.valu(f"v_mov_b32 v{64+r}, 0", wr=[64+r])
    p.label(f"{name}_Tail")
    p.out.append(Ins("s_nop 0", "nop", states=25))
    p.reset_tracking()
    ACC = 64; STG = 144; voB = 2; vZ = 6; vP = 8
    srd(p, 24, 44, 0x2000000)
    srd(p, 20, 56, 2048 * 640 * 2)
    out_map()
    p.valu(f"v_mbcnt_lo_u32_b32 v{voB}, -1, 0", wr=[voB])
    p.valu(f"v_mbcnt_hi_u32_b32 v{voB}, -1, v{voB}", wr=[voB], rd=[voB])
    p.valu(f"v_mov_b32 v0, v{voB}", wr=[0], rd=[voB])
    p.valu(f"v_lshlrev_b32 v{voB}, 4, v{voB}", wr=[voB], rd=[voB])
    p.valu(f"v_add_u32 v{voB+1}, 4096, v{voB}", wr=[voB+1], rd=[voB])
    p.valu(f"v_mov_b32 v{vZ}, 0", wr=[vZ])
    p.salu("s_mov_b32 s61, 1")
    p.label(f"{name}_Tround")
    p.reset_tracking()
    p.salu("s_sub_u32 s35, s61, 1"); p.salu("s_lshl_b32 s35, s35, 6"); p.salu("s_lshl_b32 s62, s3, 3"); p.salu("s_add_u32 s62, s62, s35")
    frag_bases("s62")
    p.salu("s_lshr_b32 s51, s4, 1"); p.salu("s_lshl_b32 s51, s51, 2"); p.salu("s_lshl_b32 s33, s61, 6"); p.salu("s_add_u32 s51, s51, s33")
    p.salu("s_cmp_lg_u32 s3, 0")
    p.branch(f"s_cbranch_scc1 {name}_Tgo")
    p.valu(f"v_cmp_eq_u32 vcc, 0, v0", rd=[0], swr=["vcc"])
    p.valu(f"v_mov_b32 v{vZ+1}, s51", wr=[vZ+1])
    p.nop(2)
    p.valu(f"v_cndmask_b32 v{vZ+1}, v{vZ+1}, v{vZ}, vcc", wr=[vZ+1], rd=[vZ+1, vZ])
    p.label(f"{name}_Tpoll")
    p.salu("s_mov_b64 exec, 3")
    p.raw(f"    buffer_load_dword v{vP}, v{vZ+1}, s[16:19], 0 offen sc1")
    p.salu("s_mov_b64 exec, -1")
    p.raw("    s_waitcnt vmcnt(0)")
    p.raw(f"    v_readlane_b32 s33, v{vP}, 0\n    v_readlane_b32 s35, v{vP}, 1\n    s_nop 3")
    p.salu("s_cmp_ge_u32 s33, 256"); p.salu("s_cselect_b32 s60, 1, 0")
    p.salu("s_cmp_ge_u32 s35, 16"); p.salu("s_cselect_b32 s60, s60, 0")
    p.salu("s_cmp_lg_u32 s60, 0")
    p.branch(f"s_cbranch_scc1 {name}_Tgo")
    p.raw(f"    s_sleep {opts.get('tsleep', 16)}")
    p.branch(f"s_branch {name}_Tpoll")
    p.label(f"{name}_Tgo")
    p.barrier()
    st(8)
    p.reset_tracking()
    def issue(i):
        base = STG + (i % 3) * 36
        for nb in range(5):
            p.bload(base + 4*nb, 4, voB + (i >> 2), "s[24:27]", f"s{sAr[nb]}", off=(i & 3) * 1024, tag=f"a{i}", flags=" sc1")
        for q in range(4):
            p.bload(base + 20 + 4*q, 4, voB + (i >> 2), "s[24:27]", f"s{36+q}", off=(i & 3) * 1024, tag=f"b{i}", flags=" sc1")
    issue(0); issue(1)
    for i in range(8):
        base = STG + (i % 3) * 36
        if i + 2 < 8: issue(i + 2)
        for nb in range(5):
            for q in range(4):
                p.mfma16(ACC + (nb*4 + q)*4, base + 4*nb, base + 20 + 4*q)
    if st.on:
        p.raw("    s_cmp_eq_u32 s61, 1\n    s_cbranch_scc0 %s_nst" % name)
        st(11)
        p.label(f"{name}_nst")
    p.salu("s_add_u32 s61, s61, 1")
    p.salu("s_cmp_le_u32 s61, 2")
    p.nop(8)
    p.branch(f"s_cbranch_scc1 {name}_Tround")
    st(9)
    T = 8
    p.salu("s_mul_i32 s33, s3, 20480")
    p.valu(f"v_add_u32 v{T}, s33, v{voB}", wr=[T], rd=[voB])
    for t in range(20):
        p.ds_write("ds_write_b128", T, ACC + 4*t, 4, off=t*1024)
    p.wait(lgkm=0)
    p.barrier()
    p.valu(f"v_and_b32 v{T+1}, 15, v0", wr=[T+1], rd=[0])
    p.valu(f"v_mul_u32_u24 v{T+1}, 1280, v{T+1}", wr=[T+1], rd=[T+1])
    p.valu(f"v_lshrrev_b32 v{T+2}, 4, v0", wr=[T+2], rd=[0])
    p.valu(f"v_lshl_add_u32 v{T+1}, v{T+2}, 3, v{T+1}", wr=[T+1], rd=[T+2, T+1])
    p.salu(f"s_mul_i32 s34, s4, {64*1280}")
    p.salu("s_mul_i32 s33, s5, 160"); p.salu("s_add_u32 s34, s34, s33")
    p.salu("s_lshl_b32 s35, s3, 10")
    p.valu(f"v_add_u32 v{T+3}, s35, v{voB}", wr=[T+3], rd=[voB])
    for rnd in range(3):
        if rnd == 2:
            p.salu("s_cmp_ge_u32 s3, 4")
            p.branch(f"s_cbranch_scc1 {name}_fin")
        p.salu(f"s_add_u32 s40, s3, {8*rnd}")
        p.salu("s_lshr_b32 s41, s40, 2"); p.salu("s_and_b32 s42, s40, 3")
        p.salu("s_lshl_b32 s41, s41, 5")
        p.salu(f"s_mul_i32 s42, s42, {16*1280}")
        p.salu("s_add_u32 s41, s41, s42"); p.salu("s_add_u32 s41, s41, s34")
        for w in range(8):
            off = w * 20480 + rnd * 8192
            if off < 65536:
                p.ds_read("ds_read_b128", ACC + 4*w, 4, T + 3, off=off)
            else:
                p.valu(f"v_add_u32 v{T+4}, {off}, v{T+3}", wr=[T+4], rd=[T+3])
                p.ds_read("ds_read_b128", ACC + 4*w, 4, T + 4)
        for w in range(1, 8):
            for r in range(4):
                p.valu(f"v_add_f32 v{ACC+r}, v{ACC+r}, v{ACC+4*w+r}", wr=[ACC+r], rd=[ACC+r, ACC+4*w+r])
        p.valu(f"v_cvt_pk_bf16_f32 v{ACC+40}, v{ACC}, v{ACC+1}", wr=[ACC+40], rd=[ACC, ACC+1])
        p.valu(f"v_cvt_pk_bf16_f32 v{ACC+41}, v{ACC+2}, v{ACC+3}", wr=[ACC+41], rd=[ACC+2, ACC+3])
        p.bstore(ACC + 40, 2, T + 1, "s[20:23]", "s41")
        p.nop(2)
    p.label(f"{name}_fin")
    if st.on:
        p.raw("    s_waitcnt vmcnt(0)")
        st(10); st.dump("s3")
    p.label(f"{name}_done")
    p.raw("    s_endpgm")
    return p, name

def gen_k2(opts):
    p = Prog()
    name = opts.get("name", "k2_kernel")
    K2F = ["", " nt", " sc1", " sc0 sc1", " sc0"][opts.get("k2nt", 0)]
    st = Stamps(p, opts, key="wgt2")
    p.raw(f".globl {name}\n.p2align 8\n.type {name},@function\n{name}:")
    p.salu("s_cmp_ge_u32 s2, 256")
    p.branch(f"s_cbranch_scc1 {name}_done")
    p.salu("s_load_dwordx2 s[38:39], s[0:1], 40")
    p.salu("s_load_dwordx2 s[44:45], s[0:1], 56")
    p.valu("v_lshrrev_b32 v1, 6, v0", wr=[1], rd=[0])
    p.valu("v_and_b32 v0, 63, v0", wr=[0], rd=[0])
    p.rfl("s3", 1)
    p.salu("s_and_b32 s4, s2, 7")
    p.salu("s_lshr_b32 s5, s2, 3")
    p.salu("s_lshr_b32 s6, s4, 1"); p.salu("s_lshl_b32 s6, s6, 3"); p.salu("s_lshr_b32 s7, s5, 2"); p.salu("s_add_u32 s6, s6, s7")
    p.salu("s_and_b32 s7, s4, 1"); p.salu("s_lshl_b32 s7, s7, 2"); p.salu("s_and_b32 s5, s5, 3"); p.salu("s_add_u32 s7, s7, s5")
    ACC = 64; ST = 144; voB = 2; T = 4
    p.valu(f"v_lshlrev_b32 v{voB}, 4, v0", wr=[voB], rd=[0])
    p.salu("s_lshl_b32 s29, s6, 9"); p.salu("s_lshl_b32 s33, s3, 4"); p.salu("s_add_u32 s29, s29, s33"); p.salu("s_lshl_b32 s29, s29, 10")
    for q in range(4): p.salu(f"s_add_u32 s{48+q}, s29, {q*131072}")
    p.salu("s_mul_i32 s29, s7, 640"); p.salu("s_add_u32 s29, s29, s33"); p.salu("s_lshl_b32 s29, s29, 10")
    for nb in range(5): p.salu(f"s_add_u32 s{52+nb}, s29, {WOT + nb*131072}")
    p.raw("    s_waitcnt lgkmcnt(0)")
    if st.on:
        for k in range(16): p.raw(f"    s_mov_b32 s{70+k}, 0")
    st(0)
    srd(p, 24, 44, 0x2000000)
    srd(p, 12, 38, 2048 * 640 * 2)
    def issue(i):
        base = ST + (i % 3) * 36
        for nb in range(5):
            p.bload(base + 4*nb, 4, voB + (i >> 2), "s[24:27]", f"s{52+nb}", off=(i & 3) * 1024, tag=f"a{i}", flags=K2F)
        for q in range(4):
            p.bload(base + 20 + 4*q, 4, voB + (i >> 2), "s[24:27]", f"s{48+q}", off=(i & 3) * 1024, tag=f"b{i}", flags=K2F)
    for j in range(1, 4): p.valu(f"v_add_u32 v{voB+j}, {4096*j}, v{voB}", wr=[voB+j], rd=[voB])
    issue(0); issue(1)
    for i in range(16):
        p.comment(f"kstep {i}")
        base = ST + (i % 3) * 36
        if i + 2 < 16: issue(i + 2)
        if i == 1: st(1)
        if i == 8: st(2)
        for nb in range(5):
            for q in range(4):
                if i == 0: p.mfma16(ACC + (nb*4 + q)*4, base + 4*nb, base + 20 + 4*q, czero=True)
                else: p.mfma16(ACC + (nb*4 + q)*4, base + 4*nb, base + 20 + 4*q)
    st(3)
    T = 8
    p.salu("s_mul_i32 s33, s3, 20480")
    p.valu(f"v_add_u32 v{T}, s33, v{voB}", wr=[T], rd=[voB])
    for t in range(20):
        p.ds_write("ds_write_b128", T, ACC + 4*t, 4, off=t*1024)
    p.wait(lgkm=0)
    p.barrier()
    p.valu(f"v_and_b32 v{T+1}, 15, v0", wr=[T+1], rd=[0])
    p.valu(f"v_mul_u32_u24 v{T+1}, 1280, v{T+1}", wr=[T+1], rd=[T+1])
    p.valu(f"v_lshrrev_b32 v{T+2}, 4, v0", wr=[T+2], rd=[0])
    p.valu(f"v_lshl_add_u32 v{T+1}, v{T+2}, 3, v{T+1}", wr=[T+1], rd=[T+2, T+1])
    p.salu(f"s_mul_i32 s34, s6, {64*1280}")
    p.salu("s_mul_i32 s33, s7, 160"); p.salu("s_add_u32 s34, s34, s33")
    p.salu("s_lshl_b32 s35, s3, 10")
    p.valu(f"v_add_u32 v{T+3}, s35, v{voB}", wr=[T+3], rd=[voB])
    st(4)
    for rnd in range(3):
        if rnd == 2:
            p.salu("s_cmp_ge_u32 s3, 4")
            p.branch(f"s_cbranch_scc1 {name}_done")
        p.salu(f"s_add_u32 s40, s3, {8*rnd}")
        p.salu("s_lshr_b32 s41, s40, 2"); p.salu("s_and_b32 s42, s40, 3")
        p.salu("s_lshl_b32 s41, s41, 5")
        p.salu(f"s_mul_i32 s42, s42, {16*1280}")
        p.salu("s_add_u32 s41, s41, s42"); p.salu("s_add_u32 s41, s41, s34")
        for w in range(8):
            off = w * 20480 + rnd * 8192
            if off < 65536:
                p.ds_read("ds_read_b128", ACC + 4*w, 4, T + 3, off=off)
            else:
                p.valu(f"v_add_u32 v{T+4}, {off}, v{T+3}", wr=[T+4], rd=[T+3])
                p.ds_read("ds_read_b128", ACC + 4*w, 4, T + 4)
        for w in range(1, 8):
            for r in range(4):
                p.valu(f"v_add_f32 v{ACC+r}, v{ACC+r}, v{ACC+4*w+r}", wr=[ACC+r], rd=[ACC+r, ACC+4*w+r])
        p.valu(f"v_cvt_pk_bf16_f32 v{ACC+40}, v{ACC}, v{ACC+1}", wr=[ACC+40], rd=[ACC, ACC+1])
        p.valu(f"v_cvt_pk_bf16_f32 v{ACC+41}, v{ACC+2}, v{ACC+3}", wr=[ACC+41], rd=[ACC+2, ACC+3])
        p.bstore(ACC + 40, 2, T + 1, "s[12:15]", "s41", flags=["", " nt", " sc1", " sc0 sc1"][opts.get("outf", 0)])
        p.nop(2)
    if st.on:
        p.raw("    s_waitcnt vmcnt(0)")
        st(5); st.dump("s3")
    p.label(f"{name}_done")
    p.raw("    s_endpgm")
    return p, name

def build(path, opts={}):
    KN = "standalone__mha_block_cached__near_ridge_kernel"
    k1, n1 = gen_k1(dict(opts, name=KN))
    hdr = open("standalone__mha_block_cached__near_ridge.s.ref").read().split("; Override")[0]
    o = [hdr.rstrip()]
    o.append("; @launch grid=(256,1,1) block=(512,1,1) lds=163840")
    o.append('.amdgcn_target "amdgcn-amd-amdhsa--gfx950"\n.text')
    o.append(k1.text())
    o.append('.section .rodata,"a"\n.p2align 6')
    o.append(KD.format(name=n1, vgpr=256, sgpr=96, acc=256))
    open(path, "w").write("\n".join(o) + "\n")
    print("nops", k1.nops, "lines", len(k1.out))

if __name__ == "__main__":
    opts = {}
    for a in sys.argv[2:]:
        k, v = a.split("="); opts[k] = int(v)
    build(sys.argv[1], opts)
```

```python
import sys, struct
from fw import *

LOG2E = 1.4426950408889634
QSCALE = LOG2E / (128 ** 0.5)
def f2u(f): return struct.unpack("<I", struct.pack("<f", f))[0]

KVRING = 65536
QHAND = 0
OHAND = 32768
WOT = 0x1800000

def srd(p, dst, ptr, size):
    p.salu(f"s_mov_b32 s{dst}, s{ptr}")
    p.salu(f"s_and_b32 s{dst+1}, s{ptr+1}, 0xffff")
    p.salu(f"s_mov_b32 s{dst+2}, {hex(size)}")
    p.salu(f"s_mov_b32 s{dst+3}, 0x20000")

class Stamps:
    def __init__(s, p, opts, base=0x2000000, key="wgt"): s.p = p; s.on = opts.get(key, 0); s.base = base
    def __call__(s, k):
        if not s.on: return
        s.p.raw(f"    s_memrealtime s[68:69]\n    s_waitcnt lgkmcnt(0)\n    s_mov_b32 s{70+k}, s68")
        s.p.lg = []
    def cyc(s, k):
        if not s.on: return
        s.p.raw(f"    s_memtime s[68:69]\n    s_waitcnt lgkmcnt(0)\n    s_mov_b32 s{70+k}, s68")
        s.p.lg = []
    def dump(s, wavereg):
        if not s.on: return
        t = """    s_waitcnt vmcnt(0)
    s_mov_b32 s60, s44
    s_and_b32 s61, s45, 0xffff
    s_mov_b32 s62, 0x4000000
    s_mov_b32 s63, 0x20000
    s_lshl_b32 s64, s2, 3
    s_add_u32 s64, s64, %s
    s_lshl_b32 s64, s64, 6
    s_add_u32 s64, s64, %s
    v_mov_b32 v20, 0
""" % (wavereg, hex(s.base))
        for q in range(4):
            for i in range(4): t += f"    v_mov_b32 v{16+i}, s{70+4*q+i}\n"
            t += f"    s_nop 1\n    buffer_store_dwordx4 v[16:19], v20, s[60:63], s64 offen offset:{16*q}\n    s_nop 2\n"
        s.p.raw(t + "    s_waitcnt vmcnt(0)")

def gen_k1(opts):
    p = Prog()
    st = Stamps(p, opts)
    NT = [" nt", " sc1 nt", " sc0 nt", "", " sc1"][opts.get("kvf", 0)]
    WN = [" nt" if opts.get("wnt0", 0) else "", " nt" if opts.get("wnt1", 0) else ""]
    XNT = " nt" if opts.get("xnt", 0) else ""
    cur = [0]
    STF = ["", " nt", " sc1", " sc0 sc1", " sc1 nt", " sc0 sc1 nt"][opts.get("stnt", 3)]
    name = opts.get("name", "k1_kernel")
    p.raw(f".globl {name}\n.p2align 8\n.type {name},@function\n{name}:")
    p.salu("s_cmp_ge_u32 s2, 256")
    p.branch(f"s_cbranch_scc1 {name}_done")
    p.salu("s_load_dwordx8 s[36:43], s[0:1], 0")
    p.salu("s_load_dwordx2 s[44:45], s[0:1], 56")
    p.salu("s_load_dwordx2 s[52:53], s[0:1], 32")
    p.salu("s_load_dwordx4 s[56:59], s[0:1], 40")
    p.valu("v_lshrrev_b32 v1, 6, v0", wr=[1], rd=[0])
    p.valu("v_and_b32 v0, 63, v0", wr=[0], rd=[0])
    p.rfl("s3", 1)
    p.salu("s_and_b32 s4, s2, 7")
    p.salu("s_lshr_b32 s5, s2, 3")
    mp = opts.get("map", 0)
    if mp == 0:
        p.salu("s_lshr_b32 s6, s4, 1"); p.salu("s_lshl_b32 s6, s6, 2"); p.salu("s_and_b32 s7, s5, 3"); p.salu("s_add_u32 s6, s6, s7")
        p.salu("s_and_b32 s7, s4, 1"); p.salu("s_lshl_b32 s7, s7, 3"); p.salu("s_lshr_b32 s5, s5, 2"); p.salu("s_add_u32 s7, s7, s5")
    elif mp == 1:
        p.salu("s_and_b32 s6, s5, 15"); p.salu("s_lshl_b32 s7, s4, 1"); p.salu("s_lshr_b32 s5, s5, 4"); p.salu("s_add_u32 s7, s7, s5")
    elif mp == 2:
        p.salu("s_and_b32 s6, s4, 1"); p.salu("s_lshl_b32 s6, s6, 3"); p.salu("s_and_b32 s7, s5, 7"); p.salu("s_add_u32 s6, s6, s7")
        p.salu("s_lshr_b32 s7, s4, 1"); p.salu("s_lshl_b32 s7, s7, 2"); p.salu("s_lshr_b32 s5, s5, 3"); p.salu("s_add_u32 s7, s7, s5")
    if st.on:
        for k in range(16): p.raw(f"    s_mov_b32 s{70+k}, 0")
    p.raw("    s_waitcnt lgkmcnt(0)")
    st(0)
    p.salu("s_cmp_lt_u32 s3, 4")
    p.branch(f"s_cbranch_scc1 {name}_A")

    HS = 49152
    def head(team, kv_ops=None, run=None):
        A_ = team == "A"
        HA = 64 if A_ else 0
        HW = 176 if A_ else 192
        HX = 208 if A_ else 160
        aWh = 128 if A_ else 96
        aXh = aWh + 12
        voWh = 152 if A_ else 240
        voXh = 250
        T = 4
        DST = 32 if A_ else 128
        wofs = 0 if A_ else 16384
        srd(p, 16, 42, 640 * 4096 * 2)
        if not A_: srd(p, 20, 36, 16 * 128 * 640 * 2)
        p.valu(f"v_lshrrev_b32 v{T}, 4, v0", wr=[T], rd=[0])
        p.valu(f"v_and_b32 v{T+1}, 15, v0", wr=[T+1], rd=[0])
        p.valu(f"v_lshlrev_b32 v{T+2}, 2, v{T}", wr=[T+2], rd=[T])
        p.valu(f"v_xor_b32 v{T+2}, v{T+2}, v{T+1}", wr=[T+2], rd=[T+2, T+1])
        p.valu(f"v_lshlrev_b32 v{T+2}, 4, v{T+2}", wr=[T+2], rd=[T+2])
        p.valu(f"v_lshl_add_u32 v{voWh}, v{T}, 13, v{T+2}", wr=[voWh], rd=[T, T+2])
        if not A_:
            p.valu(f"v_lshl_add_u32 v249, v{T}, 8, v{T+2}", wr=[249], rd=[T, T+2])
            p.valu(f"v_lshrrev_b32 v{T+2}, 3, v0", wr=[T+2], rd=[0])
            p.valu(f"v_mul_u32_u24 v{T+2}, 1280, v{T+2}", wr=[T+2], rd=[T+2])
            p.valu(f"v_and_b32 v{T+3}, 7, v0", wr=[T+3], rd=[0])
            for e in range(2):
                p.valu(f"v_add_u32 v{T+4}, {4*e}, v{T}", wr=[T+4], rd=[T])
                p.valu(f"v_xor_b32 v{T+4}, v{T+4}, v{T+3}", wr=[T+4], rd=[T+4, T+3])
                p.valu(f"v_lshl_add_u32 v{voXh+e}, v{T+4}, 4, v{T+2}", wr=[voXh+e], rd=[T+4, T+2])
        p.salu("s_lshl_b32 s28, s3, 17"); p.salu("s_lshl_b32 s33, s6, 8"); p.salu("s_add_u32 s28, s28, s33")
        if not A_:
            p.salu("s_add_u32 s28, s28, 4096")
            p.salu("s_mul_i32 s29, s7, 163840"); p.salu(f"s_mul_i32 s33, s3, {32*1280}"); p.salu("s_add_u32 s29, s29, s33")
        p.salu("s_lshl_b32 s30, s3, 12")
        HF = " nt" if opts.get("hnt", 0) else ""
        def tile_ops(j):
            ops = []
            sb = (j % 3) * HS
            def fw(i):
                p.salu(f"s_add_u32 m0, s30, {sb + wofs + i*1024}", swr=["m0"])
                p.salu(f"s_add_u32 s33, s28, {(64*j + 4*i) * 8192}")
                p.dma(voWh, "s[16:19]", "s33", tag=f"h{j}", flags=HF)
            def fx(i):
                p.salu(f"s_add_u32 m0, s30, {sb + 32768 + i*1024}", swr=["m0"])
                p.salu(f"s_add_u32 s33, s29, {j*128 + i*10240}")
                p.dma(voXh + (i & 1), "s[20:23]", "s33", tag=f"h{j}", flags=HF)
            if opts.get("nohld"): return ops
            if not A_:
                for i in range(4): ops.append(lambda i=i: fx(i))
            for i in range(4): ops.append(lambda i=i: fw(i))
            return ops
        for j in range(3):
            for o in tile_ops(j): o()
        if opts.get("touch", 0):
            D = 252 if A_ else 252
            TT = T + 7
            p.salu("s_lshr_b32 s33, s2, 6"); p.salu("s_mul_i32 s33, s33, 112"); p.salu("s_lshl_b32 s51, s3, 5"); p.salu("s_add_u32 s33, s33, s51")
            p.salu("s_add_u32 s33, s33, 192"); p.salu("s_lshl_b32 s33, s33, 13"); p.salu("s_lshl_b32 s51, s6, 8"); p.salu("s_add_u32 s33, s33, s51")
            if not A_: p.salu("s_add_u32 s33, s33, 4096")
            p.valu(f"v_lshrrev_b32 v{TT}, 1, v0", wr=[TT], rd=[0])
            p.valu(f"v_lshlrev_b32 v{TT}, 13, v{TT}", wr=[TT], rd=[TT])
            p.valu(f"v_and_b32 v{TT+1}, 1, v0", wr=[TT+1], rd=[0])
            p.valu(f"v_lshl_add_u32 v{TT}, v{TT+1}, 7, v{TT}", wr=[TT], rd=[TT+1, TT])
            p.bload(D, 1, TT, "s[16:19]", "s33", flags=HF, tag="touch")
            if not A_:
                p.salu("s_lshr_b32 s33, s2, 3"); p.salu("s_and_b32 s33, s33, 7"); p.salu("s_lshl_b32 s33, s33, 4")
                p.salu("s_lshl_b32 s35, s3, 3"); p.salu("s_add_u32 s33, s33, s35"); p.salu("s_mul_i32 s33, s33, 1280")
                p.salu("s_mul_i32 s35, s7, 163840"); p.salu("s_add_u32 s33, s33, s35"); p.salu("s_add_u32 s33, s33, 384")
                p.salu("s_cmp_ge_u32 s3, 2"); p.salu("s_cselect_b32 s33, 0x8000000, s33")
                p.valu(f"v_lshrrev_b32 v{TT}, 3, v0", wr=[TT], rd=[0])
                p.valu(f"v_mul_u32_u24 v{TT}, 1280, v{TT}", wr=[TT], rd=[TT])
                p.valu(f"v_and_b32 v{TT+1}, 7, v0", wr=[TT+1], rd=[0])
                p.valu(f"v_lshl_add_u32 v{TT}, v{TT+1}, 7, v{TT}", wr=[TT], rd=[TT+1, TT])
                p.bload(D + 1, 1, TT, "s[20:23]", "s33", flags=HF, tag="touch")
        L = 0
        p.valu(f"v_lshrrev_b32 v{T+2}, 5, v{L}", wr=[T+2], rd=[L])
        p.valu(f"v_bfe_u32 v{T+4}, v{L}, 2, 2", wr=[T+4], rd=[L])
        p.valu(f"v_lshl_add_u32 v{T+5}, v{T+2}, 3, v{T+4}", wr=[T+5], rd=[T+2, T+4])
        p.valu(f"v_lshlrev_b32 v{T+5}, 8, v{T+5}", wr=[T+5], rd=[T+5])
        p.valu(f"v_bfe_u32 v{T+6}, v{L}, 4, 1", wr=[T+6], rd=[L])
        p.valu(f"v_lshl_add_u32 v{T+5}, v{T+6}, 5, v{T+5}", wr=[T+5], rd=[T+6, T+5])
        p.valu(f"v_and_b32 v{T+6}, 1, v{L}", wr=[T+6], rd=[L])
        p.valu(f"v_lshl_add_u32 v{T+5}, v{T+6}, 4, v{T+5}", wr=[T+5], rd=[T+6, T+5])
        p.valu(f"v_bfe_u32 v{T+6}, v{L}, 1, 1", wr=[T+6], rd=[L])
        p.valu(f"v_lshl_add_u32 v{T+5}, v{T+6}, 3, v{T+5}", wr=[T+5], rd=[T+6, T+5])
        p.valu(f"v_add_u32 v{T+5}, {wofs}, v{T+5}", wr=[T+5], rd=[T+5])
        for b in range(4):
            p.valu(f"v_xor_b32 v{T+6}, {b}, v{T+4}", wr=[T+6], rd=[T+4])
            p.valu(f"v_lshl_add_u32 v{aWh+b}, v{T+6}, 6, v{T+5}", wr=[aWh+b], rd=[T+6, T+5])
            for sl in (1, 2): p.valu(f"v_add_u32 v{aWh+4*sl+b}, {sl*HS}, v{aWh+b}", wr=[aWh+4*sl+b], rd=[aWh+b])
        p.valu(f"v_and_b32 v{T+4}, 31, v{L}", wr=[T+4], rd=[L])
        p.valu(f"v_bfe_u32 v{T+5}, v{L}, 1, 3", wr=[T+5], rd=[L])
        p.valu(f"v_xor_b32 v{T+5}, v{T+5}, v{T+2}", wr=[T+5], rd=[T+5, T+2])
        p.valu(f"v_lshlrev_b32 v{T+5}, 4, v{T+5}", wr=[T+5], rd=[T+5])
        p.valu(f"v_lshl_add_u32 v{T+5}, v{T+4}, 7, v{T+5}", wr=[T+5], rd=[T+4, T+5])
        p.salu("s_add_u32 s33, s30, 32768")
        p.valu(f"v_add_u32 v{T+5}, s33, v{T+5}", wr=[T+5], rd=[T+5])
        for ks in range(4):
            p.valu(f"v_xor_b32 v{aXh+ks}, {ks*32}, v{T+5}", wr=[aXh+ks], rd=[T+5])
            for sl in (1, 2): p.valu(f"v_add_u32 v{aXh+4*sl+ks}, {sl*HS}, v{aXh+ks}", wr=[aXh+4*sl+ks], rd=[aXh+ks])
        p.salu(f"s_mov_b32 s48, {hex(f2u(QSCALE))}")
        if not A_: kv_setup()
        for j in range(10):
            p.comment(f"head {team} step {j}")
            p.wait_tag(f"h{j}")
            p.barrier()
            if j == 0: st(1)
            sl = j % 3
            ops = tile_ops(j + 2) if 1 <= j <= 7 else []
            if not A_:
                if j == 8: ops = ops + kv_ops()
                if j == 9: ops = ops + kv_ops() + kv_ops()
            def wread(ks, blk):
                d = HW + (ks % 2) * 16 + blk * 4
                p.ds_read("ds_read_b64_tr_b16", d, 2, aWh + 4*sl + blk, off=ks*4096)
                p.ds_read("ds_read_b64_tr_b16", d + 2, 2, aWh + 4*sl + blk, off=ks*4096 + 1024)
            HB = opts.get("hb", 1)
            p.ds_read("ds_read_b128", HX, 4, aXh + 4*sl)
            for blk in range(4): wread(0, blk)
            n = len(ops); k = 0; cnt = 0
            def emit_ops(upto):
                nonlocal k
                tgt = -(-upto * n // 16)
                while k < min(n, tgt):
                    ops[k](); k += 1
            if HB and j > 0:
                for blk in range(4):
                    p.mfma32(HA + 16*blk, HW + 16 + blk*4, HX + 12)
                    cnt += 1; emit_ops(cnt)
            for ks in range(1, 4): p.ds_read("ds_read_b128", HX + 4*ks, 4, aXh + 4*sl + ks)
            for ks in range(4):
                if ks + 1 < 4:
                    if ks == 0: p.wait(lgkm=3)
                    for blk in range(4): wread(ks + 1, blk)
                    if ks > 0: p.wait(lgkm=8)
                else:
                    p.wait(lgkm=0)
                    if HB and j < 9: break
                for blk in range(4):
                    if j == 0 and ks == 0: p.mfma32(HA + 16*blk, HW + blk*4, HX, czero=True)
                    else: p.mfma32(HA + 16*blk, HW + (ks % 2)*16 + blk*4, HX + ks*4)
                    cnt += 1; emit_ops(cnt)
            while k < n: ops[k](); k += 1
        st(2)
        for blk in range(4):
            for u in range(2):
                base = HA + 16*blk + 8*u
                for i in range(8):
                    p.valu(f"v_mul_f32 v{base+i}, s48, v{base+i}", wr=[base+i], rd=[base+i])
                for i in range(4):
                    p.valu(f"v_cvt_pk_bf16_f32 v{DST+(blk*2+u)*4+i}, v{base+2*i}, v{base+2*i+1}", wr=[DST+(blk*2+u)*4+i], rd=[base+2*i, base+2*i+1])

    QA = 0; XR = 64; WF = 224; voW = 240; aW = 241; voK = 245; voV = 249; voX = 250; aXlo = 252; aWhi = 192; aXhi = 196
    T = 4
    p.salu("s_sub_u32 s3, s3, 4")
    QP = 128
    def kv_setup():
        srd(p, 8, 38, 0x8000000)
        srd(p, 12, 40, 0x8000000)
        srd(p, 24, 44, 0x2000000)
        T = 4
        for i in range(4):
            p.valu(f"v_add_u32 v{T+2}, {4*i}, v{T}", wr=[T+2], rd=[T])
            p.valu(f"v_xor_b32 v{T+2}, v{T+2}, v{T+1}", wr=[T+2], rd=[T+2, T+1])
            p.valu(f"v_lshlrev_b32 v{T+2}, 4, v{T+2}", wr=[T+2], rd=[T+2])
            p.valu(f"v_lshl_add_u32 v{voK+i}, v{T}, 8, v{T+2}", wr=[voK+i], rd=[T, T+2])
        p.salu("s_lshl_b32 s31, s7, 5"); p.salu("s_add_u32 s31, s31, s6"); p.salu("s_lshl_b32 s31, s31, 18"); p.salu("s_add_u32 s31, s31, s30")
        p.salu(f"s_add_u32 s32, s30, {KVRING}")
        p.salu("s_mov_b32 s34, 0")
    kvn = [0]
    def kv_ops(tag=None):
        ops = []
        tg = tag if tag else f"kv{kvn[0]}"
        kvn[0] += 1
        def k(i):
            if i == 0: p.salu("s_mov_b32 m0, s32", swr=["m0"])
            if not opts.get("nokv"): p.dma(voK + i, "s[8:11]", "s31", off=i * 1024, flags=NT, tag=tg)
        def v(i):
            if i == 0: p.salu("s_add_u32 m0, s32, 16384", swr=["m0"])
            if not opts.get("nokv"): p.dma(voV, "s[12:15]", "s31", off=i * 1024, flags=NT, tag=tg)
            if i == 3:
                p.salu("s_add_u32 s31, s31, 16384")
                p.salu("s_add_u32 s34, s34, 1")
                p.salu("s_cmp_eq_u32 s34, 16")
                p.salu(f"s_cselect_b32 s33, {hex(15 * 262144)}, 0")
                p.salu("s_add_u32 s31, s31, s33")
                p.salu("s_cmp_ge_u32 s34, 32")
                p.salu("s_cselect_b32 s31, 0x8000000, s31")
                p.salu("s_add_u32 s32, s32, 32768")
                p.salu(f"s_cmp_ge_u32 s32, {KVRING + 3*32768}")
                p.salu("s_cselect_b32 s33, 98304, 0")
                p.salu("s_sub_u32 s32, s32, s33")
        for i in range(4): ops.append(lambda i=i: k(i))
        for i in range(4): ops.append(lambda i=i: v(i))
        return ops
    def run(ops):
        for o in ops: o()
    def lane_addr(dst, base_s_text):
        p.valu(f"v_mbcnt_lo_u32_b32 v{dst}, -1, 0", wr=[dst])
        p.valu(f"v_mbcnt_hi_u32_b32 v{dst}, -1, v{dst}", wr=[dst], rd=[dst])
        p.valu(f"v_lshlrev_b32 v{dst}, 4, v{dst}", wr=[dst], rd=[dst])
        p.valu(f"v_add_u32 v{dst}, s33, v{dst}", wr=[dst], rd=[dst])
    def q2_write():
        aHW = WF
        p.salu("s_lshl_b32 s33, s3, 13")
        p.salu(f"s_add_u32 s33, s33, {QHAND}")
        lane_addr(aHW, None)
        for u in range(8): p.ds_write("ds_write_b128", aHW, QP + 4*u, 4, off=u * 1024)
        p.wait(lgkm=0)
    head("P", kv_ops, run)
    p.wait_tag("kv0")
    st(3)
    cur[0] = 1
    ACC = 64
    stage = [[144 + 4*i for i in range(18)], [4*i for i in range(16)] + [216, 220]]
    voB = 224; vZ = 228; vP = 229; vOne = 231; vPo = 232
    def out_map():
        p.salu("s_and_b32 s4, s2, 7"); p.salu("s_lshr_b32 s5, s2, 3")
        p.salu("s_lshr_b32 s33, s4, 1"); p.salu("s_lshl_b32 s33, s33, 3"); p.salu("s_lshr_b32 s35, s5, 2"); p.salu("s_add_u32 s33, s33, s35")
        p.salu("s_and_b32 s4, s4, 1"); p.salu("s_lshl_b32 s4, s4, 2"); p.salu("s_and_b32 s5, s5, 3"); p.salu("s_add_u32 s5, s4, s5")
        p.salu("s_mov_b32 s4, s33")
    def frag_bases(kstep0_reg):
        p.salu("s_lshl_b32 s33, s4, 9"); p.salu(f"s_add_u32 s33, s33, {kstep0_reg}"); p.salu("s_lshl_b32 s33, s33, 10")
        for q in range(4): p.salu(f"s_add_u32 s{36+q}, s33, {q*131072}")
        p.salu("s_mul_i32 s33, s5, 640"); p.salu(f"s_add_u32 s33, s33, {kstep0_reg}"); p.salu("s_lshl_b32 s33, s33, 10")
        for nb in range(5): p.salu(f"s_add_u32 s{sAr[nb]}, s33, {WOT + nb*131072}")
    sAr = [40, 41, 42, 43, 46]
    LDF = " sc1"
    def sig(off_ops):
        p.salu("s_cmp_lg_u32 s3, 0")
        lb = f"{name}_ns{len(p.out)}"
        p.branch(f"s_cbranch_scc1 {lb}")
        for o in off_ops: p.salu(o)
        p.salu("s_mov_b64 exec, 1")
        p.raw(f"    buffer_atomic_add v{vOne}, v{vZ}, s[16:19], s33 offen sc1")
        p.salu("s_mov_b64 exec, -1")
        p.label(lb)
    def signal_w():
        srd(p, 16, 58, 256)
        p.valu(f"v_mov_b32 v{vZ}, 0", wr=[vZ]); p.valu(f"v_mov_b32 v{vOne}, 1", wr=[vOne])
        sig(["s_mov_b32 s33, 0"])
    def signal_and_setup():
        sig(["s_lshl_b32 s33, s7, 2", "s_add_u32 s33, s33, 64"])
        for r in range(80): p.valu(f"v_mov_b32 v{ACC+r}, 0", wr=[ACC+r])
    def poll_issue():
        p.salu("s_mov_b64 exec, 3")
        p.raw(f"    buffer_load_dword v{vP}, v{vPo}, s[16:19], 0 offen sc1")
        p.salu("s_mov_b64 exec, -1")
    def poll_check(dst):
        p.raw(f"    v_readlane_b32 s33, v{vP}, 0\n    v_readlane_b32 s35, v{vP}, 1\n    s_nop 3")
        p.salu("s_cmp_ge_u32 s33, 256"); p.salu("s_cselect_b32 s33, 1, 0")
        p.salu("s_cmp_ge_u32 s35, 16"); p.salu(f"s_cselect_b32 {dst}, s33, 0")
    def o1_issue(par):
        st_ = stage[par]
        for kk in range(2):
            for nb in range(5):
                p.bload(st_[kk*9 + nb], 4, voB, "s[24:27]", f"s{sAr[nb]}", off=kk*1024, flags=LDF)
            for q in range(4):
                p.bload(st_[kk*9 + 5 + q], 4, voB, "s[24:27]", f"s{36+q}", off=kk*1024, flags=LDF)
        for r in sAr + [36, 37, 38, 39]: p.salu(f"s_add_u32 s{r}, s{r}, 2048")
    def o1_compute(par):
        st_ = stage[par]
        p.out.append(Ins("s_nop 0", "nop", states=25))
        for kk in range(2):
            for nb in range(5):
                for q in range(4):
                    p.mfma16(ACC + (nb*4 + q)*4, st_[kk*9 + nb], st_[kk*9 + 5 + q])
    def ohand_store():
        p.comment("O handoff store")
        aO = WF; voO = WF + 1
        p.salu("s_lshl_b32 s33, s3, 13"); p.salu(f"s_add_u32 s33, s33, {OHAND}")
        lane_addr(aO, None)
        for u in range(8): p.ds_read("ds_read_b128", XR + 4*u, 4, aO, off=u * 1024)
        p.valu(f"v_mbcnt_lo_u32_b32 v{voO+1}, -1, 0", wr=[voO+1])
        p.valu(f"v_mbcnt_hi_u32_b32 v{voO+1}, -1, v{voO+1}", wr=[voO+1], rd=[voO+1])
        p.valu(f"v_bfe_u32 v{voO}, v{voO+1}, 4, 1", wr=[voO], rd=[voO+1])
        p.valu(f"v_lshlrev_b32 v{voO}, 17, v{voO}", wr=[voO], rd=[voO])
        p.valu(f"v_and_b32 v{voO+2}, 15, v{voO+1}", wr=[voO+2], rd=[voO+1])
        p.valu(f"v_lshl_add_u32 v{voO}, v{voO+2}, 4, v{voO}", wr=[voO], rd=[voO+2, voO])
        p.valu(f"v_lshrrev_b32 v{voO+2}, 5, v{voO+1}", wr=[voO+2], rd=[voO+1])
        p.valu(f"v_lshl_add_u32 v{voO}, v{voO+2}, 8, v{voO}", wr=[voO], rd=[voO+2, voO])
        p.salu("s_lshl_b32 s35, s7, 3"); p.salu("s_lshl_b32 s33, s3, 1"); p.salu("s_add_u32 s35, s35, s33")
        p.salu("s_lshl_b32 s35, s35, 7"); p.salu("s_lshl_b32 s33, s6, 2"); p.salu("s_add_u32 s35, s35, s33"); p.salu("s_lshl_b32 s35, s35, 10")
        for u in range(8):
            if not opts.get("nost"): p.bstore(XR + 4*u, 4, voO, "s[24:27]", "s35", off=(u >> 1) * 1024 + (u & 1) * 512, tag="ost", flags=STF)
    def wot_issue():
        srd(p, 16, 52, 4096 * 640 * 2)
        Tm = XR
        p.valu(f"v_mbcnt_lo_u32_b32 v{Tm+8}, -1, 0", wr=[Tm+8])
        p.valu(f"v_mbcnt_hi_u32_b32 v{Tm+8}, -1, v{Tm+8}", wr=[Tm+8], rd=[Tm+8])
        p.salu("s_mov_b32 s33, 0x1999999a")
        for i in range(5):
            p.valu(f"v_add_u32 v{Tm+5}, {64*i}, v{Tm+8}", wr=[Tm+5], rd=[Tm+8])
            p.valu(f"v_mul_hi_u32 v{Tm+6}, v{Tm+5}, s33", wr=[Tm+6], rd=[Tm+5])
            p.valu(f"v_mul_u32_u24 v{Tm+7}, 10, v{Tm+6}", wr=[Tm+7], rd=[Tm+6])
            p.valu(f"v_sub_u32 v{Tm+7}, v{Tm+5}, v{Tm+7}", wr=[Tm+7], rd=[Tm+5, Tm+7])
            p.valu(f"v_mul_u32_u24 v{Tm+6}, 1280, v{Tm+6}", wr=[Tm+6], rd=[Tm+6])
            p.valu(f"v_lshl_add_u32 v{Tm+i}, v{Tm+7}, 4, v{Tm+6}", wr=[Tm+i], rd=[Tm+7, Tm+6])
        p.salu("s_lshr_b32 s35, s2, 1"); p.salu(f"s_mul_i32 s35, s35, {32*1280}")
        p.salu("s_and_b32 s33, s2, 1"); p.salu("s_mul_i32 s33, s33, 640"); p.salu("s_add_u32 s35, s35, s33")
        p.salu("s_mul_i32 s33, s3, 160"); p.salu("s_add_u32 s35, s35, s33")
        p.salu("s_mul_i32 s51, s3, 5120"); p.salu(f"s_add_u32 s51, s51, {OHAND}")
        for k in range(5):
            p.salu(f"s_add_u32 m0, s51, {k*1024}", swr=["m0"])
            p.dma(Tm + k, "s[16:19]", "s35", tag="wot", flags=(" nt" if opts.get("wof", 0) else ""))
    def wot_store():
        Tm = XR
        p.wait_tag("wot")
        L = Tm + 8
        p.valu(f"v_lshrrev_b32 v{Tm}, 5, v{L}", wr=[Tm], rd=[L])
        p.valu(f"v_bfe_u32 v{Tm+1}, v{L}, 4, 1", wr=[Tm+1], rd=[L])
        p.valu(f"v_bfe_u32 v{Tm+2}, v{L}, 2, 2", wr=[Tm+2], rd=[L])
        p.valu(f"v_lshl_add_u32 v{Tm+2}, v{Tm+1}, 2, v{Tm+2}", wr=[Tm+2], rd=[Tm+1, Tm+2])
        p.valu(f"v_lshl_add_u32 v{Tm+2}, v{Tm}, 4, v{Tm+2}", wr=[Tm+2], rd=[Tm, Tm+2])
        p.valu(f"v_mul_u32_u24 v{Tm+2}, 160, v{Tm+2}", wr=[Tm+2], rd=[Tm+2])
        p.valu(f"v_and_b32 v{Tm+1}, 3, v{L}", wr=[Tm+1], rd=[L])
        p.valu(f"v_lshl_add_u32 v{Tm+2}, v{Tm+1}, 3, v{Tm+2}", wr=[Tm+2], rd=[Tm+1, Tm+2])
        p.valu(f"v_add_u32 v{Tm+2}, s51, v{Tm+2}", wr=[Tm+2], rd=[Tm+2])
        for nb in range(5):
            d = Tm + 16 + nb*4
            p.ds_read("ds_read_b64_tr_b16", d, 2, Tm + 2, off=nb*32)
            p.ds_read("ds_read_b64_tr_b16", d + 2, 2, Tm + 2, off=nb*32 + 1280)
        p.valu(f"v_lshlrev_b32 v{Tm+3}, 4, v{L}", wr=[Tm+3], rd=[L])
        p.salu("s_and_b32 s33, s2, 1"); p.salu("s_mul_i32 s33, s33, 20"); p.salu("s_mul_i32 s35, s3, 5"); p.salu("s_add_u32 s33, s33, s35")
        p.salu("s_lshl_b32 s33, s33, 7"); p.salu("s_lshr_b32 s35, s2, 1"); p.salu("s_add_u32 s33, s33, s35"); p.salu("s_lshl_b32 s33, s33, 10")
        p.salu(f"s_add_u32 s35, s33, {hex(WOT)}")
        for nb in range(5):
            p.salu(f"s_add_u32 s33, s35, {nb*131072}")
            p.bstore(Tm + 16 + nb*4, 4, Tm + 3, "s[24:27]", "s33", tag="wotst", flags=STF)
    for t in range(19):
        p.comment(f"P step t={t}")
        p.barrier()
        if t in (16, 17): st({16: 6, 17: 7}[t])
        groups = []
        if t == 13 and not opts.get("nowot"): wot_issue()
        if t == 14 and not opts.get("nowot"): wot_store()
        if t == 16: signal_w()
        if t == 18: signal_and_setup()
        if t >= 1: groups.append(kv_ops())
        for g in groups: run(g)
        if t == 14: q2_write()
        p.wait_tag(f"kv{t+1}")
    st(4)
    st(4)
    p.salu("s_mov_b32 s47, 19")
    p.label(f"{name}_Ploop")
    p.barrier()
    p.reset_tracking()
    run(kv_ops("kvn"))
    p.raw("    s_waitcnt vmcnt(8)")
    p.salu("s_add_u32 s47, s47, 1")
    p.salu("s_cmp_lt_u32 s47, 30")
    p.branch(f"s_cbranch_scc1 {name}_Ploop")
    p.barrier()
    p.reset_tracking()
    out_map()
    p.salu("s_lshr_b32 s51, s4, 1"); p.salu("s_lshl_b32 s51, s51, 2"); p.salu("s_add_u32 s51, s51, 64")
    p.valu(f"v_mbcnt_lo_u32_b32 v{vPo+1}, -1, 0", wr=[vPo+1])
    p.valu(f"v_mbcnt_hi_u32_b32 v{vPo+1}, -1, v{vPo+1}", wr=[vPo+1], rd=[vPo+1])
    p.valu(f"v_cmp_eq_u32 vcc, 0, v{vPo+1}", rd=[vPo+1], swr=["vcc"])
    p.valu(f"v_mov_b32 v{vPo}, s51", wr=[vPo])
    p.nop(2)
    p.valu(f"v_cndmask_b32 v{vPo}, v{vPo}, v{vZ}, vcc", wr=[vPo], rd=[vPo, vZ])
    p.salu("s_cmp_lg_u32 s3, 0")
    p.branch(f"s_cbranch_scc1 {name}_np30")
    poll_issue()
    p.label(f"{name}_np30")
    p.raw("    s_waitcnt vmcnt(1)")
    p.raw("    s_cmp_eq_u32 s3, 0\n    s_cbranch_scc1 %s_w30\n    s_waitcnt vmcnt(0)\n%s_w30:" % (name, name))
    p.barrier()
    p.raw("    s_waitcnt vmcnt(0)")
    p.salu("s_cmp_lg_u32 s3, 0")
    p.branch(f"s_cbranch_scc1 {name}_np31")
    poll_check("s35")
    p.raw(f"    v_mov_b32 v{vP+1}, s35\n    ds_write_b32 v{vZ}, v{vP+1}\n    s_waitcnt lgkmcnt(0)")
    p.label(f"{name}_np31")
    st(5)
    p.raw("    s_waitcnt vmcnt(0)")
    p.barrier()
    p.salu("s_add_u32 s3, s3, 4")
    p.branch(f"s_branch {name}_Tail")

    p.label(f"{name}_A")
    p.out.append(Ins("s_nop 4", "nop", states=25))
    p.reset_tracking()
    O = 64; S0 = 128; S1 = 144; P0 = 160; P1 = 168; KF = 176; VF = 208; Q = 32; C = 16
    aK = 240; aV = 248; LS = 2; T = 4; aH = 14; voO = 15; aOH = 1
    def a_touch():
        TF = " nt"
        D = 200
        k0 = opts.get("touchk0", 4)
        nrow = (10 - k0) * 64
        q = nrow // 4
        srd(p, 16, 42, 640 * 4096 * 2); srd(p, 20, 36, 16 * 128 * 640 * 2)
        ninst = -(-2*q // 64)
        p.salu("s_lshr_b32 s33, s2, 6"); p.salu(f"s_mul_i32 s33, s33, {q}"); p.salu(f"s_add_u32 s33, s33, {k0*64}")
        p.salu("s_lshl_b32 s28, s3, 5"); p.salu("s_add_u32 s33, s33, s28"); p.salu("s_lshl_b32 s33, s33, 13")
        p.salu("s_lshl_b32 s28, s6, 8"); p.salu("s_add_u32 s33, s33, s28")
        p.valu(f"v_lshrrev_b32 v{T}, 1, v0", wr=[T], rd=[0])
        p.valu(f"v_lshlrev_b32 v{T}, 13, v{T}", wr=[T], rd=[T])
        p.valu(f"v_and_b32 v{T+1}, 1, v0", wr=[T+1], rd=[0])
        p.valu(f"v_lshl_add_u32 v{T}, v{T+1}, 7, v{T}", wr=[T], rd=[T+1, T])
        p.bload(D, 1, T, "s[16:19]", "s33", flags=TF)
        if ninst > 4:
            p.salu(f"s_add_u32 s33, s33, {128 << 13}")
            p.bload(D + 1, 1, T, "s[16:19]", "s33", flags=TF)
        p.salu("s_lshr_b32 s33, s2, 3"); p.salu("s_and_b32 s33, s33, 7"); p.salu("s_lshl_b32 s33, s33, 4")
        p.salu("s_lshl_b32 s28, s3, 3"); p.salu("s_add_u32 s33, s33, s28"); p.salu("s_mul_i32 s33, s33, 1280")
        p.salu("s_mul_i32 s28, s7, 163840"); p.salu("s_add_u32 s33, s33, s28"); p.salu(f"s_add_u32 s33, s33, {k0*128}")
        p.salu("s_cmp_ge_u32 s3, 2"); p.salu("s_cselect_b32 s33, 0x8000000, s33")
        p.valu(f"v_lshrrev_b32 v{T}, 3, v0", wr=[T], rd=[0])
        p.valu(f"v_mul_u32_u24 v{T}, 1280, v{T}", wr=[T], rd=[T])
        p.valu(f"v_and_b32 v{T+1}, 7, v0", wr=[T+1], rd=[0])
        p.valu(f"v_lshl_add_u32 v{T}, v{T+1}, 7, v{T}", wr=[T], rd=[T+1, T])
        p.bload(D + 2, 1, T, "s[20:23]", "s33", flags=TF)
        p.reset_tracking()
    srd(p, 24, 44, 128 * 128 * 1024)
    p.valu(f"v_and_b32 v{T+1}, 15, v0", wr=[T+1], rd=[0])
    p.valu(f"v_and_b32 v{T}, 31, v0", wr=[T], rd=[0])
    p.valu(f"v_lshrrev_b32 v{T+2}, 5, v0", wr=[T+2], rd=[0])
    p.valu(f"v_xor_b32 v{T+3}, v{T+2}, v{T+1}", wr=[T+3], rd=[T+2, T+1])
    p.valu(f"v_lshlrev_b32 v{T+3}, 4, v{T+3}", wr=[T+3], rd=[T+3])
    p.valu(f"v_lshl_add_u32 v{T+3}, v{T}, 8, v{T+3}", wr=[T+3], rd=[T, T+3])
    p.valu(f"v_add_u32 v{T+3}, {KVRING}, v{T+3}", wr=[T+3], rd=[T+3])
    for j in range(8):
        p.valu(f"v_xor_b32 v{aK+j}, {j*32}, v{T+3}", wr=[aK+j], rd=[T+3])
    p.valu(f"v_bfe_u32 v{T+4}, v0, 2, 2", wr=[T+4], rd=[0])
    p.valu(f"v_lshl_add_u32 v{T+5}, v{T+2}, 2, v{T+4}", wr=[T+5], rd=[T+2, T+4])
    p.valu(f"v_lshlrev_b32 v{T+5}, 8, v{T+5}", wr=[T+5], rd=[T+5])
    p.valu(f"v_bfe_u32 v{T+6}, v0, 4, 1", wr=[T+6], rd=[0])
    p.valu(f"v_lshl_add_u32 v{T+5}, v{T+6}, 5, v{T+5}", wr=[T+5], rd=[T+6, T+5])
    p.valu(f"v_and_b32 v{T+6}, 3, v0", wr=[T+6], rd=[0])
    p.valu(f"v_lshl_add_u32 v{T+5}, v{T+6}, 3, v{T+5}", wr=[T+5], rd=[T+6, T+5])
    p.valu(f"v_add_u32 v{T+5}, {KVRING + 16384}, v{T+5}", wr=[T+5], rd=[T+5])
    for b in range(4):
        p.valu(f"v_xor_b32 v{T+6}, {b}, v{T+4}", wr=[T+6], rd=[T+4])
        p.valu(f"v_lshl_add_u32 v{aV+b}, v{T+6}, 6, v{T+5}", wr=[aV+b], rd=[T+6, T+5])
    p.valu(f"v_bfe_u32 v{T+6}, v0, 4, 1", wr=[T+6], rd=[0])
    p.valu(f"v_lshlrev_b32 v{T+6}, 17, v{T+6}", wr=[T+6], rd=[T+6])
    p.valu(f"v_lshl_add_u32 v{T+6}, v{T+1}, 4, v{T+6}", wr=[T+6], rd=[T+1, T+6])
    p.valu(f"v_lshl_add_u32 v{voO}, v{T+2}, 8, v{T+6}", wr=[voO], rd=[T+2, T+6])
    p.salu("s_lshl_b32 s34, s7, 3"); p.salu("s_lshl_b32 s33, s3, 1"); p.salu("s_add_u32 s34, s34, s33")
    p.salu("s_lshl_b32 s34, s34, 7"); p.salu("s_lshl_b32 s33, s6, 2"); p.salu("s_add_u32 s34, s34, s33")
    p.salu("s_add_u32 s34, s34, 64"); p.salu("s_lshl_b32 s34, s34, 10")
    p.salu("s_lshl_b32 s33, s3, 13")
    p.valu(f"v_lshlrev_b32 v{aH}, 4, v0", wr=[aH], rd=[0])
    p.valu(f"v_add_u32 v{aH}, s33, v{aH}", wr=[aH], rd=[aH])
    p.valu(f"v_add_u32 v{aOH}, {OHAND}, v{aH}", wr=[aOH], rd=[aH])
    p.salu("s_mov_b32 s49, -65536"); p.salu("s_mov_b32 s50, 32768")
    p.salu("s_mov_b32 s35, 0")
    p.salu("s_mov_b32 s46, 0")
    head("A")
    st(1); st.cyc(5)
    B = [KF, VF]
    def sm_half(S, P, half):
        ops = []
        b0 = 8 * half
        def addcvt(k):
            ops.append(lambda k=k: p.valu(f"v_add_f32 v{LS}, v{LS}, v{S+k}", wr=[LS], rd=[LS, S+k]))
            ops.append(lambda k=k: p.valu(f"v_add_f32 v{LS+1}, v{LS+1}, v{S+k+1}", wr=[LS+1], rd=[LS+1, S+k+1]))
            ops.append(lambda k=k: p.valu(f"v_cvt_pk_bf16_f32 v{P+k//2}, v{S+k}, v{S+k+1}", wr=[P+k//2], rd=[S+k, S+k+1]))
        for i in range(b0, b0 + 8, 2):
            ops.append(lambda i=i: p.trans(f"v_exp_f32 v{S+i}, v{S+i}", wr=[S+i], rd=[S+i]))
            ops.append(lambda i=i: p.trans(f"v_exp_f32 v{S+i+1}, v{S+i+1}", wr=[S+i+1], rd=[S+i+1]))
            if i >= b0 + 2: addcvt(i - 2)
        addcvt(b0 + 6)
        return ops
    def vread(bank, t, n):
        ks2, blk = n >> 2, n & 3
        d = bank + 4 * n
        ks = 2 * t + ks2
        p.ds_read("ds_read_b64_tr_b16", d, 2, aV + blk, off=ks * 4096)
        p.ds_read("ds_read_b64_tr_b16", d + 2, 2, aV + blk, off=ks * 4096 + 2048)
    def spread(ops, slots, i):
        for _ in range(slots[i]):
            if ops: ops.pop(0)()
    def step(first, par):
        KB = B[par]; VB = B[1 - par]
        p.barrier()
        p.reset_tracking()
        if first:
            p.salu("s_cmp_eq_u32 s46, 0")
            p.branch(f"s_cbranch_scc1 {name}_noq")
            for j in range(8):
                p.ds_read("ds_read_b128", Q + 4*j, 4, aH, off=QHAND + j * 1024)
            p.wait(lgkm=0)
            p.label(f"{name}_noq")
        for j in range(8):
            p.ds_read("ds_read_b128", KB + 4*j, 4, aK + j)
        if first:
            p.valu(f"v_mov_b32 v{LS}, 0", wr=[LS]); p.valu(f"v_mov_b32 v{LS+1}, 0", wr=[LS+1])
            sm = []
        else:
            sm = sm_half(S1, P1, 1)
            for _ in range(12): sm.pop(0)()
        for j in range(8):
            if j == 0: p.wait(lgkm=4)
            if j == 4: p.wait(lgkm=4)
            if j == 0:
                if first: p.mfma32(S0, KB, Q, czero=True)
                else: p.mfma32(S0, KB, Q, C=C)
            else:
                p.mfma32(S0, KB + 4*j, Q + 4*j)
            p.ds_read("ds_read_b128", KB + 4*j, 4, aK + j, off=8192)
            spread(sm, [2, 2, 2, 2, 0, 0, 0, 0], j)
        while sm: sm.pop(0)()
        if first:
            p.valu(f"v_max3_f32 v{T}, v{S0}, v{S0+1}, v{S0+2}", wr=[T], rd=[S0, S0+1, S0+2])
            for i in range(3, 15, 2):
                p.valu(f"v_max3_f32 v{T}, v{T}, v{S0+i}, v{S0+i+1}", wr=[T], rd=[T, S0+i, S0+i+1])
            p.valu(f"v_max_f32 v{T}, v{T}, v{S0+15}", wr=[T], rd=[T, S0+15])
            p.valu(f"v_mov_b32 v{T+1}, v{T}", wr=[T+1], rd=[T])
            p.perm(f"v_permlane32_swap_b32 v{T}, v{T+1}", [T, T+1])
            p.valu(f"v_max_f32 v{T}, v{T}, v{T+1}", wr=[T], rd=[T, T+1])
            for i in range(16):
                p.valu(f"v_sub_f32 v{C+i}, 0, v{T}", wr=[C+i], rd=[T])
            for i in range(16):
                p.valu(f"v_sub_f32 v{S0+i}, v{S0+i}, v{T}", wr=[S0+i], rd=[S0+i, T])
        sm = sm_half(S0, P0, 0)
        for n in range(8):
            if n in (2, 5): p.wait(lgkm=(4 if n == 2 else 6))
            if not first:
                p.mfma32(O + 16*(n & 3), VB + 4*n, P1 + 4*(n >> 2))
            vread(VB, 0, n)
            spread(sm, [0, 0, 4, 4, 3, 3, 3, 3], n)
        while sm: sm.pop(0)()
        sm = sm_half(S0, P0, 1)
        for j in range(8):
            if j in (0, 3, 6): p.wait(lgkm=6)
            if j == 0: p.mfma32(S1, KB, Q, C=C)
            else: p.mfma32(S1, KB + 4*j, Q + 4*j)
            vread(KB, 1, j)
            spread(sm, [3, 3, 3, 3, 2, 2, 2, 2], j)
        while sm: sm.pop(0)()
        p.salu("s_add_u32 s35, s35, 1")
        p.salu("s_cmp_eq_u32 s35, 3")
        p.salu("s_cselect_b32 s33, s49, s50")
        p.salu("s_cselect_b32 s35, 0, s35")
        sm = sm_half(S1, P1, 0)
        adv = [(lambda r=r: p.valu(f"v_add_u32 v{r}, s33, v{r}", wr=[r], rd=[r])) for r in list(range(aK, aK+8)) + list(range(aV, aV+4))]
        for n in range(8):
            if first and n < 4: p.mfma32(O + 16*(n & 3), VB + 4*n, P0 + 4*(n >> 2), czero=True)
            else: p.mfma32(O + 16*(n & 3), VB + 4*n, P0 + 4*(n >> 2))
            if n < 2:
                spread(adv, [6, 6], n)
            spread(sm, [0, 0, 4, 4, 3, 3, 3, 3], n)
        while sm: sm.pop(0)()
        p.wait(lgkm=0)
    p.label(f"{name}_Apair")
    step(True, 0)
    p.salu("s_mov_b32 s47, 8")
    p.label(f"{name}_Aloop")
    step(False, 1)
    p.salu("s_cmp_lt_u32 s47, 8")
    p.branch(f"s_cbranch_scc1 {name}_Anw")
    p.raw("    s_waitcnt vmcnt(0)")
    p.label(f"{name}_Anw")
    p.salu("s_sub_u32 s47, s47, 1")
    p.salu("s_cmp_eq_u32 s47, 0")
    p.branch(f"s_cbranch_scc1 {name}_Aepi")
    step(False, 0)
    p.branch(f"s_branch {name}_Aloop")
    p.label(f"{name}_Aepi")
    p.out.append(Ins("s_nop 0", "nop", states=1))
    sm = sm_half(S1, P1, 1)
    while sm: sm.pop(0)()
    for n in range(8):
        p.mfma32(O + 16*(n & 3), B[1] + 4*n, P1 + 4*(n >> 2))
    p.nop(12)
    p.valu(f"v_add_f32 v{LS}, v{LS}, v{LS+1}", wr=[LS], rd=[LS, LS+1])
    p.valu(f"v_mov_b32 v{T}, v{LS}", wr=[T], rd=[LS])
    p.perm(f"v_permlane32_swap_b32 v{LS}, v{T}", [LS, T])
    p.valu(f"v_add_f32 v{LS}, v{LS}, v{T}", wr=[LS], rd=[LS, T])
    p.salu(f"s_mov_b32 s33, {hex(f2u(2.0**30))}")
    p.valu(f"v_cmp_nlt_f32 vcc, v{LS}, s33", rd=[LS], swr=["vcc"]) if False else p.raw(f"    v_cmp_nlt_f32_e64 vcc, v{LS}, s33")
    p.nop(5)
    p.branch(f"s_cbranch_vccnz {name}_Aslow")
    p.label(f"{name}_Anorm")
    p.out.append(Ins("s_nop 0", "nop", states=25))
    p.reset_tracking()
    p.trans(f"v_rcp_f32 v{T}, v{LS}", wr=[T], rd=[LS])
    for blk in range(4):
        for u in range(2):
            for i in range(8):
                r = O + 16*blk + 8*u + i
                p.valu(f"v_mul_f32 v{r}, v{r}, v{T}", wr=[r], rd=[r, T])
            d = S0 + (blk * 2 + u) * 4
            for i in range(4):
                r = O + 16*blk + 8*u + 2*i
                p.valu(f"v_cvt_pk_bf16_f32 v{d+i}, v{r}, v{r+1}", wr=[d+i], rd=[r, r+1])
    p.salu("s_cmp_eq_u32 s46, 1")
    p.branch(f"s_cbranch_scc1 {name}_Afin")
    p.salu(f"s_sub_u32 s33, s34, {64*1024}")
    for u in range(8):
        p.bstore(S0 + 4*u, 4, voO, "s[24:27]", "s33", off=(u >> 1) * 1024 + (u & 1) * 512, tag="ost", flags=STF)
    p.salu("s_mov_b32 s46, 1")
    p.nop(2)
    st(2); st.cyc(6)
    p.branch(f"s_branch {name}_Apair")
    p.label(f"{name}_Afin")
    st(3); st.cyc(7)
    for u in range(8):
        p.bstore(S0 + 4*u, 4, voO, "s[24:27]", "s34", off=(u >> 1) * 1024 + (u & 1) * 512, tag="ost", flags=STF)
    p.raw("    s_waitcnt vmcnt(0)")
    p.barrier()
    st(4)
    srd(p, 16, 58, 256)
    p.salu("s_cmp_lg_u32 s3, 0")
    p.branch(f"s_cbranch_scc1 {name}_nosigB")
    p.valu("v_mov_b32 v228, 0", wr=[228]); p.valu("v_mov_b32 v231, 1", wr=[231])
    p.salu("s_mov_b64 exec, 1")
    p.salu("s_lshl_b32 s33, s7, 2"); p.salu("s_add_u32 s33, s33, 128")
    p.raw("    buffer_atomic_add v231, v228, s[16:19], s33 offen sc1")
    p.salu("s_mov_b64 exec, -1")
    p.label(f"{name}_nosigB")
    for r in range(80): p.valu(f"v_mov_b32 v{64+r}, 0", wr=[64+r])
    p.label(f"{name}_Tail")
    p.out.append(Ins("s_nop 0", "nop", states=25))
    p.reset_tracking()
    ACC = 64; STG = 144; voB = 2; vZ = 6; vP = 8
    srd(p, 24, 44, 0x2000000)
    srd(p, 20, 56, 2048 * 640 * 2)
    out_map()
    p.valu(f"v_mbcnt_lo_u32_b32 v{voB}, -1, 0", wr=[voB])
    p.valu(f"v_mbcnt_hi_u32_b32 v{voB}, -1, v{voB}", wr=[voB], rd=[voB])
    p.valu(f"v_mov_b32 v0, v{voB}", wr=[0], rd=[voB])
    p.valu(f"v_lshlrev_b32 v{voB}, 4, v{voB}", wr=[voB], rd=[voB])
    p.valu(f"v_add_u32 v{voB+1}, 4096, v{voB}", wr=[voB+1], rd=[voB])
    p.valu(f"v_mov_b32 v{vZ}, 0", wr=[vZ])
    ZF = vZ + 1
    def tail_poll(lbl, off_expr):
        p.salu("s_cmp_lg_u32 s3, 0")
        p.branch(f"s_cbranch_scc1 {name}_{lbl}d")
        p.salu("s_mov_b32 s63, 0")
        p.label(f"{name}_{lbl}")
        p.salu("s_mov_b64 exec, 3")
        p.raw(f"    buffer_load_dword v{vP}, v{ZF}, s[16:19], 0 offen sc1")
        p.salu("s_mov_b64 exec, -1")
        p.raw("    s_waitcnt vmcnt(0)")
        p.raw(f"    v_readlane_b32 s33, v{vP}, 0\n    v_readlane_b32 s35, v{vP}, 1\n    s_nop 3")
        p.salu("s_cmp_ge_u32 s33, 256"); p.salu("s_cselect_b32 s60, 1, 0")
        p.salu("s_cmp_ge_u32 s35, 16"); p.salu("s_cselect_b32 s60, s60, 0")
        p.salu("s_cmp_lg_u32 s60, 0")
        p.branch(f"s_cbranch_scc1 {name}_{lbl}d")
        p.raw(f"    s_sleep {opts.get('tsleep', 16)}")
        p.salu("s_add_u32 s63, s63, 1")
        p.salu("s_cmp_lt_u32 s63, 0x80000")
        p.branch(f"s_cbranch_scc1 {name}_{lbl}")
        p.label(f"{name}_{lbl}d")
    def set_zf(off):
        p.salu("s_lshr_b32 s51, s4, 1"); p.salu("s_lshl_b32 s51, s51, 2"); p.salu(f"s_add_u32 s51, s51, {off}")
        p.valu(f"v_cmp_eq_u32 vcc, 0, v0", rd=[0], swr=["vcc"])
        p.valu(f"v_mov_b32 v{ZF}, s51", wr=[ZF])
        p.nop(2)
        p.valu(f"v_cndmask_b32 v{ZF}, v{ZF}, v{vZ}, vcc", wr=[ZF], rd=[ZF, vZ])
    p.raw(f"    ds_read_b32 v{vP}, v{vZ}\n    s_waitcnt lgkmcnt(0)\n    v_readfirstlane_b32 s60, v{vP}\n    s_nop 3")
    p.salu("s_cmp_lg_u32 s60, 0")
    p.branch(f"s_cbranch_scc1 {name}_Tr1ok")
    set_zf(64)
    tail_poll("Tp1", 64)
    p.barrier()
    p.label(f"{name}_Tr1ok")
    st(8)
    p.reset_tracking()
    p.salu("s_lshl_b32 s62, s3, 3")
    frag_bases("s62")
    p.valu(f"v_add_u32 v{voB+2}, 65536, v{voB}", wr=[voB+2], rd=[voB])
    p.valu(f"v_add_u32 v{voB+3}, 65536, v{voB+1}", wr=[voB+3], rd=[voB+1])
    set_zf(128)
    def vo(i): return voB + (2 if i >= 8 else 0) + ((i & 7) >> 2)
    def issueA(i):
        base = STG + (i % 3) * 36
        for nb in range(5):
            p.bload(base + 4*nb, 4, vo(i), "s[24:27]", f"s{sAr[nb]}", off=(i & 3) * 1024, tag=f"a{i}", flags=" sc1")
    def issueB(i):
        base = STG + (i % 3) * 36
        for q in range(4):
            p.bload(base + 20 + 4*q, 4, vo(i), "s[24:27]", f"s{36+q}", off=(i & 3) * 1024, tag=f"b{i}", flags=" sc1")
    issueA(0); issueB(0); issueA(1); issueB(1)
    for i in range(16):
        base = STG + (i % 3) * 36
        if i + 2 < 16:
            if i + 2 == 8:
                issueA(8)
                if st.on: st(11)
                vmsave = list(p.vm)
                tail_poll("Tp2", 128)
                p.barrier()
                p.vm = vmsave
                issueB(8)
            else:
                issueA(i + 2); issueB(i + 2)
        for nb in range(5):
            for q in range(4):
                p.mfma16(ACC + (nb*4 + q)*4, base + 4*nb, base + 20 + 4*q)
    st(9)
    T = 8
    p.salu("s_mul_i32 s33, s3, 20480")
    p.valu(f"v_add_u32 v{T}, s33, v{voB}", wr=[T], rd=[voB])
    for t in range(20):
        p.ds_write("ds_write_b128", T, ACC + 4*t, 4, off=t*1024)
    p.wait(lgkm=0)
    p.barrier()
    p.valu(f"v_and_b32 v{T+1}, 15, v0", wr=[T+1], rd=[0])
    p.valu(f"v_mul_u32_u24 v{T+1}, 1280, v{T+1}", wr=[T+1], rd=[T+1])
    p.valu(f"v_lshrrev_b32 v{T+2}, 4, v0", wr=[T+2], rd=[0])
    p.valu(f"v_lshl_add_u32 v{T+1}, v{T+2}, 3, v{T+1}", wr=[T+1], rd=[T+2, T+1])
    p.salu(f"s_mul_i32 s34, s4, {64*1280}")
    p.salu("s_mul_i32 s33, s5, 160"); p.salu("s_add_u32 s34, s34, s33")
    p.salu("s_lshl_b32 s35, s3, 10")
    p.valu(f"v_add_u32 v{T+3}, s35, v{voB}", wr=[T+3], rd=[voB])
    for rnd in range(3):
        if rnd == 2:
            p.salu("s_cmp_ge_u32 s3, 4")
            p.branch(f"s_cbranch_scc1 {name}_fin")
        p.salu(f"s_add_u32 s40, s3, {8*rnd}")
        p.salu("s_lshr_b32 s41, s40, 2"); p.salu("s_and_b32 s42, s40, 3")
        p.salu("s_lshl_b32 s41, s41, 5")
        p.salu(f"s_mul_i32 s42, s42, {16*1280}")
        p.salu("s_add_u32 s41, s41, s42"); p.salu("s_add_u32 s41, s41, s34")
        for w in range(8):
            off = w * 20480 + rnd * 8192
            if off < 65536:
                p.ds_read("ds_read_b128", ACC + 4*w, 4, T + 3, off=off)
            else:
                p.valu(f"v_add_u32 v{T+4}, {off}, v{T+3}", wr=[T+4], rd=[T+3])
                p.ds_read("ds_read_b128", ACC + 4*w, 4, T + 4)
        for w in range(1, 8):
            for r in range(4):
                p.valu(f"v_add_f32 v{ACC+r}, v{ACC+r}, v{ACC+4*w+r}", wr=[ACC+r], rd=[ACC+r, ACC+4*w+r])
        p.valu(f"v_cvt_pk_bf16_f32 v{ACC+40}, v{ACC}, v{ACC+1}", wr=[ACC+40], rd=[ACC, ACC+1])
        p.valu(f"v_cvt_pk_bf16_f32 v{ACC+41}, v{ACC+2}, v{ACC+3}", wr=[ACC+41], rd=[ACC+2, ACC+3])
        p.bstore(ACC + 40, 2, T + 1, "s[20:23]", "s41", flags=["", " nt", " sc1", " sc0 sc1"][opts.get("outf", 0)])
        p.nop(2)
    p.label(f"{name}_fin")
    if st.on:
        p.raw("    s_waitcnt vmcnt(0)")
        st(10); st.dump("s3")
    p.branch(f"s_branch {name}_done")
    p.label(f"{name}_Aslow")
    p.out.append(Ins("s_nop 0", "nop", states=25))
    p.reset_tracking()
    O = 64; S0 = 128; P0 = 160; KF = 176; VF = 208; Q = 32; LS = 2; T = 4
    M = 5; AL = 6; vK = 7; vV = 8; TM = 9; TN = 10
    srd(p, 8, 38, 0x8000000); srd(p, 12, 40, 0x8000000)
    p.salu("s_lshl_b32 s36, s7, 5"); p.salu("s_add_u32 s36, s36, s6"); p.salu("s_lshl_b32 s33, s46, 4"); p.salu("s_add_u32 s36, s36, s33"); p.salu("s_lshl_b32 s36, s36, 18")
    p.valu(f"v_mbcnt_lo_u32_b32 v{TM}, -1, 0", wr=[TM])
    p.valu(f"v_mbcnt_hi_u32_b32 v{TM}, -1, v{TM}", wr=[TM], rd=[TM])
    p.valu(f"v_and_b32 v{TN}, 31, v{TM}", wr=[TN], rd=[TM])
    p.valu(f"v_lshrrev_b32 v{TM}, 5, v{TM}", wr=[TM], rd=[TM])
    p.valu(f"v_lshlrev_b32 v{vK}, 8, v{TN}", wr=[vK], rd=[TN])
    p.valu(f"v_lshl_add_u32 v{vK}, v{TM}, 4, v{vK}", wr=[vK], rd=[TM, vK])
    p.valu(f"v_lshlrev_b32 v{vV}, 1, v{TN}", wr=[vV], rd=[TN])
    p.valu(f"v_lshl_add_u32 v{vV}, v{TM}, 10, v{vV}", wr=[vV], rd=[TM, vV])
    for r in range(64): p.valu(f"v_mov_b32 v{O+r}, 0", wr=[O+r])
    p.valu(f"v_mov_b32 v{LS}, 0", wr=[LS])
    p.valu(f"v_mov_b32 v{M}, 0xff7fffff", wr=[M])
    p.salu("s_mov_b32 s37, 0")
    p.label(f"{name}_Asl")
    p.reset_tracking()
    for j in range(8): p.bload(KF + 4*j, 4, vK, "s[8:11]", "s36", off=j*32)
    TV = 144
    for ks2 in range(2):
        for bp in range(2):
            for bb in range(2):
                blk = 2*bp + bb
                for i in range(8):
                    key = 16*ks2 + (i if i < 4 else 8 + i - 4)
                    p.salu(f"s_add_u32 s33, s36, {key*256 + blk*64}")
                    p.raw(f"    buffer_load_ushort v{TV + 8*bb + i}, v{vV}, s[12:15], s33 offen")
            p.raw("    s_waitcnt vmcnt(0)")
            for bb in range(2):
                d = VF + (ks2*4 + 2*bp + bb)*4
                for r in range(4):
                    p.valu(f"v_lshl_or_b32 v{d+r}, v{TV+8*bb+2*r+1}, 16, v{TV+8*bb+2*r}", wr=[d+r], rd=[TV+8*bb+2*r+1, TV+8*bb+2*r])
    p.raw("    s_waitcnt vmcnt(0)")
    p.reset_tracking()
    for j in range(8):
        if j == 0: p.mfma32(S0, KF, Q, czero=True)
        else: p.mfma32(S0, KF + 4*j, Q + 4*j)
    p.valu(f"v_max3_f32 v{TM}, v{S0}, v{S0+1}, v{S0+2}", wr=[TM], rd=[S0, S0+1, S0+2])
    for i in range(3, 15, 2): p.valu(f"v_max3_f32 v{TM}, v{TM}, v{S0+i}, v{S0+i+1}", wr=[TM], rd=[TM, S0+i, S0+i+1])
    p.valu(f"v_max_f32 v{TM}, v{TM}, v{S0+15}", wr=[TM], rd=[TM, S0+15])
    p.valu(f"v_mov_b32 v{TN}, v{TM}", wr=[TN], rd=[TM])
    p.perm(f"v_permlane32_swap_b32 v{TM}, v{TN}", [TM, TN])
    p.valu(f"v_max3_f32 v{TM}, v{TM}, v{TN}, v{M}", wr=[TM], rd=[TM, TN, M])
    p.valu(f"v_sub_f32 v{AL}, v{M}, v{TM}", wr=[AL], rd=[M, TM])
    p.trans(f"v_exp_f32 v{AL}, v{AL}", wr=[AL], rd=[AL])
    p.valu(f"v_mov_b32 v{M}, v{TM}", wr=[M], rd=[TM])
    p.valu(f"v_mul_f32 v{LS}, v{LS}, v{AL}", wr=[LS], rd=[LS, AL])
    for r in range(64): p.valu(f"v_mul_f32 v{O+r}, v{O+r}, v{AL}", wr=[O+r], rd=[O+r, AL])
    for i in range(16):
        p.valu(f"v_sub_f32 v{S0+i}, v{S0+i}, v{M}", wr=[S0+i], rd=[S0+i, M])
        p.trans(f"v_exp_f32 v{S0+i}, v{S0+i}", wr=[S0+i], rd=[S0+i])
    for i in range(16): p.valu(f"v_add_f32 v{LS}, v{LS}, v{S0+i}", wr=[LS], rd=[LS, S0+i])
    for i in range(8): p.valu(f"v_cvt_pk_bf16_f32 v{P0+i}, v{S0+2*i}, v{S0+2*i+1}", wr=[P0+i], rd=[S0+2*i, S0+2*i+1])
    for n in range(8): p.mfma32(O + 16*(n & 3), VF + 4*n, P0 + 4*(n >> 2))
    p.nop(16)
    p.salu("s_add_u32 s36, s36, 8192")
    p.salu("s_add_u32 s37, s37, 1")
    p.salu("s_cmp_lt_u32 s37, 32")
    p.branch(f"s_cbranch_scc1 {name}_Asl")
    p.valu(f"v_mov_b32 v{T}, v{LS}", wr=[T], rd=[LS])
    p.perm(f"v_permlane32_swap_b32 v{LS}, v{T}", [LS, T])
    p.valu(f"v_add_f32 v{LS}, v{LS}, v{T}", wr=[LS], rd=[LS, T])
    p.nop(2)
    p.branch(f"s_branch {name}_Anorm")
    p.label(f"{name}_done")
    p.raw("    s_endpgm")
    return p, name

def gen_k2(opts):
    p = Prog()
    name = opts.get("name", "k2_kernel")
    K2F = ["", " nt", " sc1", " sc0 sc1", " sc0"][opts.get("k2nt", 0)]
    st = Stamps(p, opts, key="wgt2")
    p.raw(f".globl {name}\n.p2align 8\n.type {name},@function\n{name}:")
    p.salu("s_cmp_ge_u32 s2, 256")
    p.branch(f"s_cbranch_scc1 {name}_done")
    p.salu("s_load_dwordx2 s[38:39], s[0:1], 40")
    p.salu("s_load_dwordx2 s[44:45], s[0:1], 56")
    p.valu("v_lshrrev_b32 v1, 6, v0", wr=[1], rd=[0])
    p.valu("v_and_b32 v0, 63, v0", wr=[0], rd=[0])
    p.rfl("s3", 1)
    p.salu("s_and_b32 s4, s2, 7")
    p.salu("s_lshr_b32 s5, s2, 3")
    p.salu("s_lshr_b32 s6, s4, 1"); p.salu("s_lshl_b32 s6, s6, 3"); p.salu("s_lshr_b32 s7, s5, 2"); p.salu("s_add_u32 s6, s6, s7")
    p.salu("s_and_b32 s7, s4, 1"); p.salu("s_lshl_b32 s7, s7, 2"); p.salu("s_and_b32 s5, s5, 3"); p.salu("s_add_u32 s7, s7, s5")
    ACC = 64; ST = 144; voB = 2; T = 4
    p.valu(f"v_lshlrev_b32 v{voB}, 4, v0", wr=[voB], rd=[0])
    p.salu("s_lshl_b32 s29, s6, 9"); p.salu("s_lshl_b32 s33, s3, 4"); p.salu("s_add_u32 s29, s29, s33"); p.salu("s_lshl_b32 s29, s29, 10")
    for q in range(4): p.salu(f"s_add_u32 s{48+q}, s29, {q*131072}")
    p.salu("s_mul_i32 s29, s7, 640"); p.salu("s_add_u32 s29, s29, s33"); p.salu("s_lshl_b32 s29, s29, 10")
    for nb in range(5): p.salu(f"s_add_u32 s{52+nb}, s29, {WOT + nb*131072}")
    p.raw("    s_waitcnt lgkmcnt(0)")
    if st.on:
        for k in range(16): p.raw(f"    s_mov_b32 s{70+k}, 0")
    st(0)
    srd(p, 24, 44, 0x2000000)
    srd(p, 12, 38, 2048 * 640 * 2)
    def issue(i):
        base = ST + (i % 3) * 36
        for nb in range(5):
            p.bload(base + 4*nb, 4, voB + (i >> 2), "s[24:27]", f"s{52+nb}", off=(i & 3) * 1024, tag=f"a{i}", flags=K2F)
        for q in range(4):
            p.bload(base + 20 + 4*q, 4, voB + (i >> 2), "s[24:27]", f"s{48+q}", off=(i & 3) * 1024, tag=f"b{i}", flags=K2F)
    for j in range(1, 4): p.valu(f"v_add_u32 v{voB+j}, {4096*j}, v{voB}", wr=[voB+j], rd=[voB])
    issue(0); issue(1)
    for i in range(16):
        p.comment(f"kstep {i}")
        base = ST + (i % 3) * 36
        if i + 2 < 16: issue(i + 2)
        if i == 1: st(1)
        if i == 8: st(2)
        for nb in range(5):
            for q in range(4):
                if i == 0: p.mfma16(ACC + (nb*4 + q)*4, base + 4*nb, base + 20 + 4*q, czero=True)
                else: p.mfma16(ACC + (nb*4 + q)*4, base + 4*nb, base + 20 + 4*q)
    st(3)
    T = 8
    p.salu("s_mul_i32 s33, s3, 20480")
    p.valu(f"v_add_u32 v{T}, s33, v{voB}", wr=[T], rd=[voB])
    for t in range(20):
        p.ds_write("ds_write_b128", T, ACC + 4*t, 4, off=t*1024)
    p.wait(lgkm=0)
    p.barrier()
    p.valu(f"v_and_b32 v{T+1}, 15, v0", wr=[T+1], rd=[0])
    p.valu(f"v_mul_u32_u24 v{T+1}, 1280, v{T+1}", wr=[T+1], rd=[T+1])
    p.valu(f"v_lshrrev_b32 v{T+2}, 4, v0", wr=[T+2], rd=[0])
    p.valu(f"v_lshl_add_u32 v{T+1}, v{T+2}, 3, v{T+1}", wr=[T+1], rd=[T+2, T+1])
    p.salu(f"s_mul_i32 s34, s6, {64*1280}")
    p.salu("s_mul_i32 s33, s7, 160"); p.salu("s_add_u32 s34, s34, s33")
    p.salu("s_lshl_b32 s35, s3, 10")
    p.valu(f"v_add_u32 v{T+3}, s35, v{voB}", wr=[T+3], rd=[voB])
    st(4)
    for rnd in range(3):
        if rnd == 2:
            p.salu("s_cmp_ge_u32 s3, 4")
            p.branch(f"s_cbranch_scc1 {name}_done")
        p.salu(f"s_add_u32 s40, s3, {8*rnd}")
        p.salu("s_lshr_b32 s41, s40, 2"); p.salu("s_and_b32 s42, s40, 3")
        p.salu("s_lshl_b32 s41, s41, 5")
        p.salu(f"s_mul_i32 s42, s42, {16*1280}")
        p.salu("s_add_u32 s41, s41, s42"); p.salu("s_add_u32 s41, s41, s34")
        for w in range(8):
            off = w * 20480 + rnd * 8192
            if off < 65536:
                p.ds_read("ds_read_b128", ACC + 4*w, 4, T + 3, off=off)
            else:
                p.valu(f"v_add_u32 v{T+4}, {off}, v{T+3}", wr=[T+4], rd=[T+3])
                p.ds_read("ds_read_b128", ACC + 4*w, 4, T + 4)
        for w in range(1, 8):
            for r in range(4):
                p.valu(f"v_add_f32 v{ACC+r}, v{ACC+r}, v{ACC+4*w+r}", wr=[ACC+r], rd=[ACC+r, ACC+4*w+r])
        p.valu(f"v_cvt_pk_bf16_f32 v{ACC+40}, v{ACC}, v{ACC+1}", wr=[ACC+40], rd=[ACC, ACC+1])
        p.valu(f"v_cvt_pk_bf16_f32 v{ACC+41}, v{ACC+2}, v{ACC+3}", wr=[ACC+41], rd=[ACC+2, ACC+3])
        p.bstore(ACC + 40, 2, T + 1, "s[12:15]", "s41", flags=["", " nt", " sc1", " sc0 sc1"][opts.get("outf", 0)])
        p.nop(2)
    if st.on:
        p.raw("    s_waitcnt vmcnt(0)")
        st(5); st.dump("s3")
    p.label(f"{name}_done")
    p.raw("    s_endpgm")
    return p, name

def build(path, opts={}):
    KN = "standalone__mha_block_cached__near_ridge_kernel"
    k1, n1 = gen_k1(dict(opts, name=KN))
    hdr = open("standalone__mha_block_cached__near_ridge.s.ref").read().split("; Override")[0]
    o = [hdr.rstrip()]
    o.append("; @launch grid=(256,1,1) block=(512,1,1) lds=163840")
    o.append('.amdgcn_target "amdgcn-amd-amdhsa--gfx950"\n.text')
    o.append(k1.text())
    o.append('.section .rodata,"a"\n.p2align 6')
    o.append(KD.format(name=n1, vgpr=256, sgpr=96, acc=256))
    open(path, "w").write("\n".join(o) + "\n")
    print("nops", k1.nops, "lines", len(k1.out))

if __name__ == "__main__":
    opts = {}
    for a in sys.argv[2:]:
        k, v = a.split("="); opts[k] = int(v)
    build(sys.argv[1], opts)
```

```python
import sys, struct
from fw import *

LOG2E = 1.4426950408889634
QSCALE = LOG2E / (128 ** 0.5)
def f2u(f): return struct.unpack("<I", struct.pack("<f", f))[0]

KVRING = 65536
QHAND = 0
OHAND = 32768
WOT = 0x1800000

def srd(p, dst, ptr, size):
    p.salu(f"s_mov_b32 s{dst}, s{ptr}")
    p.salu(f"s_and_b32 s{dst+1}, s{ptr+1}, 0xffff")
    p.salu(f"s_mov_b32 s{dst+2}, {hex(size)}")
    p.salu(f"s_mov_b32 s{dst+3}, 0x20000")

class Stamps:
    def __init__(s, p, opts, base=0x2000000, key="wgt"): s.p = p; s.on = opts.get(key, 0); s.base = base
    def __call__(s, k):
        if not s.on: return
        s.p.raw(f"    s_memrealtime s[68:69]\n    s_waitcnt lgkmcnt(0)\n    s_mov_b32 s{70+k}, s68")
        s.p.lg = []
    def cyc(s, k):
        if not s.on: return
        s.p.raw(f"    s_memtime s[68:69]\n    s_waitcnt lgkmcnt(0)\n    s_mov_b32 s{70+k}, s68")
        s.p.lg = []
    def dump(s, wavereg):
        if not s.on: return
        t = """    s_waitcnt vmcnt(0)
    s_mov_b32 s60, s44
    s_and_b32 s61, s45, 0xffff
    s_mov_b32 s62, 0x4000000
    s_mov_b32 s63, 0x20000
    s_lshl_b32 s64, s2, 3
    s_add_u32 s64, s64, %s
    s_lshl_b32 s64, s64, 6
    s_add_u32 s64, s64, %s
    v_mov_b32 v20, 0
""" % (wavereg, hex(s.base))
        for q in range(4):
            for i in range(4): t += f"    v_mov_b32 v{16+i}, s{70+4*q+i}\n"
            t += f"    s_nop 1\n    buffer_store_dwordx4 v[16:19], v20, s[60:63], s64 offen offset:{16*q}\n    s_nop 2\n"
        s.p.raw(t + "    s_waitcnt vmcnt(0)")

def gen_k1(opts):
    p = Prog()
    st = Stamps(p, opts)
    NT = [" nt", " sc1 nt", " sc0 nt", "", " sc1"][opts.get("kvf", 0)]
    WN = [" nt" if opts.get("wnt0", 0) else "", " nt" if opts.get("wnt1", 0) else ""]
    XNT = " nt" if opts.get("xnt", 0) else ""
    cur = [0]
    STF = ["", " nt", " sc1", " sc0 sc1", " sc1 nt", " sc0 sc1 nt"][opts.get("stnt", 3)]
    name = opts.get("name", "k1_kernel")
    p.raw(f".globl {name}\n.p2align 8\n.type {name},@function\n{name}:")
    p.salu("s_cmp_ge_u32 s2, 256")
    p.branch(f"s_cbranch_scc1 {name}_done")
    p.salu("s_load_dwordx8 s[36:43], s[0:1], 0")
    p.salu("s_load_dwordx2 s[44:45], s[0:1], 56")
    p.salu("s_load_dwordx2 s[52:53], s[0:1], 32")
    p.salu("s_load_dwordx4 s[56:59], s[0:1], 40")
    p.valu("v_lshrrev_b32 v1, 6, v0", wr=[1], rd=[0])
    p.valu("v_and_b32 v0, 63, v0", wr=[0], rd=[0])
    p.rfl("s3", 1)
    p.salu("s_and_b32 s4, s2, 7")
    p.salu("s_lshr_b32 s5, s2, 3")
    mp = opts.get("map", 0)
    if mp == 0:
        p.salu("s_lshr_b32 s6, s4, 1"); p.salu("s_lshl_b32 s6, s6, 2"); p.salu("s_and_b32 s7, s5, 3"); p.salu("s_add_u32 s6, s6, s7")
        p.salu("s_and_b32 s7, s4, 1"); p.salu("s_lshl_b32 s7, s7, 3"); p.salu("s_lshr_b32 s5, s5, 2"); p.salu("s_add_u32 s7, s7, s5")
    elif mp == 1:
        p.salu("s_and_b32 s6, s5, 15"); p.salu("s_lshl_b32 s7, s4, 1"); p.salu("s_lshr_b32 s5, s5, 4"); p.salu("s_add_u32 s7, s7, s5")
    elif mp == 2:
        p.salu("s_and_b32 s6, s4, 1"); p.salu("s_lshl_b32 s6, s6, 3"); p.salu("s_and_b32 s7, s5, 7"); p.salu("s_add_u32 s6, s6, s7")
        p.salu("s_lshr_b32 s7, s4, 1"); p.salu("s_lshl_b32 s7, s7, 2"); p.salu("s_lshr_b32 s5, s5, 3"); p.salu("s_add_u32 s7, s7, s5")
    if st.on:
        for k in range(16): p.raw(f"    s_mov_b32 s{70+k}, 0")
    p.raw("    s_waitcnt lgkmcnt(0)")
    st(0)
    p.salu("s_cmp_lt_u32 s3, 4")
    p.branch(f"s_cbranch_scc1 {name}_A")

    HS = 49152
    def head(team, kv_ops=None, run=None):
        A_ = team == "A"
        HA = 64 if A_ else 0
        HW = 176 if A_ else 192
        HX = 208 if A_ else 160
        aWh = 128 if A_ else 96
        aXh = aWh + 12
        voWh = 152 if A_ else 240
        voXh = 250
        T = 4
        DST = 32 if A_ else 128
        wofs = 0 if A_ else 16384
        srd(p, 16, 42, 640 * 4096 * 2)
        if not A_: srd(p, 20, 36, 16 * 128 * 640 * 2)
        p.valu(f"v_lshrrev_b32 v{T}, 4, v0", wr=[T], rd=[0])
        p.valu(f"v_and_b32 v{T+1}, 15, v0", wr=[T+1], rd=[0])
        p.valu(f"v_lshlrev_b32 v{T+2}, 2, v{T}", wr=[T+2], rd=[T])
        p.valu(f"v_xor_b32 v{T+2}, v{T+2}, v{T+1}", wr=[T+2], rd=[T+2, T+1])
        p.valu(f"v_lshlrev_b32 v{T+2}, 4, v{T+2}", wr=[T+2], rd=[T+2])
        p.valu(f"v_lshl_add_u32 v{voWh}, v{T}, 13, v{T+2}", wr=[voWh], rd=[T, T+2])
        if not A_:
            p.valu(f"v_lshl_add_u32 v249, v{T}, 8, v{T+2}", wr=[249], rd=[T, T+2])
            p.valu(f"v_lshrrev_b32 v{T+2}, 3, v0", wr=[T+2], rd=[0])
            p.valu(f"v_mul_u32_u24 v{T+2}, 1280, v{T+2}", wr=[T+2], rd=[T+2])
            p.valu(f"v_and_b32 v{T+3}, 7, v0", wr=[T+3], rd=[0])
            for e in range(2):
                p.valu(f"v_add_u32 v{T+4}, {4*e}, v{T}", wr=[T+4], rd=[T])
                p.valu(f"v_xor_b32 v{T+4}, v{T+4}, v{T+3}", wr=[T+4], rd=[T+4, T+3])
                p.valu(f"v_lshl_add_u32 v{voXh+e}, v{T+4}, 4, v{T+2}", wr=[voXh+e], rd=[T+4, T+2])
        p.salu("s_lshl_b32 s28, s3, 17"); p.salu("s_lshl_b32 s33, s6, 8"); p.salu("s_add_u32 s28, s28, s33")
        if not A_:
            p.salu("s_add_u32 s28, s28, 4096")
            p.salu("s_mul_i32 s29, s7, 163840"); p.salu(f"s_mul_i32 s33, s3, {32*1280}"); p.salu("s_add_u32 s29, s29, s33")
        p.salu("s_lshl_b32 s30, s3, 12")
        HF = " nt" if opts.get("hnt", 0) else ""
        def tile_ops(j):
            ops = []
            sb = (j % 3) * HS
            def fw(i):
                p.salu(f"s_add_u32 m0, s30, {sb + wofs + i*1024}", swr=["m0"])
                p.salu(f"s_add_u32 s33, s28, {(64*j + 4*i) * 8192}")
                p.dma(voWh, "s[16:19]", "s33", tag=f"h{j}", flags=HF)
            def fx(i):
                p.salu(f"s_add_u32 m0, s30, {sb + 32768 + i*1024}", swr=["m0"])
                p.salu(f"s_add_u32 s33, s29, {j*128 + i*10240}")
                p.dma(voXh + (i & 1), "s[20:23]", "s33", tag=f"h{j}", flags=HF)
            if opts.get("nohld"): return ops
            if not A_:
                for i in range(4): ops.append(lambda i=i: fx(i))
            for i in range(4): ops.append(lambda i=i: fw(i))
            return ops
        for j in range(1 if opts.get("t0first", 1) else 3):
            for o in tile_ops(j): o()
        if opts.get("touch", 0):
            D = 252 if A_ else 252
            TT = T + 7
            p.salu("s_lshr_b32 s33, s2, 6"); p.salu("s_mul_i32 s33, s33, 112"); p.salu("s_lshl_b32 s51, s3, 5"); p.salu("s_add_u32 s33, s33, s51")
            p.salu("s_add_u32 s33, s33, 192"); p.salu("s_lshl_b32 s33, s33, 13"); p.salu("s_lshl_b32 s51, s6, 8"); p.salu("s_add_u32 s33, s33, s51")
            if not A_: p.salu("s_add_u32 s33, s33, 4096")
            p.valu(f"v_lshrrev_b32 v{TT}, 1, v0", wr=[TT], rd=[0])
            p.valu(f"v_lshlrev_b32 v{TT}, 13, v{TT}", wr=[TT], rd=[TT])
            p.valu(f"v_and_b32 v{TT+1}, 1, v0", wr=[TT+1], rd=[0])
            p.valu(f"v_lshl_add_u32 v{TT}, v{TT+1}, 7, v{TT}", wr=[TT], rd=[TT+1, TT])
            p.bload(D, 1, TT, "s[16:19]", "s33", flags=HF, tag="touch")
            if not A_:
                p.salu("s_lshr_b32 s33, s2, 3"); p.salu("s_and_b32 s33, s33, 7"); p.salu("s_lshl_b32 s33, s33, 4")
                p.salu("s_lshl_b32 s35, s3, 3"); p.salu("s_add_u32 s33, s33, s35"); p.salu("s_mul_i32 s33, s33, 1280")
                p.salu("s_mul_i32 s35, s7, 163840"); p.salu("s_add_u32 s33, s33, s35"); p.salu("s_add_u32 s33, s33, 384")
                p.salu("s_cmp_ge_u32 s3, 2"); p.salu("s_cselect_b32 s33, 0x8000000, s33")
                p.valu(f"v_lshrrev_b32 v{TT}, 3, v0", wr=[TT], rd=[0])
                p.valu(f"v_mul_u32_u24 v{TT}, 1280, v{TT}", wr=[TT], rd=[TT])
                p.valu(f"v_and_b32 v{TT+1}, 7, v0", wr=[TT+1], rd=[0])
                p.valu(f"v_lshl_add_u32 v{TT}, v{TT+1}, 7, v{TT}", wr=[TT], rd=[TT+1, TT])
                p.bload(D + 1, 1, TT, "s[20:23]", "s33", flags=HF, tag="touch")
        L = 0
        p.valu(f"v_lshrrev_b32 v{T+2}, 5, v{L}", wr=[T+2], rd=[L])
        p.valu(f"v_bfe_u32 v{T+4}, v{L}, 2, 2", wr=[T+4], rd=[L])
        p.valu(f"v_lshl_add_u32 v{T+5}, v{T+2}, 3, v{T+4}", wr=[T+5], rd=[T+2, T+4])
        p.valu(f"v_lshlrev_b32 v{T+5}, 8, v{T+5}", wr=[T+5], rd=[T+5])
        p.valu(f"v_bfe_u32 v{T+6}, v{L}, 4, 1", wr=[T+6], rd=[L])
        p.valu(f"v_lshl_add_u32 v{T+5}, v{T+6}, 5, v{T+5}", wr=[T+5], rd=[T+6, T+5])
        p.valu(f"v_and_b32 v{T+6}, 1, v{L}", wr=[T+6], rd=[L])
        p.valu(f"v_lshl_add_u32 v{T+5}, v{T+6}, 4, v{T+5}", wr=[T+5], rd=[T+6, T+5])
        p.valu(f"v_bfe_u32 v{T+6}, v{L}, 1, 1", wr=[T+6], rd=[L])
        p.valu(f"v_lshl_add_u32 v{T+5}, v{T+6}, 3, v{T+5}", wr=[T+5], rd=[T+6, T+5])
        p.valu(f"v_add_u32 v{T+5}, {wofs}, v{T+5}", wr=[T+5], rd=[T+5])
        for b in range(4):
            p.valu(f"v_xor_b32 v{T+6}, {b}, v{T+4}", wr=[T+6], rd=[T+4])
            p.valu(f"v_lshl_add_u32 v{aWh+b}, v{T+6}, 6, v{T+5}", wr=[aWh+b], rd=[T+6, T+5])
            for sl in (1, 2): p.valu(f"v_add_u32 v{aWh+4*sl+b}, {sl*HS}, v{aWh+b}", wr=[aWh+4*sl+b], rd=[aWh+b])
        p.valu(f"v_and_b32 v{T+4}, 31, v{L}", wr=[T+4], rd=[L])
        p.valu(f"v_bfe_u32 v{T+5}, v{L}, 1, 3", wr=[T+5], rd=[L])
        p.valu(f"v_xor_b32 v{T+5}, v{T+5}, v{T+2}", wr=[T+5], rd=[T+5, T+2])
        p.valu(f"v_lshlrev_b32 v{T+5}, 4, v{T+5}", wr=[T+5], rd=[T+5])
        p.valu(f"v_lshl_add_u32 v{T+5}, v{T+4}, 7, v{T+5}", wr=[T+5], rd=[T+4, T+5])
        p.salu("s_add_u32 s33, s30, 32768")
        p.valu(f"v_add_u32 v{T+5}, s33, v{T+5}", wr=[T+5], rd=[T+5])
        for ks in range(4):
            p.valu(f"v_xor_b32 v{aXh+ks}, {ks*32}, v{T+5}", wr=[aXh+ks], rd=[T+5])
            for sl in (1, 2): p.valu(f"v_add_u32 v{aXh+4*sl+ks}, {sl*HS}, v{aXh+ks}", wr=[aXh+4*sl+ks], rd=[aXh+ks])
        if opts.get("t0first", 1):
            for j in (1, 2):
                for o in tile_ops(j): o()
        p.salu(f"s_mov_b32 s48, {hex(f2u(QSCALE))}")
        if not A_: kv_setup()
        for j in range(10):
            p.comment(f"head {team} step {j}")
            p.wait_tag(f"h{j}")
            p.barrier()
            if j == 0: st(1)
            sl = j % 3
            ops = tile_ops(j + 2) if 1 <= j <= 7 else []
            if not A_:
                if j == 8: ops = ops + kv_ops()
                if j == 9: ops = ops + kv_ops() + kv_ops()
            def wread(ks, blk):
                d = HW + (ks % 2) * 16 + blk * 4
                p.ds_read("ds_read_b64_tr_b16", d, 2, aWh + 4*sl + blk, off=ks*4096)
                p.ds_read("ds_read_b64_tr_b16", d + 2, 2, aWh + 4*sl + blk, off=ks*4096 + 1024)
            HB = opts.get("hb", 1)
            p.ds_read("ds_read_b128", HX, 4, aXh + 4*sl)
            for blk in range(4): wread(0, blk)
            n = len(ops); k = 0; cnt = 0
            def emit_ops(upto):
                nonlocal k
                tgt = -(-upto * n // 16)
                while k < min(n, tgt):
                    ops[k](); k += 1
            if HB and j > 0:
                for blk in range(4):
                    p.mfma32(HA + 16*blk, HW + 16 + blk*4, HX + 12)
                    cnt += 1; emit_ops(cnt)
            for ks in range(1, 4): p.ds_read("ds_read_b128", HX + 4*ks, 4, aXh + 4*sl + ks)
            for ks in range(4):
                if ks + 1 < 4:
                    if ks == 0: p.wait(lgkm=3)
                    for blk in range(4): wread(ks + 1, blk)
                    if ks > 0: p.wait(lgkm=8)
                else:
                    p.wait(lgkm=0)
                    if HB and j < 9: break
                for blk in range(4):
                    if j == 0 and ks == 0: p.mfma32(HA + 16*blk, HW + blk*4, HX, czero=True)
                    else: p.mfma32(HA + 16*blk, HW + (ks % 2)*16 + blk*4, HX + ks*4)
                    cnt += 1; emit_ops(cnt)
            while k < n: ops[k](); k += 1
        st(2)
        for blk in range(4):
            for u in range(2):
                base = HA + 16*blk + 8*u
                for i in range(8):
                    p.valu(f"v_mul_f32 v{base+i}, s48, v{base+i}", wr=[base+i], rd=[base+i])
                for i in range(4):
                    p.valu(f"v_cvt_pk_bf16_f32 v{DST+(blk*2+u)*4+i}, v{base+2*i}, v{base+2*i+1}", wr=[DST+(blk*2+u)*4+i], rd=[base+2*i, base+2*i+1])

    QA = 0; XR = 64; WF = 224; voW = 240; aW = 241; voK = 245; voV = 249; voX = 250; aXlo = 252; aWhi = 192; aXhi = 196
    T = 4
    p.salu("s_sub_u32 s3, s3, 4")
    QP = 128
    def kv_setup():
        srd(p, 8, 38, 0x8000000)
        srd(p, 12, 40, 0x8000000)
        srd(p, 24, 44, 0x2000000)
        T = 4
        for i in range(4):
            p.valu(f"v_add_u32 v{T+2}, {4*i}, v{T}", wr=[T+2], rd=[T])
            p.valu(f"v_xor_b32 v{T+2}, v{T+2}, v{T+1}", wr=[T+2], rd=[T+2, T+1])
            p.valu(f"v_lshlrev_b32 v{T+2}, 4, v{T+2}", wr=[T+2], rd=[T+2])
            p.valu(f"v_lshl_add_u32 v{voK+i}, v{T}, 8, v{T+2}", wr=[voK+i], rd=[T, T+2])
        p.salu("s_lshl_b32 s31, s7, 5"); p.salu("s_add_u32 s31, s31, s6"); p.salu("s_lshl_b32 s31, s31, 18"); p.salu("s_add_u32 s31, s31, s30")
        p.salu(f"s_add_u32 s32, s30, {KVRING}")
        p.salu("s_mov_b32 s34, 0")
    kvn = [0]
    def kv_ops(tag=None):
        ops = []
        tg = tag if tag else f"kv{kvn[0]}"
        kvn[0] += 1
        def k(i):
            if i == 0: p.salu("s_mov_b32 m0, s32", swr=["m0"])
            if not opts.get("nokv"): p.dma(voK + i, "s[8:11]", "s31", off=i * 1024, flags=NT, tag=tg)
        def v(i):
            if i == 0: p.salu("s_add_u32 m0, s32, 16384", swr=["m0"])
            if not opts.get("nokv"): p.dma(voV, "s[12:15]", "s31", off=i * 1024, flags=NT, tag=tg)
            if i == 3:
                p.salu("s_add_u32 s31, s31, 16384")
                p.salu("s_add_u32 s34, s34, 1")
                p.salu("s_cmp_eq_u32 s34, 16")
                p.salu(f"s_cselect_b32 s33, {hex(15 * 262144)}, 0")
                p.salu("s_add_u32 s31, s31, s33")
                p.salu("s_cmp_ge_u32 s34, 32")
                p.salu("s_cselect_b32 s31, 0x8000000, s31")
                p.salu("s_add_u32 s32, s32, 32768")
                p.salu(f"s_cmp_ge_u32 s32, {KVRING + 3*32768}")
                p.salu("s_cselect_b32 s33, 98304, 0")
                p.salu("s_sub_u32 s32, s32, s33")
        for i in range(4): ops.append(lambda i=i: k(i))
        for i in range(4): ops.append(lambda i=i: v(i))
        return ops
    def run(ops):
        for o in ops: o()
    def lane_addr(dst, base_s_text):
        p.valu(f"v_mbcnt_lo_u32_b32 v{dst}, -1, 0", wr=[dst])
        p.valu(f"v_mbcnt_hi_u32_b32 v{dst}, -1, v{dst}", wr=[dst], rd=[dst])
        p.valu(f"v_lshlrev_b32 v{dst}, 4, v{dst}", wr=[dst], rd=[dst])
        p.valu(f"v_add_u32 v{dst}, s33, v{dst}", wr=[dst], rd=[dst])
    def q2_write():
        aHW = WF
        p.salu("s_lshl_b32 s33, s3, 13")
        p.salu(f"s_add_u32 s33, s33, {QHAND}")
        lane_addr(aHW, None)
        for u in range(8): p.ds_write("ds_write_b128", aHW, QP + 4*u, 4, off=u * 1024)
        p.wait(lgkm=0)
    head("P", kv_ops, run)
    p.wait_tag("kv0")
    st(3)
    cur[0] = 1
    ACC = 64
    stage = [[144 + 4*i for i in range(18)], [4*i for i in range(16)] + [216, 220]]
    voB = 224; vZ = 228; vP = 229; vOne = 231; vPo = 232
    def out_map():
        p.salu("s_and_b32 s4, s2, 7"); p.salu("s_lshr_b32 s5, s2, 3")
        p.salu("s_lshr_b32 s33, s4, 1"); p.salu("s_lshl_b32 s33, s33, 3"); p.salu("s_lshr_b32 s35, s5, 2"); p.salu("s_add_u32 s33, s33, s35")
        p.salu("s_and_b32 s4, s4, 1"); p.salu("s_lshl_b32 s4, s4, 2"); p.salu("s_and_b32 s5, s5, 3"); p.salu("s_add_u32 s5, s4, s5")
        p.salu("s_mov_b32 s4, s33")
    def frag_bases(kstep0_reg):
        p.salu("s_lshl_b32 s33, s4, 9"); p.salu(f"s_add_u32 s33, s33, {kstep0_reg}"); p.salu("s_lshl_b32 s33, s33, 10")
        for q in range(4): p.salu(f"s_add_u32 s{36+q}, s33, {q*131072}")
        p.salu("s_mul_i32 s33, s5, 640"); p.salu(f"s_add_u32 s33, s33, {kstep0_reg}"); p.salu("s_lshl_b32 s33, s33, 10")
        for nb in range(5): p.salu(f"s_add_u32 s{sAr[nb]}, s33, {WOT + nb*131072}")
    sAr = [40, 41, 42, 43, 46]
    LDF = " sc1"
    def sig(off_ops):
        p.salu("s_cmp_lg_u32 s3, 0")
        lb = f"{name}_ns{len(p.out)}"
        p.branch(f"s_cbranch_scc1 {lb}")
        for o in off_ops: p.salu(o)
        p.salu("s_mov_b64 exec, 1")
        p.raw(f"    buffer_atomic_add v{vOne}, v{vZ}, s[16:19], s33 offen sc1")
        p.salu("s_mov_b64 exec, -1")
        p.label(lb)
    def signal_w():
        srd(p, 16, 58, 256)
        p.valu(f"v_mov_b32 v{vZ}, 0", wr=[vZ]); p.valu(f"v_mov_b32 v{vOne}, 1", wr=[vOne])
        sig(["s_mov_b32 s33, 0"])
    def signal_and_setup():
        sig(["s_lshl_b32 s33, s7, 2", "s_add_u32 s33, s33, 64"])
        for r in range(80): p.valu(f"v_mov_b32 v{ACC+r}, 0", wr=[ACC+r])
    def poll_issue():
        p.salu("s_mov_b64 exec, 3")
        p.raw(f"    buffer_load_dword v{vP}, v{vPo}, s[16:19], 0 offen sc1")
        p.salu("s_mov_b64 exec, -1")
    def poll_check(dst):
        p.raw(f"    v_readlane_b32 s33, v{vP}, 0\n    v_readlane_b32 s35, v{vP}, 1\n    s_nop 3")
        p.salu("s_cmp_ge_u32 s33, 256"); p.salu("s_cselect_b32 s33, 1, 0")
        p.salu("s_cmp_ge_u32 s35, 16"); p.salu(f"s_cselect_b32 {dst}, s33, 0")
    def o1_issue(par):
        st_ = stage[par]
        for kk in range(2):
            for nb in range(5):
                p.bload(st_[kk*9 + nb], 4, voB, "s[24:27]", f"s{sAr[nb]}", off=kk*1024, flags=LDF)
            for q in range(4):
                p.bload(st_[kk*9 + 5 + q], 4, voB, "s[24:27]", f"s{36+q}", off=kk*1024, flags=LDF)
        for r in sAr + [36, 37, 38, 39]: p.salu(f"s_add_u32 s{r}, s{r}, 2048")
    def o1_compute(par):
        st_ = stage[par]
        p.out.append(Ins("s_nop 0", "nop", states=25))
        for kk in range(2):
            for nb in range(5):
                for q in range(4):
                    p.mfma16(ACC + (nb*4 + q)*4, st_[kk*9 + nb], st_[kk*9 + 5 + q])
    def ohand_store():
        p.comment("O handoff store")
        aO = WF; voO = WF + 1
        p.salu("s_lshl_b32 s33, s3, 13"); p.salu(f"s_add_u32 s33, s33, {OHAND}")
        lane_addr(aO, None)
        for u in range(8): p.ds_read("ds_read_b128", XR + 4*u, 4, aO, off=u * 1024)
        p.valu(f"v_mbcnt_lo_u32_b32 v{voO+1}, -1, 0", wr=[voO+1])
        p.valu(f"v_mbcnt_hi_u32_b32 v{voO+1}, -1, v{voO+1}", wr=[voO+1], rd=[voO+1])
        p.valu(f"v_bfe_u32 v{voO}, v{voO+1}, 4, 1", wr=[voO], rd=[voO+1])
        p.valu(f"v_lshlrev_b32 v{voO}, 17, v{voO}", wr=[voO], rd=[voO])
        p.valu(f"v_and_b32 v{voO+2}, 15, v{voO+1}", wr=[voO+2], rd=[voO+1])
        p.valu(f"v_lshl_add_u32 v{voO}, v{voO+2}, 4, v{voO}", wr=[voO], rd=[voO+2, voO])
        p.valu(f"v_lshrrev_b32 v{voO+2}, 5, v{voO+1}", wr=[voO+2], rd=[voO+1])
        p.valu(f"v_lshl_add_u32 v{voO}, v{voO+2}, 8, v{voO}", wr=[voO], rd=[voO+2, voO])
        p.salu("s_lshl_b32 s35, s7, 3"); p.salu("s_lshl_b32 s33, s3, 1"); p.salu("s_add_u32 s35, s35, s33")
        p.salu("s_lshl_b32 s35, s35, 7"); p.salu("s_lshl_b32 s33, s6, 2"); p.salu("s_add_u32 s35, s35, s33"); p.salu("s_lshl_b32 s35, s35, 10")
        for u in range(8):
            if not opts.get("nost"): p.bstore(XR + 4*u, 4, voO, "s[24:27]", "s35", off=(u >> 1) * 1024 + (u & 1) * 512, tag="ost", flags=STF)
    def wot_issue():
        srd(p, 16, 52, 4096 * 640 * 2)
        Tm = XR
        p.valu(f"v_mbcnt_lo_u32_b32 v{Tm+8}, -1, 0", wr=[Tm+8])
        p.valu(f"v_mbcnt_hi_u32_b32 v{Tm+8}, -1, v{Tm+8}", wr=[Tm+8], rd=[Tm+8])
        p.salu("s_mov_b32 s33, 0x1999999a")
        for i in range(5):
            p.valu(f"v_add_u32 v{Tm+5}, {64*i}, v{Tm+8}", wr=[Tm+5], rd=[Tm+8])
            p.valu(f"v_mul_hi_u32 v{Tm+6}, v{Tm+5}, s33", wr=[Tm+6], rd=[Tm+5])
            p.valu(f"v_mul_u32_u24 v{Tm+7}, 10, v{Tm+6}", wr=[Tm+7], rd=[Tm+6])
            p.valu(f"v_sub_u32 v{Tm+7}, v{Tm+5}, v{Tm+7}", wr=[Tm+7], rd=[Tm+5, Tm+7])
            p.valu(f"v_mul_u32_u24 v{Tm+6}, 1280, v{Tm+6}", wr=[Tm+6], rd=[Tm+6])
            p.valu(f"v_lshl_add_u32 v{Tm+i}, v{Tm+7}, 4, v{Tm+6}", wr=[Tm+i], rd=[Tm+7, Tm+6])
        p.salu("s_lshr_b32 s35, s2, 1"); p.salu(f"s_mul_i32 s35, s35, {32*1280}")
        p.salu("s_and_b32 s33, s2, 1"); p.salu("s_mul_i32 s33, s33, 640"); p.salu("s_add_u32 s35, s35, s33")
        p.salu("s_mul_i32 s33, s3, 160"); p.salu("s_add_u32 s35, s35, s33")
        p.salu("s_mul_i32 s51, s3, 5120"); p.salu(f"s_add_u32 s51, s51, {OHAND}")
        for k in range(5):
            p.salu(f"s_add_u32 m0, s51, {k*1024}", swr=["m0"])
            p.dma(Tm + k, "s[16:19]", "s35", tag="wot", flags=(" nt" if opts.get("wof", 0) else ""))
    def wot_store():
        Tm = XR
        p.wait_tag("wot")
        L = Tm + 8
        p.valu(f"v_lshrrev_b32 v{Tm}, 5, v{L}", wr=[Tm], rd=[L])
        p.valu(f"v_bfe_u32 v{Tm+1}, v{L}, 4, 1", wr=[Tm+1], rd=[L])
        p.valu(f"v_bfe_u32 v{Tm+2}, v{L}, 2, 2", wr=[Tm+2], rd=[L])
        p.valu(f"v_lshl_add_u32 v{Tm+2}, v{Tm+1}, 2, v{Tm+2}", wr=[Tm+2], rd=[Tm+1, Tm+2])
        p.valu(f"v_lshl_add_u32 v{Tm+2}, v{Tm}, 4, v{Tm+2}", wr=[Tm+2], rd=[Tm, Tm+2])
        p.valu(f"v_mul_u32_u24 v{Tm+2}, 160, v{Tm+2}", wr=[Tm+2], rd=[Tm+2])
        p.valu(f"v_and_b32 v{Tm+1}, 3, v{L}", wr=[Tm+1], rd=[L])
        p.valu(f"v_lshl_add_u32 v{Tm+2}, v{Tm+1}, 3, v{Tm+2}", wr=[Tm+2], rd=[Tm+1, Tm+2])
        p.valu(f"v_add_u32 v{Tm+2}, s51, v{Tm+2}", wr=[Tm+2], rd=[Tm+2])
        for nb in range(5):
            d = Tm + 16 + nb*4
            p.ds_read("ds_read_b64_tr_b16", d, 2, Tm + 2, off=nb*32)
            p.ds_read("ds_read_b64_tr_b16", d + 2, 2, Tm + 2, off=nb*32 + 1280)
        p.valu(f"v_lshlrev_b32 v{Tm+3}, 4, v{L}", wr=[Tm+3], rd=[L])
        p.salu("s_and_b32 s33, s2, 1"); p.salu("s_mul_i32 s33, s33, 20"); p.salu("s_mul_i32 s35, s3, 5"); p.salu("s_add_u32 s33, s33, s35")
        p.salu("s_lshl_b32 s33, s33, 7"); p.salu("s_lshr_b32 s35, s2, 1"); p.salu("s_add_u32 s33, s33, s35"); p.salu("s_lshl_b32 s33, s33, 10")
        p.salu(f"s_add_u32 s35, s33, {hex(WOT)}")
        for nb in range(5):
            p.salu(f"s_add_u32 s33, s35, {nb*131072}")
            p.bstore(Tm + 16 + nb*4, 4, Tm + 3, "s[24:27]", "s33", tag="wotst", flags=STF)
    for t in range(19):
        p.comment(f"P step t={t}")
        p.barrier()
        if t in (16, 17): st({16: 6, 17: 7}[t])
        groups = []
        if t == 13 and not opts.get("nowot"): wot_issue()
        if t == 14 and not opts.get("nowot"): wot_store()
        if t == 16: signal_w()
        if t == 18: signal_and_setup()
        if t >= 1: groups.append(kv_ops())
        for g in groups: run(g)
        if t == 14: q2_write()
        p.wait_tag(f"kv{t+1}")
    st(4)
    st(4)
    p.salu("s_mov_b32 s47, 19")
    p.label(f"{name}_Ploop")
    p.barrier()
    p.reset_tracking()
    run(kv_ops("kvn"))
    p.raw("    s_waitcnt vmcnt(8)")
    p.salu("s_add_u32 s47, s47, 1")
    p.salu("s_cmp_lt_u32 s47, 30")
    p.branch(f"s_cbranch_scc1 {name}_Ploop")
    p.barrier()
    p.reset_tracking()
    p.raw(f"    ds_write_b32 v{vZ}, v{vZ} offset:4\n    ds_write_b32 v{vZ}, v{vZ} offset:8\n    ds_write_b32 v{vZ}, v{vZ} offset:12\n    s_waitcnt vmcnt(0) lgkmcnt(0)")
    p.barrier()
    st(5)
    p.salu("s_add_u32 s3, s3, 4")
    p.branch(f"s_branch {name}_Tail")

    p.label(f"{name}_A")
    p.out.append(Ins("s_nop 4", "nop", states=25))
    p.reset_tracking()
    O = 64; S0 = 128; S1 = 144; P0 = 160; P1 = 168; KF = 176; VF = 208; Q = 32; C = 16
    aK = 240; aV = 248; LS = 2; T = 4; aH = 14; voO = 15; aOH = 1
    def a_touch():
        TF = " nt"
        D = 200
        k0 = opts.get("touchk0", 4)
        nrow = (10 - k0) * 64
        q = nrow // 4
        srd(p, 16, 42, 640 * 4096 * 2); srd(p, 20, 36, 16 * 128 * 640 * 2)
        ninst = -(-2*q // 64)
        p.salu("s_lshr_b32 s33, s2, 6"); p.salu(f"s_mul_i32 s33, s33, {q}"); p.salu(f"s_add_u32 s33, s33, {k0*64}")
        p.salu("s_lshl_b32 s28, s3, 5"); p.salu("s_add_u32 s33, s33, s28"); p.salu("s_lshl_b32 s33, s33, 13")
        p.salu("s_lshl_b32 s28, s6, 8"); p.salu("s_add_u32 s33, s33, s28")
        p.valu(f"v_lshrrev_b32 v{T}, 1, v0", wr=[T], rd=[0])
        p.valu(f"v_lshlrev_b32 v{T}, 13, v{T}", wr=[T], rd=[T])
        p.valu(f"v_and_b32 v{T+1}, 1, v0", wr=[T+1], rd=[0])
        p.valu(f"v_lshl_add_u32 v{T}, v{T+1}, 7, v{T}", wr=[T], rd=[T+1, T])
        p.bload(D, 1, T, "s[16:19]", "s33", flags=TF)
        if ninst > 4:
            p.salu(f"s_add_u32 s33, s33, {128 << 13}")
            p.bload(D + 1, 1, T, "s[16:19]", "s33", flags=TF)
        p.salu("s_lshr_b32 s33, s2, 3"); p.salu("s_and_b32 s33, s33, 7"); p.salu("s_lshl_b32 s33, s33, 4")
        p.salu("s_lshl_b32 s28, s3, 3"); p.salu("s_add_u32 s33, s33, s28"); p.salu("s_mul_i32 s33, s33, 1280")
        p.salu("s_mul_i32 s28, s7, 163840"); p.salu("s_add_u32 s33, s33, s28"); p.salu(f"s_add_u32 s33, s33, {k0*128}")
        p.salu("s_cmp_ge_u32 s3, 2"); p.salu("s_cselect_b32 s33, 0x8000000, s33")
        p.valu(f"v_lshrrev_b32 v{T}, 3, v0", wr=[T], rd=[0])
        p.valu(f"v_mul_u32_u24 v{T}, 1280, v{T}", wr=[T], rd=[T])
        p.valu(f"v_and_b32 v{T+1}, 7, v0", wr=[T+1], rd=[0])
        p.valu(f"v_lshl_add_u32 v{T}, v{T+1}, 7, v{T}", wr=[T], rd=[T+1, T])
        p.bload(D + 2, 1, T, "s[20:23]", "s33", flags=TF)
        p.reset_tracking()
    srd(p, 24, 44, 128 * 128 * 1024)
    p.valu(f"v_and_b32 v{T+1}, 15, v0", wr=[T+1], rd=[0])
    p.valu(f"v_and_b32 v{T}, 31, v0", wr=[T], rd=[0])
    p.valu(f"v_lshrrev_b32 v{T+2}, 5, v0", wr=[T+2], rd=[0])
    p.valu(f"v_xor_b32 v{T+3}, v{T+2}, v{T+1}", wr=[T+3], rd=[T+2, T+1])
    p.valu(f"v_lshlrev_b32 v{T+3}, 4, v{T+3}", wr=[T+3], rd=[T+3])
    p.valu(f"v_lshl_add_u32 v{T+3}, v{T}, 8, v{T+3}", wr=[T+3], rd=[T, T+3])
    p.valu(f"v_add_u32 v{T+3}, {KVRING}, v{T+3}", wr=[T+3], rd=[T+3])
    for j in range(8):
        p.valu(f"v_xor_b32 v{aK+j}, {j*32}, v{T+3}", wr=[aK+j], rd=[T+3])
    p.valu(f"v_bfe_u32 v{T+4}, v0, 2, 2", wr=[T+4], rd=[0])
    p.valu(f"v_lshl_add_u32 v{T+5}, v{T+2}, 2, v{T+4}", wr=[T+5], rd=[T+2, T+4])
    p.valu(f"v_lshlrev_b32 v{T+5}, 8, v{T+5}", wr=[T+5], rd=[T+5])
    p.valu(f"v_bfe_u32 v{T+6}, v0, 4, 1", wr=[T+6], rd=[0])
    p.valu(f"v_lshl_add_u32 v{T+5}, v{T+6}, 5, v{T+5}", wr=[T+5], rd=[T+6, T+5])
    p.valu(f"v_and_b32 v{T+6}, 3, v0", wr=[T+6], rd=[0])
    p.valu(f"v_lshl_add_u32 v{T+5}, v{T+6}, 3, v{T+5}", wr=[T+5], rd=[T+6, T+5])
    p.valu(f"v_add_u32 v{T+5}, {KVRING + 16384}, v{T+5}", wr=[T+5], rd=[T+5])
    for b in range(4):
        p.valu(f"v_xor_b32 v{T+6}, {b}, v{T+4}", wr=[T+6], rd=[T+4])
        p.valu(f"v_lshl_add_u32 v{aV+b}, v{T+6}, 6, v{T+5}", wr=[aV+b], rd=[T+6, T+5])
    p.valu(f"v_bfe_u32 v{T+6}, v0, 4, 1", wr=[T+6], rd=[0])
    p.valu(f"v_lshlrev_b32 v{T+6}, 17, v{T+6}", wr=[T+6], rd=[T+6])
    p.valu(f"v_lshl_add_u32 v{T+6}, v{T+1}, 4, v{T+6}", wr=[T+6], rd=[T+1, T+6])
    p.valu(f"v_lshl_add_u32 v{voO}, v{T+2}, 8, v{T+6}", wr=[voO], rd=[T+2, T+6])
    p.salu("s_lshl_b32 s34, s7, 3"); p.salu("s_lshl_b32 s33, s3, 1"); p.salu("s_add_u32 s34, s34, s33")
    p.salu("s_lshl_b32 s34, s34, 7"); p.salu("s_lshl_b32 s33, s6, 2"); p.salu("s_add_u32 s34, s34, s33")
    p.salu("s_add_u32 s34, s34, 64"); p.salu("s_lshl_b32 s34, s34, 10")
    p.salu("s_lshl_b32 s33, s3, 13")
    p.valu(f"v_lshlrev_b32 v{aH}, 4, v0", wr=[aH], rd=[0])
    p.valu(f"v_add_u32 v{aH}, s33, v{aH}", wr=[aH], rd=[aH])
    p.valu(f"v_add_u32 v{aOH}, {OHAND}, v{aH}", wr=[aOH], rd=[aH])
    p.salu("s_mov_b32 s49, -65536"); p.salu("s_mov_b32 s50, 32768")
    p.salu("s_mov_b32 s35, 0")
    p.salu("s_mov_b32 s46, 0")
    head("A")
    st(1); st.cyc(5)
    B = [KF, VF]
    def sm_half(S, P, half):
        ops = []
        b0 = 8 * half
        def addcvt(k):
            ops.append(lambda k=k: p.valu(f"v_add_f32 v{LS}, v{LS}, v{S+k}", wr=[LS], rd=[LS, S+k]))
            ops.append(lambda k=k: p.valu(f"v_add_f32 v{LS+1}, v{LS+1}, v{S+k+1}", wr=[LS+1], rd=[LS+1, S+k+1]))
            ops.append(lambda k=k: p.valu(f"v_cvt_pk_bf16_f32 v{P+k//2}, v{S+k}, v{S+k+1}", wr=[P+k//2], rd=[S+k, S+k+1]))
        for i in range(b0, b0 + 8, 2):
            ops.append(lambda i=i: p.trans(f"v_exp_f32 v{S+i}, v{S+i}", wr=[S+i], rd=[S+i]))
            ops.append(lambda i=i: p.trans(f"v_exp_f32 v{S+i+1}, v{S+i+1}", wr=[S+i+1], rd=[S+i+1]))
            if i >= b0 + 2: addcvt(i - 2)
        addcvt(b0 + 6)
        return ops
    def vread(bank, t, n):
        ks2, blk = n >> 2, n & 3
        d = bank + 4 * n
        ks = 2 * t + ks2
        p.ds_read("ds_read_b64_tr_b16", d, 2, aV + blk, off=ks * 4096)
        p.ds_read("ds_read_b64_tr_b16", d + 2, 2, aV + blk, off=ks * 4096 + 2048)
    def spread(ops, slots, i):
        for _ in range(slots[i]):
            if ops: ops.pop(0)()
    def step(first, par):
        KB = B[par]; VB = B[1 - par]
        p.barrier()
        p.reset_tracking()
        if first:
            p.salu("s_cmp_eq_u32 s46, 0")
            p.branch(f"s_cbranch_scc1 {name}_noq")
            for j in range(8):
                p.ds_read("ds_read_b128", Q + 4*j, 4, aH, off=QHAND + j * 1024)
            p.wait(lgkm=0)
            p.label(f"{name}_noq")
        for j in range(8):
            p.ds_read("ds_read_b128", KB + 4*j, 4, aK + j)
        if first:
            p.valu(f"v_mov_b32 v{LS}, 0", wr=[LS]); p.valu(f"v_mov_b32 v{LS+1}, 0", wr=[LS+1])
            sm = []
        else:
            sm = sm_half(S1, P1, 1)
            for _ in range(12): sm.pop(0)()
        for j in range(8):
            if j == 0: p.wait(lgkm=4)
            if j == 4: p.wait(lgkm=4)
            if j == 0:
                if first: p.mfma32(S0, KB, Q, czero=True)
                else: p.mfma32(S0, KB, Q, C=C)
            else:
                p.mfma32(S0, KB + 4*j, Q + 4*j)
            p.ds_read("ds_read_b128", KB + 4*j, 4, aK + j, off=8192)
            spread(sm, [2, 2, 2, 2, 0, 0, 0, 0], j)
        while sm: sm.pop(0)()
        if first:
            p.valu(f"v_max3_f32 v{T}, v{S0}, v{S0+1}, v{S0+2}", wr=[T], rd=[S0, S0+1, S0+2])
            for i in range(3, 15, 2):
                p.valu(f"v_max3_f32 v{T}, v{T}, v{S0+i}, v{S0+i+1}", wr=[T], rd=[T, S0+i, S0+i+1])
            p.valu(f"v_max_f32 v{T}, v{T}, v{S0+15}", wr=[T], rd=[T, S0+15])
            p.valu(f"v_mov_b32 v{T+1}, v{T}", wr=[T+1], rd=[T])
            p.perm(f"v_permlane32_swap_b32 v{T}, v{T+1}", [T, T+1])
            p.valu(f"v_max_f32 v{T}, v{T}, v{T+1}", wr=[T], rd=[T, T+1])
            for i in range(16):
                p.valu(f"v_sub_f32 v{C+i}, 0, v{T}", wr=[C+i], rd=[T])
            for i in range(16):
                p.valu(f"v_sub_f32 v{S0+i}, v{S0+i}, v{T}", wr=[S0+i], rd=[S0+i, T])
        sm = sm_half(S0, P0, 0)
        for n in range(8):
            if n in (2, 5): p.wait(lgkm=(4 if n == 2 else 6))
            if not first:
                p.mfma32(O + 16*(n & 3), VB + 4*n, P1 + 4*(n >> 2))
            vread(VB, 0, n)
            spread(sm, [0, 0, 4, 4, 3, 3, 3, 3], n)
        while sm: sm.pop(0)()
        sm = sm_half(S0, P0, 1)
        for j in range(8):
            if j in (0, 3, 6): p.wait(lgkm=6)
            if j == 0: p.mfma32(S1, KB, Q, C=C)
            else: p.mfma32(S1, KB + 4*j, Q + 4*j)
            vread(KB, 1, j)
            spread(sm, [3, 3, 3, 3, 2, 2, 2, 2], j)
        while sm: sm.pop(0)()
        p.salu("s_add_u32 s35, s35, 1")
        p.salu("s_cmp_eq_u32 s35, 3")
        p.salu("s_cselect_b32 s33, s49, s50")
        p.salu("s_cselect_b32 s35, 0, s35")
        sm = sm_half(S1, P1, 0)
        adv = [(lambda r=r: p.valu(f"v_add_u32 v{r}, s33, v{r}", wr=[r], rd=[r])) for r in list(range(aK, aK+8)) + list(range(aV, aV+4))]
        for n in range(8):
            if first and n < 4: p.mfma32(O + 16*(n & 3), VB + 4*n, P0 + 4*(n >> 2), czero=True)
            else: p.mfma32(O + 16*(n & 3), VB + 4*n, P0 + 4*(n >> 2))
            if n < 2:
                spread(adv, [6, 6], n)
            spread(sm, [0, 0, 4, 4, 3, 3, 3, 3], n)
        while sm: sm.pop(0)()
        p.wait(lgkm=0)
    p.label(f"{name}_Apair")
    step(True, 0)
    p.salu("s_mov_b32 s47, 8")
    p.label(f"{name}_Aloop")
    step(False, 1)
    p.salu("s_cmp_lt_u32 s47, 8")
    p.branch(f"s_cbranch_scc1 {name}_Anw")
    p.raw("    s_waitcnt vmcnt(0)")
    p.label(f"{name}_Anw")
    p.salu("s_sub_u32 s47, s47, 1")
    p.salu("s_cmp_eq_u32 s47, 0")
    p.branch(f"s_cbranch_scc1 {name}_Aepi")
    step(False, 0)
    p.branch(f"s_branch {name}_Aloop")
    p.label(f"{name}_Aepi")
    p.out.append(Ins("s_nop 0", "nop", states=1))
    sm = sm_half(S1, P1, 1)
    while sm: sm.pop(0)()
    for n in range(8):
        p.mfma32(O + 16*(n & 3), B[1] + 4*n, P1 + 4*(n >> 2))
    p.nop(12)
    p.valu(f"v_add_f32 v{LS}, v{LS}, v{LS+1}", wr=[LS], rd=[LS, LS+1])
    p.valu(f"v_mov_b32 v{T}, v{LS}", wr=[T], rd=[LS])
    p.perm(f"v_permlane32_swap_b32 v{LS}, v{T}", [LS, T])
    p.valu(f"v_add_f32 v{LS}, v{LS}, v{T}", wr=[LS], rd=[LS, T])
    p.salu(f"s_mov_b32 s33, {hex(f2u(2.0**30))}")
    p.valu(f"v_cmp_nlt_f32 vcc, v{LS}, s33", rd=[LS], swr=["vcc"]) if False else p.raw(f"    v_cmp_nlt_f32_e64 vcc, v{LS}, s33")
    p.nop(5)
    p.branch(f"s_cbranch_vccnz {name}_Aslow")
    p.label(f"{name}_Anorm")
    p.out.append(Ins("s_nop 0", "nop", states=25))
    p.reset_tracking()
    p.trans(f"v_rcp_f32 v{T}, v{LS}", wr=[T], rd=[LS])
    for blk in range(4):
        for u in range(2):
            for i in range(8):
                r = O + 16*blk + 8*u + i
                p.valu(f"v_mul_f32 v{r}, v{r}, v{T}", wr=[r], rd=[r, T])
            d = S0 + (blk * 2 + u) * 4
            for i in range(4):
                r = O + 16*blk + 8*u + 2*i
                p.valu(f"v_cvt_pk_bf16_f32 v{d+i}, v{r}, v{r+1}", wr=[d+i], rd=[r, r+1])
    p.salu("s_cmp_eq_u32 s46, 1")
    p.branch(f"s_cbranch_scc1 {name}_Afin")
    p.salu(f"s_sub_u32 s33, s34, {64*1024}")
    for u in range(8):
        p.bstore(S0 + 4*u, 4, voO, "s[24:27]", "s33", off=(u >> 1) * 1024 + (u & 1) * 512, tag="ost", flags=STF)
    p.salu("s_mov_b32 s46, 1")
    p.nop(2)
    st(2); st.cyc(6)
    p.branch(f"s_branch {name}_Apair")
    p.label(f"{name}_Afin")
    st(3); st.cyc(7)
    for u in range(8):
        p.bstore(S0 + 4*u, 4, voO, "s[24:27]", "s34", off=(u >> 1) * 1024 + (u & 1) * 512, tag="ost", flags=STF)
    p.raw("    s_waitcnt vmcnt(0)")
    st(4)
    srd(p, 16, 58, 256)
    p.valu("v_mov_b32 v228, 0", wr=[228]); p.valu("v_mov_b32 v231, 1", wr=[231])
    p.salu("s_mov_b64 exec, 1")
    p.raw("    ds_add_u32 v228, v231 offset:12\n    s_waitcnt lgkmcnt(0)")
    p.salu("s_mov_b64 exec, -1")
    p.salu("s_cmp_lg_u32 s3, 0")
    p.branch(f"s_cbranch_scc1 {name}_nosigB")
    p.label(f"{name}_spB")
    p.raw("    ds_read_b32 v229, v228 offset:12\n    s_waitcnt lgkmcnt(0)\n    v_readfirstlane_b32 s33, v229\n    s_nop 3")
    p.salu("s_cmp_ge_u32 s33, 4")
    p.branch(f"s_cbranch_scc1 {name}_spBd")
    p.raw("    s_sleep 1")
    p.branch(f"s_branch {name}_spB")
    p.label(f"{name}_spBd")
    p.salu("s_mov_b64 exec, 1")
    p.salu("s_lshl_b32 s33, s7, 2"); p.salu("s_add_u32 s33, s33, 128")
    p.raw("    buffer_atomic_add v231, v228, s[16:19], s33 offen sc1")
    p.salu("s_mov_b64 exec, -1")
    p.label(f"{name}_nosigB")
    for r in range(80): p.valu(f"v_mov_b32 v{64+r}, 0", wr=[64+r])
    p.label(f"{name}_Tail")
    p.out.append(Ins("s_nop 0", "nop", states=25))
    p.reset_tracking()
    ACC = 64; STG = 144; voB = 2; vZ = 6; vP = 8
    srd(p, 24, 44, 0x2000000)
    srd(p, 20, 56, 2048 * 640 * 2)
    out_map()
    p.valu(f"v_mbcnt_lo_u32_b32 v{voB}, -1, 0", wr=[voB])
    p.valu(f"v_mbcnt_hi_u32_b32 v{voB}, -1, v{voB}", wr=[voB], rd=[voB])
    p.valu(f"v_mov_b32 v0, v{voB}", wr=[0], rd=[voB])
    p.valu(f"v_lshlrev_b32 v{voB}, 4, v{voB}", wr=[voB], rd=[voB])
    p.valu(f"v_add_u32 v{voB+1}, 4096, v{voB}", wr=[voB+1], rd=[voB])
    p.valu(f"v_mov_b32 v{vZ}, 0", wr=[vZ])
    ZF = vZ + 1
    def set_zf(off):
        p.salu("s_lshr_b32 s51, s4, 1"); p.salu("s_lshl_b32 s51, s51, 2"); p.salu(f"s_add_u32 s51, s51, {off}")
        p.valu(f"v_cmp_eq_u32 vcc, 0, v0", rd=[0], swr=["vcc"])
        p.valu(f"v_mov_b32 v{ZF}, s51", wr=[ZF])
        p.nop(2)
        p.valu(f"v_cndmask_b32 v{ZF}, v{ZF}, v{vZ}, vcc", wr=[ZF], rd=[ZF, vZ])
    gid = [0]
    def gate(goff, ldsoff, poller=0):
        g = f"{name}_g{gid[0]}"; gid[0] += 1
        p.salu(f"s_cmp_lg_u32 s3, {poller}")
        p.branch(f"s_cbranch_scc1 {g}o")
        set_zf(goff)
        p.salu("s_mov_b32 s63, 0")
        p.label(f"{g}p")
        p.salu("s_mov_b64 exec, 3")
        p.raw(f"    buffer_load_dword v{vP}, v{ZF}, s[16:19], 0 offen sc1")
        p.salu("s_mov_b64 exec, -1")
        p.raw("    s_waitcnt vmcnt(0)")
        p.raw(f"    v_readlane_b32 s33, v{vP}, 0\n    v_readlane_b32 s35, v{vP}, 1\n    s_nop 3")
        p.salu("s_cmp_ge_u32 s33, 256"); p.salu("s_cselect_b32 s61, 1, 0")
        p.salu("s_cmp_ge_u32 s35, 16"); p.salu("s_cselect_b32 s61, s61, 0")
        p.salu("s_cmp_lg_u32 s61, 0")
        p.branch(f"s_cbranch_scc1 {g}s")
        p.raw(f"    s_sleep {opts.get('tsleep', 16)}")
        p.salu("s_add_u32 s63, s63, 1"); p.salu("s_cmp_lt_u32 s63, 0x80000")
        p.branch(f"s_cbranch_scc1 {g}p")
        p.label(f"{g}s")
        p.raw(f"    v_mov_b32 v{vP}, 1\n    ds_write_b32 v{vZ}, v{vP} offset:{ldsoff}\n    s_waitcnt lgkmcnt(0)")
        p.branch(f"s_branch {g}d")
        p.label(f"{g}o")
        p.salu("s_mov_b32 s63, 0")
        p.label(f"{g}oo")
        p.raw(f"    ds_read_b32 v{vP}, v{vZ} offset:{ldsoff}\n    s_waitcnt lgkmcnt(0)\n    v_readfirstlane_b32 s61, v{vP}\n    s_nop 3")
        p.salu("s_cmp_lg_u32 s61, 0")
        p.branch(f"s_cbranch_scc1 {g}d")
        p.raw("    s_sleep 2")
        p.salu("s_add_u32 s63, s63, 1"); p.salu("s_cmp_lt_u32 s63, 0x800000")
        p.branch(f"s_cbranch_scc1 {g}oo")
        p.label(f"{g}d")
    def seq(n1, n2, base1_ops, base2_ops, need_r1):
        N = n1 + n2
        p.reset_tracking()
        if need_r1: gate(64, 8, 4)
        def bases(ops):
            for o in ops: p.salu(o)
            frag_bases("s62")
        def vo(li): return voB + (li >> 2)
        def issueA(i):
            li = i if i < n1 else i - n1
            base = STG + (i % 3) * 36
            for nb in range(5):
                p.bload(base + 4*nb, 4, vo(li), "s[24:27]", f"s{sAr[nb]}", off=(li & 3) * 1024, tag=f"a{i}", flags=" sc1")
        def issueB(i):
            li = i if i < n1 else i - n1
            base = STG + (i % 3) * 36
            for q in range(4):
                p.bload(base + 20 + 4*q, 4, vo(li), "s[24:27]", f"s{36+q}", off=(li & 3) * 1024, tag=f"b{i}", flags=" sc1")
        def issue(i):
            if i == n1:
                vmsave = list(p.vm)
                gate(128, 4, 4)
                p.vm = vmsave
                bases(base2_ops)
            issueA(i); issueB(i)
        if n1: bases(base1_ops)
        issue(0); issue(1)
        for i in range(N):
            base = STG + (i % 3) * 36
            if i + 2 < N: issue(i + 2)
            for nb in range(5):
                for q in range(4):
                    p.mfma16(ACC + (nb*4 + q)*4, base + 4*nb, base + 20 + 4*q)
    p.valu(f"v_add_u32 v{voB+2}, 8192, v{voB}", wr=[voB+2], rd=[voB])
    p.valu(f"v_add_u32 v{voB+3}, 12288, v{voB}", wr=[voB+3], rd=[voB])
    st(8)
    np1 = opts.get("np1", 10); na1 = 16 - np1
    p.salu("s_cmp_ge_u32 s3, 4")
    p.branch(f"s_cbranch_scc1 {name}_TVP")
    seq(na1, 8, [f"s_mul_i32 s62, s3, {na1}", f"s_add_u32 s62, s62, {4*np1}"], ["s_lshl_b32 s62, s3, 3", "s_add_u32 s62, s62, 64"], True)
    p.branch(f"s_branch {name}_Tred")
    p.label(f"{name}_TVP")
    seq(np1, 8, ["s_sub_u32 s62, s3, 4", f"s_mul_i32 s62, s62, {np1}"], ["s_lshl_b32 s62, s3, 3", "s_add_u32 s62, s62, 64"], True)
    p.label(f"{name}_Tred")
    p.out.append(Ins("s_nop 7", "nop", states=25))
    p.reset_tracking()
    p.barrier()
    st(9)
    T = 8
    p.salu("s_mul_i32 s33, s3, 20480")
    p.valu(f"v_add_u32 v{T}, s33, v{voB}", wr=[T], rd=[voB])
    for t in range(20):
        p.ds_write("ds_write_b128", T, ACC + 4*t, 4, off=t*1024)
    p.wait(lgkm=0)
    p.barrier()
    p.valu(f"v_and_b32 v{T+1}, 15, v0", wr=[T+1], rd=[0])
    p.valu(f"v_mul_u32_u24 v{T+1}, 1280, v{T+1}", wr=[T+1], rd=[T+1])
    p.valu(f"v_lshrrev_b32 v{T+2}, 4, v0", wr=[T+2], rd=[0])
    p.valu(f"v_lshl_add_u32 v{T+1}, v{T+2}, 3, v{T+1}", wr=[T+1], rd=[T+2, T+1])
    p.salu(f"s_mul_i32 s34, s4, {64*1280}")
    p.salu("s_mul_i32 s33, s5, 160"); p.salu("s_add_u32 s34, s34, s33")
    p.salu("s_lshl_b32 s35, s3, 10")
    p.valu(f"v_add_u32 v{T+3}, s35, v{voB}", wr=[T+3], rd=[voB])
    for rnd in range(3):
        if rnd == 2:
            p.salu("s_cmp_ge_u32 s3, 4")
            p.branch(f"s_cbranch_scc1 {name}_fin")
        p.salu(f"s_add_u32 s40, s3, {8*rnd}")
        p.salu("s_lshr_b32 s41, s40, 2"); p.salu("s_and_b32 s42, s40, 3")
        p.salu("s_lshl_b32 s41, s41, 5")
        p.salu(f"s_mul_i32 s42, s42, {16*1280}")
        p.salu("s_add_u32 s41, s41, s42"); p.salu("s_add_u32 s41, s41, s34")
        for w in range(8):
            off = w * 20480 + rnd * 8192
            if off < 65536:
                p.ds_read("ds_read_b128", ACC + 4*w, 4, T + 3, off=off)
            else:
                p.valu(f"v_add_u32 v{T+4}, {off}, v{T+3}", wr=[T+4], rd=[T+3])
                p.ds_read("ds_read_b128", ACC + 4*w, 4, T + 4)
        for w in range(1, 8):
            for r in range(4):
                p.valu(f"v_add_f32 v{ACC+r}, v{ACC+r}, v{ACC+4*w+r}", wr=[ACC+r], rd=[ACC+r, ACC+4*w+r])
        p.valu(f"v_cvt_pk_bf16_f32 v{ACC+40}, v{ACC}, v{ACC+1}", wr=[ACC+40], rd=[ACC, ACC+1])
        p.valu(f"v_cvt_pk_bf16_f32 v{ACC+41}, v{ACC+2}, v{ACC+3}", wr=[ACC+41], rd=[ACC+2, ACC+3])
        p.bstore(ACC + 40, 2, T + 1, "s[20:23]", "s41", flags=["", " nt", " sc1", " sc0 sc1"][opts.get("outf", 0)])
        p.nop(2)
    p.label(f"{name}_fin")
    if st.on:
        p.raw("    s_waitcnt vmcnt(0)")
        st(10); st.dump("s3")
    p.branch(f"s_branch {name}_done")
    p.label(f"{name}_Aslow")
    p.out.append(Ins("s_nop 0", "nop", states=25))
    p.reset_tracking()
    O = 64; S0 = 128; P0 = 160; KF = 176; VF = 208; Q = 32; LS = 2; T = 4
    M = 5; AL = 6; vK = 7; vV = 8; TM = 9; TN = 10
    srd(p, 8, 38, 0x8000000); srd(p, 12, 40, 0x8000000)
    p.salu("s_lshl_b32 s36, s7, 5"); p.salu("s_add_u32 s36, s36, s6"); p.salu("s_lshl_b32 s33, s46, 4"); p.salu("s_add_u32 s36, s36, s33"); p.salu("s_lshl_b32 s36, s36, 18")
    p.valu(f"v_mbcnt_lo_u32_b32 v{TM}, -1, 0", wr=[TM])
    p.valu(f"v_mbcnt_hi_u32_b32 v{TM}, -1, v{TM}", wr=[TM], rd=[TM])
    p.valu(f"v_and_b32 v{TN}, 31, v{TM}", wr=[TN], rd=[TM])
    p.valu(f"v_lshrrev_b32 v{TM}, 5, v{TM}", wr=[TM], rd=[TM])
    p.valu(f"v_lshlrev_b32 v{vK}, 8, v{TN}", wr=[vK], rd=[TN])
    p.valu(f"v_lshl_add_u32 v{vK}, v{TM}, 4, v{vK}", wr=[vK], rd=[TM, vK])
    p.valu(f"v_lshlrev_b32 v{vV}, 1, v{TN}", wr=[vV], rd=[TN])
    p.valu(f"v_lshl_add_u32 v{vV}, v{TM}, 10, v{vV}", wr=[vV], rd=[TM, vV])
    for r in range(64): p.valu(f"v_mov_b32 v{O+r}, 0", wr=[O+r])
    p.valu(f"v_mov_b32 v{LS}, 0", wr=[LS])
    p.valu(f"v_mov_b32 v{M}, 0xff7fffff", wr=[M])
    p.salu("s_mov_b32 s37, 0")
    p.label(f"{name}_Asl")
    p.reset_tracking()
    for j in range(8): p.bload(KF + 4*j, 4, vK, "s[8:11]", "s36", off=j*32)
    TV = 144
    for ks2 in range(2):
        for bp in range(2):
            for bb in range(2):
                blk = 2*bp + bb
                for i in range(8):
                    key = 16*ks2 + (i if i < 4 else 8 + i - 4)
                    p.salu(f"s_add_u32 s33, s36, {key*256 + blk*64}")
                    p.raw(f"    buffer_load_ushort v{TV + 8*bb + i}, v{vV}, s[12:15], s33 offen")
            p.raw("    s_waitcnt vmcnt(0)")
            for bb in range(2):
                d = VF + (ks2*4 + 2*bp + bb)*4
                for r in range(4):
                    p.valu(f"v_lshl_or_b32 v{d+r}, v{TV+8*bb+2*r+1}, 16, v{TV+8*bb+2*r}", wr=[d+r], rd=[TV+8*bb+2*r+1, TV+8*bb+2*r])
    p.raw("    s_waitcnt vmcnt(0)")
    p.reset_tracking()
    for j in range(8):
        if j == 0: p.mfma32(S0, KF, Q, czero=True)
        else: p.mfma32(S0, KF + 4*j, Q + 4*j)
    p.valu(f"v_max3_f32 v{TM}, v{S0}, v{S0+1}, v{S0+2}", wr=[TM], rd=[S0, S0+1, S0+2])
    for i in range(3, 15, 2): p.valu(f"v_max3_f32 v{TM}, v{TM}, v{S0+i}, v{S0+i+1}", wr=[TM], rd=[TM, S0+i, S0+i+1])
    p.valu(f"v_max_f32 v{TM}, v{TM}, v{S0+15}", wr=[TM], rd=[TM, S0+15])
    p.valu(f"v_mov_b32 v{TN}, v{TM}", wr=[TN], rd=[TM])
    p.perm(f"v_permlane32_swap_b32 v{TM}, v{TN}", [TM, TN])
    p.valu(f"v_max3_f32 v{TM}, v{TM}, v{TN}, v{M}", wr=[TM], rd=[TM, TN, M])
    p.valu(f"v_sub_f32 v{AL}, v{M}, v{TM}", wr=[AL], rd=[M, TM])
    p.trans(f"v_exp_f32 v{AL}, v{AL}", wr=[AL], rd=[AL])
    p.valu(f"v_mov_b32 v{M}, v{TM}", wr=[M], rd=[TM])
    p.valu(f"v_mul_f32 v{LS}, v{LS}, v{AL}", wr=[LS], rd=[LS, AL])
    for r in range(64): p.valu(f"v_mul_f32 v{O+r}, v{O+r}, v{AL}", wr=[O+r], rd=[O+r, AL])
    for i in range(16):
        p.valu(f"v_sub_f32 v{S0+i}, v{S0+i}, v{M}", wr=[S0+i], rd=[S0+i, M])
        p.trans(f"v_exp_f32 v{S0+i}, v{S0+i}", wr=[S0+i], rd=[S0+i])
    for i in range(16): p.valu(f"v_add_f32 v{LS}, v{LS}, v{S0+i}", wr=[LS], rd=[LS, S0+i])
    for i in range(8): p.valu(f"v_cvt_pk_bf16_f32 v{P0+i}, v{S0+2*i}, v{S0+2*i+1}", wr=[P0+i], rd=[S0+2*i, S0+2*i+1])
    for n in range(8): p.mfma32(O + 16*(n & 3), VF + 4*n, P0 + 4*(n >> 2))
    p.nop(16)
    p.salu("s_add_u32 s36, s36, 8192")
    p.salu("s_add_u32 s37, s37, 1")
    p.salu("s_cmp_lt_u32 s37, 32")
    p.branch(f"s_cbranch_scc1 {name}_Asl")
    p.valu(f"v_mov_b32 v{T}, v{LS}", wr=[T], rd=[LS])
    p.perm(f"v_permlane32_swap_b32 v{LS}, v{T}", [LS, T])
    p.valu(f"v_add_f32 v{LS}, v{LS}, v{T}", wr=[LS], rd=[LS, T])
    p.nop(2)
    p.branch(f"s_branch {name}_Anorm")
    p.label(f"{name}_done")
    p.raw("    s_endpgm")
    return p, name

def gen_k2(opts):
    p = Prog()
    name = opts.get("name", "k2_kernel")
    K2F = ["", " nt", " sc1", " sc0 sc1", " sc0"][opts.get("k2nt", 0)]
    st = Stamps(p, opts, key="wgt2")
    p.raw(f".globl {name}\n.p2align 8\n.type {name},@function\n{name}:")
    p.salu("s_cmp_ge_u32 s2, 256")
    p.branch(f"s_cbranch_scc1 {name}_done")
    p.salu("s_load_dwordx2 s[38:39], s[0:1], 40")
    p.salu("s_load_dwordx2 s[44:45], s[0:1], 56")
    p.valu("v_lshrrev_b32 v1, 6, v0", wr=[1], rd=[0])
    p.valu("v_and_b32 v0, 63, v0", wr=[0], rd=[0])
    p.rfl("s3", 1)
    p.salu("s_and_b32 s4, s2, 7")
    p.salu("s_lshr_b32 s5, s2, 3")
    p.salu("s_lshr_b32 s6, s4, 1"); p.salu("s_lshl_b32 s6, s6, 3"); p.salu("s_lshr_b32 s7, s5, 2"); p.salu("s_add_u32 s6, s6, s7")
    p.salu("s_and_b32 s7, s4, 1"); p.salu("s_lshl_b32 s7, s7, 2"); p.salu("s_and_b32 s5, s5, 3"); p.salu("s_add_u32 s7, s7, s5")
    ACC = 64; ST = 144; voB = 2; T = 4
    p.valu(f"v_lshlrev_b32 v{voB}, 4, v0", wr=[voB], rd=[0])
    p.salu("s_lshl_b32 s29, s6, 9"); p.salu("s_lshl_b32 s33, s3, 4"); p.salu("s_add_u32 s29, s29, s33"); p.salu("s_lshl_b32 s29, s29, 10")
    for q in range(4): p.salu(f"s_add_u32 s{48+q}, s29, {q*131072}")
    p.salu("s_mul_i32 s29, s7, 640"); p.salu("s_add_u32 s29, s29, s33"); p.salu("s_lshl_b32 s29, s29, 10")
    for nb in range(5): p.salu(f"s_add_u32 s{52+nb}, s29, {WOT + nb*131072}")
    p.raw("    s_waitcnt lgkmcnt(0)")
    if st.on:
        for k in range(16): p.raw(f"    s_mov_b32 s{70+k}, 0")
    st(0)
    srd(p, 24, 44, 0x2000000)
    srd(p, 12, 38, 2048 * 640 * 2)
    def issue(i):
        base = ST + (i % 3) * 36
        for nb in range(5):
            p.bload(base + 4*nb, 4, voB + (i >> 2), "s[24:27]", f"s{52+nb}", off=(i & 3) * 1024, tag=f"a{i}", flags=K2F)
        for q in range(4):
            p.bload(base + 20 + 4*q, 4, voB + (i >> 2), "s[24:27]", f"s{48+q}", off=(i & 3) * 1024, tag=f"b{i}", flags=K2F)
    for j in range(1, 4): p.valu(f"v_add_u32 v{voB+j}, {4096*j}, v{voB}", wr=[voB+j], rd=[voB])
    issue(0); issue(1)
    for i in range(16):
        p.comment(f"kstep {i}")
        base = ST + (i % 3) * 36
        if i + 2 < 16: issue(i + 2)
        if i == 1: st(1)
        if i == 8: st(2)
        for nb in range(5):
            for q in range(4):
                if i == 0: p.mfma16(ACC + (nb*4 + q)*4, base + 4*nb, base + 20 + 4*q, czero=True)
                else: p.mfma16(ACC + (nb*4 + q)*4, base + 4*nb, base + 20 + 4*q)
    st(3)
    T = 8
    p.salu("s_mul_i32 s33, s3, 20480")
    p.valu(f"v_add_u32 v{T}, s33, v{voB}", wr=[T], rd=[voB])
    for t in range(20):
        p.ds_write("ds_write_b128", T, ACC + 4*t, 4, off=t*1024)
    p.wait(lgkm=0)
    p.barrier()
    p.valu(f"v_and_b32 v{T+1}, 15, v0", wr=[T+1], rd=[0])
    p.valu(f"v_mul_u32_u24 v{T+1}, 1280, v{T+1}", wr=[T+1], rd=[T+1])
    p.valu(f"v_lshrrev_b32 v{T+2}, 4, v0", wr=[T+2], rd=[0])
    p.valu(f"v_lshl_add_u32 v{T+1}, v{T+2}, 3, v{T+1}", wr=[T+1], rd=[T+2, T+1])
    p.salu(f"s_mul_i32 s34, s6, {64*1280}")
    p.salu("s_mul_i32 s33, s7, 160"); p.salu("s_add_u32 s34, s34, s33")
    p.salu("s_lshl_b32 s35, s3, 10")
    p.valu(f"v_add_u32 v{T+3}, s35, v{voB}", wr=[T+3], rd=[voB])
    st(4)
    for rnd in range(3):
        if rnd == 2:
            p.salu("s_cmp_ge_u32 s3, 4")
            p.branch(f"s_cbranch_scc1 {name}_done")
        p.salu(f"s_add_u32 s40, s3, {8*rnd}")
        p.salu("s_lshr_b32 s41, s40, 2"); p.salu("s_and_b32 s42, s40, 3")
        p.salu("s_lshl_b32 s41, s41, 5")
        p.salu(f"s_mul_i32 s42, s42, {16*1280}")
        p.salu("s_add_u32 s41, s41, s42"); p.salu("s_add_u32 s41, s41, s34")
        for w in range(8):
            off = w * 20480 + rnd * 8192
            if off < 65536:
                p.ds_read("ds_read_b128", ACC + 4*w, 4, T + 3, off=off)
            else:
                p.valu(f"v_add_u32 v{T+4}, {off}, v{T+3}", wr=[T+4], rd=[T+3])
                p.ds_read("ds_read_b128", ACC + 4*w, 4, T + 4)
        for w in range(1, 8):
            for r in range(4):
                p.valu(f"v_add_f32 v{ACC+r}, v{ACC+r}, v{ACC+4*w+r}", wr=[ACC+r], rd=[ACC+r, ACC+4*w+r])
        p.valu(f"v_cvt_pk_bf16_f32 v{ACC+40}, v{ACC}, v{ACC+1}", wr=[ACC+40], rd=[ACC, ACC+1])
        p.valu(f"v_cvt_pk_bf16_f32 v{ACC+41}, v{ACC+2}, v{ACC+3}", wr=[ACC+41], rd=[ACC+2, ACC+3])
        p.bstore(ACC + 40, 2, T + 1, "s[12:15]", "s41", flags=["", " nt", " sc1", " sc0 sc1"][opts.get("outf", 0)])
        p.nop(2)
    if st.on:
        p.raw("    s_waitcnt vmcnt(0)")
        st(5); st.dump("s3")
    p.label(f"{name}_done")
    p.raw("    s_endpgm")
    return p, name

def build(path, opts={}):
    KN = "standalone__mha_block_cached__near_ridge_kernel"
    k1, n1 = gen_k1(dict(opts, name=KN))
    hdr = open("standalone__mha_block_cached__near_ridge.s.ref").read().split("; Override")[0]
    o = [hdr.rstrip()]
    o.append("; @launch grid=(256,1,1) block=(512,1,1) lds=163840")
    o.append('.amdgcn_target "amdgcn-amd-amdhsa--gfx950"\n.text')
    o.append(k1.text())
    o.append('.section .rodata,"a"\n.p2align 6')
    o.append(KD.format(name=n1, vgpr=256, sgpr=96, acc=256))
    open(path, "w").write("\n".join(o) + "\n")
    print("nops", k1.nops, "lines", len(k1.out))

if __name__ == "__main__":
    opts = {}
    for a in sys.argv[2:]:
        k, v = a.split("="); opts[k] = int(v)
    build(sys.argv[1], opts)
```

```python
import sys, struct
from fw import *

LOG2E = 1.4426950408889634
QSCALE = LOG2E / (128 ** 0.5)
def f2u(f): return struct.unpack("<I", struct.pack("<f", f))[0]

KVRING = 65536
QHAND = 0
OHAND = 32768
WOT = 0x1800000

def srd(p, dst, ptr, size):
    p.salu(f"s_mov_b32 s{dst}, s{ptr}")
    p.salu(f"s_and_b32 s{dst+1}, s{ptr+1}, 0xffff")
    p.salu(f"s_mov_b32 s{dst+2}, {hex(size)}")
    p.salu(f"s_mov_b32 s{dst+3}, 0x20000")

class Stamps:
    def __init__(s, p, opts, base=0x2000000, key="wgt"): s.p = p; s.on = opts.get(key, 0); s.base = base
    def __call__(s, k):
        if not s.on: return
        s.p.raw(f"    s_memrealtime s[68:69]\n    s_waitcnt lgkmcnt(0)\n    s_mov_b32 s{70+k}, s68")
        s.p.lg = []
    def cyc(s, k):
        if not s.on: return
        s.p.raw(f"    s_memtime s[68:69]\n    s_waitcnt lgkmcnt(0)\n    s_mov_b32 s{70+k}, s68")
        s.p.lg = []
    def dump(s, wavereg):
        if not s.on: return
        t = """    s_waitcnt vmcnt(0)
    s_mov_b32 s60, s44
    s_and_b32 s61, s45, 0xffff
    s_mov_b32 s62, 0x4000000
    s_mov_b32 s63, 0x20000
    s_lshl_b32 s64, s2, 3
    s_add_u32 s64, s64, %s
    s_lshl_b32 s64, s64, 6
    s_add_u32 s64, s64, %s
    v_mov_b32 v20, 0
""" % (wavereg, hex(s.base))
        for q in range(4):
            for i in range(4): t += f"    v_mov_b32 v{16+i}, s{70+4*q+i}\n"
            t += f"    s_nop 1\n    buffer_store_dwordx4 v[16:19], v20, s[60:63], s64 offen offset:{16*q}\n    s_nop 2\n"
        s.p.raw(t + "    s_waitcnt vmcnt(0)")

def gen_k1(opts):
    p = Prog()
    st = Stamps(p, opts)
    NT = [" nt", " sc1 nt", " sc0 nt", "", " sc1"][opts.get("kvf", 0)]
    WN = [" nt" if opts.get("wnt0", 0) else "", " nt" if opts.get("wnt1", 0) else ""]
    XNT = " nt" if opts.get("xnt", 0) else ""
    cur = [0]
    STF = ["", " nt", " sc1", " sc0 sc1", " sc1 nt", " sc0 sc1 nt"][opts.get("stnt", 3)]
    name = opts.get("name", "k1_kernel")
    p.raw(f".globl {name}\n.p2align 8\n.type {name},@function\n{name}:")
    p.salu("s_cmp_ge_u32 s2, 256")
    p.branch(f"s_cbranch_scc1 {name}_done")
    p.salu("s_load_dwordx8 s[36:43], s[0:1], 0")
    p.salu("s_load_dwordx2 s[44:45], s[0:1], 56")
    p.salu("s_load_dwordx2 s[52:53], s[0:1], 32")
    p.salu("s_load_dwordx4 s[56:59], s[0:1], 40")
    p.valu("v_lshrrev_b32 v1, 6, v0", wr=[1], rd=[0])
    p.valu("v_and_b32 v0, 63, v0", wr=[0], rd=[0])
    p.rfl("s3", 1)
    p.salu("s_and_b32 s4, s2, 7")
    p.salu("s_lshr_b32 s5, s2, 3")
    mp = opts.get("map", 0)
    if mp == 0:
        p.salu("s_lshr_b32 s6, s4, 1"); p.salu("s_lshl_b32 s6, s6, 2"); p.salu("s_and_b32 s7, s5, 3"); p.salu("s_add_u32 s6, s6, s7")
        p.salu("s_and_b32 s7, s4, 1"); p.salu("s_lshl_b32 s7, s7, 3"); p.salu("s_lshr_b32 s5, s5, 2"); p.salu("s_add_u32 s7, s7, s5")
    elif mp == 1:
        p.salu("s_and_b32 s6, s5, 15"); p.salu("s_lshl_b32 s7, s4, 1"); p.salu("s_lshr_b32 s5, s5, 4"); p.salu("s_add_u32 s7, s7, s5")
    elif mp == 2:
        p.salu("s_and_b32 s6, s4, 1"); p.salu("s_lshl_b32 s6, s6, 3"); p.salu("s_and_b32 s7, s5, 7"); p.salu("s_add_u32 s6, s6, s7")
        p.salu("s_lshr_b32 s7, s4, 1"); p.salu("s_lshl_b32 s7, s7, 2"); p.salu("s_lshr_b32 s5, s5, 3"); p.salu("s_add_u32 s7, s7, s5")
    if st.on:
        for k in range(16): p.raw(f"    s_mov_b32 s{70+k}, 0")
    p.raw("    s_waitcnt lgkmcnt(0)")
    st(0)
    p.salu("s_cmp_lt_u32 s3, 4")
    p.branch(f"s_cbranch_scc1 {name}_A")

    HS = 49152
    def head(team, kv_ops=None, run=None):
        A_ = team == "A"
        HA = 64 if A_ else 0
        HW = 176 if A_ else 192
        HX = 208 if A_ else 160
        aWh = 128 if A_ else 96
        aXh = aWh + 12
        voWh = 152 if A_ else 240
        voXh = 250
        T = 4
        DST = 32 if A_ else 128
        wofs = 0 if A_ else 16384
        srd(p, 16, 42, 640 * 4096 * 2)
        if not A_: srd(p, 20, 36, 16 * 128 * 640 * 2)
        p.valu(f"v_lshrrev_b32 v{T}, 4, v0", wr=[T], rd=[0])
        p.valu(f"v_and_b32 v{T+1}, 15, v0", wr=[T+1], rd=[0])
        p.valu(f"v_lshlrev_b32 v{T+2}, 2, v{T}", wr=[T+2], rd=[T])
        p.valu(f"v_xor_b32 v{T+2}, v{T+2}, v{T+1}", wr=[T+2], rd=[T+2, T+1])
        p.valu(f"v_lshlrev_b32 v{T+2}, 4, v{T+2}", wr=[T+2], rd=[T+2])
        p.valu(f"v_lshl_add_u32 v{voWh}, v{T}, 13, v{T+2}", wr=[voWh], rd=[T, T+2])
        if not A_:
            p.valu(f"v_lshl_add_u32 v249, v{T}, 8, v{T+2}", wr=[249], rd=[T, T+2])
            p.valu(f"v_lshrrev_b32 v{T+2}, 3, v0", wr=[T+2], rd=[0])
            p.valu(f"v_mul_u32_u24 v{T+2}, 1280, v{T+2}", wr=[T+2], rd=[T+2])
            p.valu(f"v_and_b32 v{T+3}, 7, v0", wr=[T+3], rd=[0])
            for e in range(2):
                p.valu(f"v_add_u32 v{T+4}, {4*e}, v{T}", wr=[T+4], rd=[T])
                p.valu(f"v_xor_b32 v{T+4}, v{T+4}, v{T+3}", wr=[T+4], rd=[T+4, T+3])
                p.valu(f"v_lshl_add_u32 v{voXh+e}, v{T+4}, 4, v{T+2}", wr=[voXh+e], rd=[T+4, T+2])
        p.salu("s_lshl_b32 s28, s3, 17"); p.salu("s_lshl_b32 s33, s6, 8"); p.salu("s_add_u32 s28, s28, s33")
        if not A_:
            p.salu("s_add_u32 s28, s28, 4096")
            p.salu("s_mul_i32 s29, s7, 163840"); p.salu(f"s_mul_i32 s33, s3, {32*1280}"); p.salu("s_add_u32 s29, s29, s33")
        p.salu("s_lshl_b32 s30, s3, 12")
        HF = " nt" if opts.get("hnt", 0) else ""
        def tile_ops(j):
            ops = []
            sb = (j % 3) * HS
            def fw(i):
                p.salu(f"s_add_u32 m0, s30, {sb + wofs + i*1024}", swr=["m0"])
                p.salu(f"s_add_u32 s33, s28, {(64*j + 4*i) * 8192}")
                p.dma(voWh, "s[16:19]", "s33", tag=f"h{j}", flags=HF)
            def fx(i):
                p.salu(f"s_add_u32 m0, s30, {sb + 32768 + i*1024}", swr=["m0"])
                p.salu(f"s_add_u32 s33, s29, {j*128 + i*10240}")
                p.dma(voXh + (i & 1), "s[20:23]", "s33", tag=f"h{j}", flags=HF)
            if opts.get("nohld"): return ops
            if not A_:
                for i in range(4): ops.append(lambda i=i: fx(i))
            for i in range(4): ops.append(lambda i=i: fw(i))
            return ops
        for j in range(1 if opts.get("t0first", 1) else 3):
            for o in tile_ops(j): o()
        if opts.get("touch", 0):
            D = 252 if A_ else 252
            TT = T + 7
            p.salu("s_lshr_b32 s33, s2, 6"); p.salu("s_mul_i32 s33, s33, 112"); p.salu("s_lshl_b32 s51, s3, 5"); p.salu("s_add_u32 s33, s33, s51")
            p.salu("s_add_u32 s33, s33, 192"); p.salu("s_lshl_b32 s33, s33, 13"); p.salu("s_lshl_b32 s51, s6, 8"); p.salu("s_add_u32 s33, s33, s51")
            if not A_: p.salu("s_add_u32 s33, s33, 4096")
            p.valu(f"v_lshrrev_b32 v{TT}, 1, v0", wr=[TT], rd=[0])
            p.valu(f"v_lshlrev_b32 v{TT}, 13, v{TT}", wr=[TT], rd=[TT])
            p.valu(f"v_and_b32 v{TT+1}, 1, v0", wr=[TT+1], rd=[0])
            p.valu(f"v_lshl_add_u32 v{TT}, v{TT+1}, 7, v{TT}", wr=[TT], rd=[TT+1, TT])
            p.bload(D, 1, TT, "s[16:19]", "s33", flags=HF, tag="touch")
            if not A_:
                p.salu("s_lshr_b32 s33, s2, 3"); p.salu("s_and_b32 s33, s33, 7"); p.salu("s_lshl_b32 s33, s33, 4")
                p.salu("s_lshl_b32 s35, s3, 3"); p.salu("s_add_u32 s33, s33, s35"); p.salu("s_mul_i32 s33, s33, 1280")
                p.salu("s_mul_i32 s35, s7, 163840"); p.salu("s_add_u32 s33, s33, s35"); p.salu("s_add_u32 s33, s33, 384")
                p.salu("s_cmp_ge_u32 s3, 2"); p.salu("s_cselect_b32 s33, 0x8000000, s33")
                p.valu(f"v_lshrrev_b32 v{TT}, 3, v0", wr=[TT], rd=[0])
                p.valu(f"v_mul_u32_u24 v{TT}, 1280, v{TT}", wr=[TT], rd=[TT])
                p.valu(f"v_and_b32 v{TT+1}, 7, v0", wr=[TT+1], rd=[0])
                p.valu(f"v_lshl_add_u32 v{TT}, v{TT+1}, 7, v{TT}", wr=[TT], rd=[TT+1, TT])
                p.bload(D + 1, 1, TT, "s[20:23]", "s33", flags=HF, tag="touch")
        L = 0
        p.valu(f"v_lshrrev_b32 v{T+2}, 5, v{L}", wr=[T+2], rd=[L])
        p.valu(f"v_bfe_u32 v{T+4}, v{L}, 2, 2", wr=[T+4], rd=[L])
        p.valu(f"v_lshl_add_u32 v{T+5}, v{T+2}, 3, v{T+4}", wr=[T+5], rd=[T+2, T+4])
        p.valu(f"v_lshlrev_b32 v{T+5}, 8, v{T+5}", wr=[T+5], rd=[T+5])
        p.valu(f"v_bfe_u32 v{T+6}, v{L}, 4, 1", wr=[T+6], rd=[L])
        p.valu(f"v_lshl_add_u32 v{T+5}, v{T+6}, 5, v{T+5}", wr=[T+5], rd=[T+6, T+5])
        p.valu(f"v_and_b32 v{T+6}, 1, v{L}", wr=[T+6], rd=[L])
        p.valu(f"v_lshl_add_u32 v{T+5}, v{T+6}, 4, v{T+5}", wr=[T+5], rd=[T+6, T+5])
        p.valu(f"v_bfe_u32 v{T+6}, v{L}, 1, 1", wr=[T+6], rd=[L])
        p.valu(f"v_lshl_add_u32 v{T+5}, v{T+6}, 3, v{T+5}", wr=[T+5], rd=[T+6, T+5])
        p.valu(f"v_add_u32 v{T+5}, {wofs}, v{T+5}", wr=[T+5], rd=[T+5])
        for b in range(4):
            p.valu(f"v_xor_b32 v{T+6}, {b}, v{T+4}", wr=[T+6], rd=[T+4])
            p.valu(f"v_lshl_add_u32 v{aWh+b}, v{T+6}, 6, v{T+5}", wr=[aWh+b], rd=[T+6, T+5])
            for sl in (1, 2): p.valu(f"v_add_u32 v{aWh+4*sl+b}, {sl*HS}, v{aWh+b}", wr=[aWh+4*sl+b], rd=[aWh+b])
        p.valu(f"v_and_b32 v{T+4}, 31, v{L}", wr=[T+4], rd=[L])
        p.valu(f"v_bfe_u32 v{T+5}, v{L}, 1, 3", wr=[T+5], rd=[L])
        p.valu(f"v_xor_b32 v{T+5}, v{T+5}, v{T+2}", wr=[T+5], rd=[T+5, T+2])
        p.valu(f"v_lshlrev_b32 v{T+5}, 4, v{T+5}", wr=[T+5], rd=[T+5])
        p.valu(f"v_lshl_add_u32 v{T+5}, v{T+4}, 7, v{T+5}", wr=[T+5], rd=[T+4, T+5])
        p.salu("s_add_u32 s33, s30, 32768")
        p.valu(f"v_add_u32 v{T+5}, s33, v{T+5}", wr=[T+5], rd=[T+5])
        for ks in range(4):
            p.valu(f"v_xor_b32 v{aXh+ks}, {ks*32}, v{T+5}", wr=[aXh+ks], rd=[T+5])
            for sl in (1, 2): p.valu(f"v_add_u32 v{aXh+4*sl+ks}, {sl*HS}, v{aXh+ks}", wr=[aXh+4*sl+ks], rd=[aXh+ks])
        if opts.get("t0first", 1):
            for j in (1, 2):
                for o in tile_ops(j): o()
        p.salu(f"s_mov_b32 s48, {hex(f2u(QSCALE))}")
        if not A_: kv_setup()
        for j in range(10):
            p.comment(f"head {team} step {j}")
            p.wait_tag(f"h{j}")
            p.barrier()
            if j == 0: st(1)
            sl = j % 3
            ops = tile_ops(j + 2) if 1 <= j <= 7 else []
            if not A_:
                if j == 8: ops = ops + kv_ops()
                if j == 9: ops = ops + kv_ops() + kv_ops()
            def wread(ks, blk):
                d = HW + (ks % 2) * 16 + blk * 4
                p.ds_read("ds_read_b64_tr_b16", d, 2, aWh + 4*sl + blk, off=ks*4096)
                p.ds_read("ds_read_b64_tr_b16", d + 2, 2, aWh + 4*sl + blk, off=ks*4096 + 1024)
            HB = opts.get("hb", 1)
            p.ds_read("ds_read_b128", HX, 4, aXh + 4*sl)
            for blk in range(4): wread(0, blk)
            n = len(ops); k = 0; cnt = 0
            def emit_ops(upto):
                nonlocal k
                tgt = -(-upto * n // 16)
                while k < min(n, tgt):
                    ops[k](); k += 1
            if HB and j > 0:
                for blk in range(4):
                    p.mfma32(HA + 16*blk, HW + 16 + blk*4, HX + 12)
                    cnt += 1; emit_ops(cnt)
            for ks in range(1, 4): p.ds_read("ds_read_b128", HX + 4*ks, 4, aXh + 4*sl + ks)
            for ks in range(4):
                if ks + 1 < 4:
                    if ks == 0: p.wait(lgkm=3)
                    for blk in range(4): wread(ks + 1, blk)
                    if ks > 0: p.wait(lgkm=8)
                else:
                    p.wait(lgkm=0)
                    if HB and j < 9: break
                for blk in range(4):
                    if j == 0 and ks == 0: p.mfma32(HA + 16*blk, HW + blk*4, HX, czero=True)
                    else: p.mfma32(HA + 16*blk, HW + (ks % 2)*16 + blk*4, HX + ks*4)
                    cnt += 1; emit_ops(cnt)
            while k < n: ops[k](); k += 1
        st(2)
        for blk in range(4):
            for u in range(2):
                base = HA + 16*blk + 8*u
                for i in range(8):
                    p.valu(f"v_mul_f32 v{base+i}, s48, v{base+i}", wr=[base+i], rd=[base+i])
                for i in range(4):
                    p.valu(f"v_cvt_pk_bf16_f32 v{DST+(blk*2+u)*4+i}, v{base+2*i}, v{base+2*i+1}", wr=[DST+(blk*2+u)*4+i], rd=[base+2*i, base+2*i+1])

    QA = 0; XR = 64; WF = 224; voW = 240; aW = 241; voK = 245; voV = 249; voX = 250; aXlo = 252; aWhi = 192; aXhi = 196
    T = 4
    p.salu("s_sub_u32 s3, s3, 4")
    QP = 128
    def kv_setup():
        srd(p, 8, 38, 0x8000000)
        srd(p, 12, 40, 0x8000000)
        srd(p, 24, 44, 0x2000000)
        T = 4
        for i in range(4):
            p.valu(f"v_add_u32 v{T+2}, {4*i}, v{T}", wr=[T+2], rd=[T])
            p.valu(f"v_xor_b32 v{T+2}, v{T+2}, v{T+1}", wr=[T+2], rd=[T+2, T+1])
            p.valu(f"v_lshlrev_b32 v{T+2}, 4, v{T+2}", wr=[T+2], rd=[T+2])
            p.valu(f"v_lshl_add_u32 v{voK+i}, v{T}, 8, v{T+2}", wr=[voK+i], rd=[T, T+2])
        p.salu("s_lshl_b32 s31, s7, 5"); p.salu("s_add_u32 s31, s31, s6"); p.salu("s_lshl_b32 s31, s31, 18"); p.salu("s_add_u32 s31, s31, s30")
        p.salu(f"s_add_u32 s32, s30, {KVRING}")
        p.salu("s_mov_b32 s34, 0")
    kvn = [0]
    def kv_ops(tag=None):
        ops = []
        tg = tag if tag else f"kv{kvn[0]}"
        kvn[0] += 1
        def k(i):
            if i == 0: p.salu("s_mov_b32 m0, s32", swr=["m0"])
            if not opts.get("nokv"): p.dma(voK + i, "s[8:11]", "s31", off=i * 1024, flags=NT, tag=tg)
        def v(i):
            if i == 0: p.salu("s_add_u32 m0, s32, 16384", swr=["m0"])
            if not opts.get("nokv"): p.dma(voV, "s[12:15]", "s31", off=i * 1024, flags=NT, tag=tg)
            if i == 3:
                p.salu("s_add_u32 s31, s31, 16384")
                p.salu("s_add_u32 s34, s34, 1")
                p.salu("s_cmp_eq_u32 s34, 16")
                p.salu(f"s_cselect_b32 s33, {hex(15 * 262144)}, 0")
                p.salu("s_add_u32 s31, s31, s33")
                p.salu("s_cmp_ge_u32 s34, 32")
                p.salu("s_cselect_b32 s31, 0x8000000, s31")
                p.salu("s_add_u32 s32, s32, 32768")
                p.salu(f"s_cmp_ge_u32 s32, {KVRING + 3*32768}")
                p.salu("s_cselect_b32 s33, 98304, 0")
                p.salu("s_sub_u32 s32, s32, s33")
        for i in range(4): ops.append(lambda i=i: k(i))
        for i in range(4): ops.append(lambda i=i: v(i))
        return ops
    def run(ops):
        for o in ops: o()
    def lane_addr(dst, base_s_text):
        p.valu(f"v_mbcnt_lo_u32_b32 v{dst}, -1, 0", wr=[dst])
        p.valu(f"v_mbcnt_hi_u32_b32 v{dst}, -1, v{dst}", wr=[dst], rd=[dst])
        p.valu(f"v_lshlrev_b32 v{dst}, 4, v{dst}", wr=[dst], rd=[dst])
        p.valu(f"v_add_u32 v{dst}, s33, v{dst}", wr=[dst], rd=[dst])
    def q2_write():
        aHW = WF
        p.salu("s_lshl_b32 s33, s3, 13")
        p.salu(f"s_add_u32 s33, s33, {QHAND}")
        lane_addr(aHW, None)
        for u in range(8): p.ds_write("ds_write_b128", aHW, QP + 4*u, 4, off=u * 1024)
        p.wait(lgkm=0)
    head("P", kv_ops, run)
    p.wait_tag("kv0")
    st(3)
    cur[0] = 1
    ACC = 64
    stage = [[144 + 4*i for i in range(18)], [4*i for i in range(16)] + [216, 220]]
    voB = 224; vZ = 228; vP = 229; vOne = 231; vPo = 232
    def out_map():
        p.salu("s_and_b32 s4, s2, 7"); p.salu("s_lshr_b32 s5, s2, 3")
        p.salu("s_lshr_b32 s33, s4, 1"); p.salu("s_lshl_b32 s33, s33, 3"); p.salu("s_lshr_b32 s35, s5, 2"); p.salu("s_add_u32 s33, s33, s35")
        p.salu("s_and_b32 s4, s4, 1"); p.salu("s_lshl_b32 s4, s4, 2"); p.salu("s_and_b32 s5, s5, 3"); p.salu("s_add_u32 s5, s4, s5")
        p.salu("s_mov_b32 s4, s33")
    def frag_bases(kstep0_reg):
        p.salu("s_lshl_b32 s33, s4, 9"); p.salu(f"s_add_u32 s33, s33, {kstep0_reg}"); p.salu("s_lshl_b32 s33, s33, 10")
        for q in range(4): p.salu(f"s_add_u32 s{36+q}, s33, {q*131072}")
        p.salu("s_mul_i32 s33, s5, 640"); p.salu(f"s_add_u32 s33, s33, {kstep0_reg}"); p.salu("s_lshl_b32 s33, s33, 10")
        for nb in range(5): p.salu(f"s_add_u32 s{sAr[nb]}, s33, {WOT + nb*131072}")
    sAr = [40, 41, 42, 43, 46]
    LDF = " sc1"
    def sig(off_ops):
        p.salu("s_cmp_lg_u32 s3, 0")
        lb = f"{name}_ns{len(p.out)}"
        p.branch(f"s_cbranch_scc1 {lb}")
        for o in off_ops: p.salu(o)
        p.salu("s_mov_b64 exec, 1")
        p.raw(f"    buffer_atomic_add v{vOne}, v{vZ}, s[16:19], s33 offen sc1")
        p.salu("s_mov_b64 exec, -1")
        p.label(lb)
    def signal_w():
        srd(p, 16, 58, 256)
        p.valu(f"v_mov_b32 v{vZ}, 0", wr=[vZ]); p.valu(f"v_mov_b32 v{vOne}, 1", wr=[vOne])
        sig(["s_mov_b32 s33, 0"])
    def signal_and_setup():
        sig(["s_lshl_b32 s33, s7, 2", "s_add_u32 s33, s33, 64"])
        for r in range(80): p.valu(f"v_mov_b32 v{ACC+r}, 0", wr=[ACC+r])
    def poll_issue():
        p.salu("s_mov_b64 exec, 3")
        p.raw(f"    buffer_load_dword v{vP}, v{vPo}, s[16:19], 0 offen sc1")
        p.salu("s_mov_b64 exec, -1")
    def poll_check(dst):
        p.raw(f"    v_readlane_b32 s33, v{vP}, 0\n    v_readlane_b32 s35, v{vP}, 1\n    s_nop 3")
        p.salu("s_cmp_ge_u32 s33, 256"); p.salu("s_cselect_b32 s33, 1, 0")
        p.salu("s_cmp_ge_u32 s35, 16"); p.salu(f"s_cselect_b32 {dst}, s33, 0")
    def o1_issue(par):
        st_ = stage[par]
        for kk in range(2):
            for nb in range(5):
                p.bload(st_[kk*9 + nb], 4, voB, "s[24:27]", f"s{sAr[nb]}", off=kk*1024, flags=LDF)
            for q in range(4):
                p.bload(st_[kk*9 + 5 + q], 4, voB, "s[24:27]", f"s{36+q}", off=kk*1024, flags=LDF)
        for r in sAr + [36, 37, 38, 39]: p.salu(f"s_add_u32 s{r}, s{r}, 2048")
    def o1_compute(par):
        st_ = stage[par]
        p.out.append(Ins("s_nop 0", "nop", states=25))
        for kk in range(2):
            for nb in range(5):
                for q in range(4):
                    p.mfma16(ACC + (nb*4 + q)*4, st_[kk*9 + nb], st_[kk*9 + 5 + q])
    def ohand_store():
        p.comment("O handoff store")
        aO = WF; voO = WF + 1
        p.salu("s_lshl_b32 s33, s3, 13"); p.salu(f"s_add_u32 s33, s33, {OHAND}")
        lane_addr(aO, None)
        for u in range(8): p.ds_read("ds_read_b128", XR + 4*u, 4, aO, off=u * 1024)
        p.valu(f"v_mbcnt_lo_u32_b32 v{voO+1}, -1, 0", wr=[voO+1])
        p.valu(f"v_mbcnt_hi_u32_b32 v{voO+1}, -1, v{voO+1}", wr=[voO+1], rd=[voO+1])
        p.valu(f"v_bfe_u32 v{voO}, v{voO+1}, 4, 1", wr=[voO], rd=[voO+1])
        p.valu(f"v_lshlrev_b32 v{voO}, 17, v{voO}", wr=[voO], rd=[voO])
        p.valu(f"v_and_b32 v{voO+2}, 15, v{voO+1}", wr=[voO+2], rd=[voO+1])
        p.valu(f"v_lshl_add_u32 v{voO}, v{voO+2}, 4, v{voO}", wr=[voO], rd=[voO+2, voO])
        p.valu(f"v_lshrrev_b32 v{voO+2}, 5, v{voO+1}", wr=[voO+2], rd=[voO+1])
        p.valu(f"v_lshl_add_u32 v{voO}, v{voO+2}, 8, v{voO}", wr=[voO], rd=[voO+2, voO])
        p.salu("s_lshl_b32 s35, s7, 3"); p.salu("s_lshl_b32 s33, s3, 1"); p.salu("s_add_u32 s35, s35, s33")
        p.salu("s_lshl_b32 s35, s35, 7"); p.salu("s_lshl_b32 s33, s6, 2"); p.salu("s_add_u32 s35, s35, s33"); p.salu("s_lshl_b32 s35, s35, 10")
        for u in range(8):
            if not opts.get("nost"): p.bstore(XR + 4*u, 4, voO, "s[24:27]", "s35", off=(u >> 1) * 1024 + (u & 1) * 512, tag="ost", flags=STF)
    def wot_issue():
        srd(p, 16, 52, 4096 * 640 * 2)
        Tm = XR
        p.valu(f"v_mbcnt_lo_u32_b32 v{Tm+8}, -1, 0", wr=[Tm+8])
        p.valu(f"v_mbcnt_hi_u32_b32 v{Tm+8}, -1, v{Tm+8}", wr=[Tm+8], rd=[Tm+8])
        p.salu("s_mov_b32 s33, 0x1999999a")
        for i in range(5):
            p.valu(f"v_add_u32 v{Tm+5}, {64*i}, v{Tm+8}", wr=[Tm+5], rd=[Tm+8])
            p.valu(f"v_mul_hi_u32 v{Tm+6}, v{Tm+5}, s33", wr=[Tm+6], rd=[Tm+5])
            p.valu(f"v_mul_u32_u24 v{Tm+7}, 10, v{Tm+6}", wr=[Tm+7], rd=[Tm+6])
            p.valu(f"v_sub_u32 v{Tm+7}, v{Tm+5}, v{Tm+7}", wr=[Tm+7], rd=[Tm+5, Tm+7])
            p.valu(f"v_mul_u32_u24 v{Tm+6}, 1280, v{Tm+6}", wr=[Tm+6], rd=[Tm+6])
            p.valu(f"v_lshl_add_u32 v{Tm+i}, v{Tm+7}, 4, v{Tm+6}", wr=[Tm+i], rd=[Tm+7, Tm+6])
        p.salu("s_lshr_b32 s35, s2, 1"); p.salu(f"s_mul_i32 s35, s35, {32*1280}")
        p.salu("s_and_b32 s33, s2, 1"); p.salu("s_mul_i32 s33, s33, 640"); p.salu("s_add_u32 s35, s35, s33")
        p.salu("s_mul_i32 s33, s3, 160"); p.salu("s_add_u32 s35, s35, s33")
        p.salu("s_mul_i32 s51, s3, 5120"); p.salu(f"s_add_u32 s51, s51, {OHAND}")
        for k in range(5):
            p.salu(f"s_add_u32 m0, s51, {k*1024}", swr=["m0"])
            p.dma(Tm + k, "s[16:19]", "s35", tag="wot", flags=(" nt" if opts.get("wof", 0) else ""))
    def wot_store():
        Tm = XR
        p.wait_tag("wot")
        L = Tm + 8
        p.valu(f"v_lshrrev_b32 v{Tm}, 5, v{L}", wr=[Tm], rd=[L])
        p.valu(f"v_bfe_u32 v{Tm+1}, v{L}, 4, 1", wr=[Tm+1], rd=[L])
        p.valu(f"v_bfe_u32 v{Tm+2}, v{L}, 2, 2", wr=[Tm+2], rd=[L])
        p.valu(f"v_lshl_add_u32 v{Tm+2}, v{Tm+1}, 2, v{Tm+2}", wr=[Tm+2], rd=[Tm+1, Tm+2])
        p.valu(f"v_lshl_add_u32 v{Tm+2}, v{Tm}, 4, v{Tm+2}", wr=[Tm+2], rd=[Tm, Tm+2])
        p.valu(f"v_mul_u32_u24 v{Tm+2}, 160, v{Tm+2}", wr=[Tm+2], rd=[Tm+2])
        p.valu(f"v_and_b32 v{Tm+1}, 3, v{L}", wr=[Tm+1], rd=[L])
        p.valu(f"v_lshl_add_u32 v{Tm+2}, v{Tm+1}, 3, v{Tm+2}", wr=[Tm+2], rd=[Tm+1, Tm+2])
        p.valu(f"v_add_u32 v{Tm+2}, s51, v{Tm+2}", wr=[Tm+2], rd=[Tm+2])
        for nb in range(5):
            d = Tm + 16 + nb*4
            p.ds_read("ds_read_b64_tr_b16", d, 2, Tm + 2, off=nb*32)
            p.ds_read("ds_read_b64_tr_b16", d + 2, 2, Tm + 2, off=nb*32 + 1280)
        p.valu(f"v_lshlrev_b32 v{Tm+3}, 4, v{L}", wr=[Tm+3], rd=[L])
        p.salu("s_and_b32 s33, s2, 1"); p.salu("s_mul_i32 s33, s33, 20"); p.salu("s_mul_i32 s35, s3, 5"); p.salu("s_add_u32 s33, s33, s35")
        p.salu("s_lshl_b32 s33, s33, 7"); p.salu("s_lshr_b32 s35, s2, 1"); p.salu("s_add_u32 s33, s33, s35"); p.salu("s_lshl_b32 s33, s33, 10")
        p.salu(f"s_add_u32 s35, s33, {hex(WOT)}")
        for nb in range(5):
            p.salu(f"s_add_u32 s33, s35, {nb*131072}")
            p.bstore(Tm + 16 + nb*4, 4, Tm + 3, "s[24:27]", "s33", tag="wotst", flags=STF)
    for t in range(19):
        p.comment(f"P step t={t}")
        p.barrier()
        if t in (16, 17): st({16: 6, 17: 7}[t])
        groups = []
        if t == 13 and not opts.get("nowot"): wot_issue()
        if t == 14 and not opts.get("nowot"): wot_store()
        if t == 16: signal_w()
        if t == 18: signal_and_setup()
        if t >= 1: groups.append(kv_ops())
        for g in groups: run(g)
        if t == 14: q2_write()
        p.wait_tag(f"kv{t+1}")
    st(4)
    st(4)
    p.salu("s_mov_b32 s47, 19")
    p.label(f"{name}_Ploop")
    p.barrier()
    p.reset_tracking()
    run(kv_ops("kvn"))
    p.raw("    s_waitcnt vmcnt(8)")
    p.salu("s_add_u32 s47, s47, 1")
    p.salu("s_cmp_lt_u32 s47, 30")
    p.branch(f"s_cbranch_scc1 {name}_Ploop")
    p.barrier()
    p.reset_tracking()
    p.raw(f"    ds_write_b32 v{vZ}, v{vZ} offset:4\n    ds_write_b32 v{vZ}, v{vZ} offset:8\n    ds_write_b32 v{vZ}, v{vZ} offset:12\n    s_waitcnt vmcnt(0) lgkmcnt(0)")
    p.barrier()
    st(5)
    p.salu("s_add_u32 s3, s3, 4")
    p.branch(f"s_branch {name}_Tail")

    p.label(f"{name}_A")
    p.out.append(Ins("s_nop 4", "nop", states=25))
    p.reset_tracking()
    O = 64; S0 = 128; S1 = 144; P0 = 160; P1 = 168; KF = 176; VF = 208; Q = 32; C = 16
    aK = 240; aV = 248; LS = 2; T = 4; aH = 14; voO = 15; aOH = 1
    def a_touch():
        TF = " nt"
        D = 200
        k0 = opts.get("touchk0", 4)
        nrow = (10 - k0) * 64
        q = nrow // 4
        srd(p, 16, 42, 640 * 4096 * 2); srd(p, 20, 36, 16 * 128 * 640 * 2)
        ninst = -(-2*q // 64)
        p.salu("s_lshr_b32 s33, s2, 6"); p.salu(f"s_mul_i32 s33, s33, {q}"); p.salu(f"s_add_u32 s33, s33, {k0*64}")
        p.salu("s_lshl_b32 s28, s3, 5"); p.salu("s_add_u32 s33, s33, s28"); p.salu("s_lshl_b32 s33, s33, 13")
        p.salu("s_lshl_b32 s28, s6, 8"); p.salu("s_add_u32 s33, s33, s28")
        p.valu(f"v_lshrrev_b32 v{T}, 1, v0", wr=[T], rd=[0])
        p.valu(f"v_lshlrev_b32 v{T}, 13, v{T}", wr=[T], rd=[T])
        p.valu(f"v_and_b32 v{T+1}, 1, v0", wr=[T+1], rd=[0])
        p.valu(f"v_lshl_add_u32 v{T}, v{T+1}, 7, v{T}", wr=[T], rd=[T+1, T])
        p.bload(D, 1, T, "s[16:19]", "s33", flags=TF)
        if ninst > 4:
            p.salu(f"s_add_u32 s33, s33, {128 << 13}")
            p.bload(D + 1, 1, T, "s[16:19]", "s33", flags=TF)
        p.salu("s_lshr_b32 s33, s2, 3"); p.salu("s_and_b32 s33, s33, 7"); p.salu("s_lshl_b32 s33, s33, 4")
        p.salu("s_lshl_b32 s28, s3, 3"); p.salu("s_add_u32 s33, s33, s28"); p.salu("s_mul_i32 s33, s33, 1280")
        p.salu("s_mul_i32 s28, s7, 163840"); p.salu("s_add_u32 s33, s33, s28"); p.salu(f"s_add_u32 s33, s33, {k0*128}")
        p.salu("s_cmp_ge_u32 s3, 2"); p.salu("s_cselect_b32 s33, 0x8000000, s33")
        p.valu(f"v_lshrrev_b32 v{T}, 3, v0", wr=[T], rd=[0])
        p.valu(f"v_mul_u32_u24 v{T}, 1280, v{T}", wr=[T], rd=[T])
        p.valu(f"v_and_b32 v{T+1}, 7, v0", wr=[T+1], rd=[0])
        p.valu(f"v_lshl_add_u32 v{T}, v{T+1}, 7, v{T}", wr=[T], rd=[T+1, T])
        p.bload(D + 2, 1, T, "s[20:23]", "s33", flags=TF)
        p.reset_tracking()
    srd(p, 24, 44, 128 * 128 * 1024)
    p.valu(f"v_and_b32 v{T+1}, 15, v0", wr=[T+1], rd=[0])
    p.valu(f"v_and_b32 v{T}, 31, v0", wr=[T], rd=[0])
    p.valu(f"v_lshrrev_b32 v{T+2}, 5, v0", wr=[T+2], rd=[0])
    p.valu(f"v_xor_b32 v{T+3}, v{T+2}, v{T+1}", wr=[T+3], rd=[T+2, T+1])
    p.valu(f"v_lshlrev_b32 v{T+3}, 4, v{T+3}", wr=[T+3], rd=[T+3])
    p.valu(f"v_lshl_add_u32 v{T+3}, v{T}, 8, v{T+3}", wr=[T+3], rd=[T, T+3])
    p.valu(f"v_add_u32 v{T+3}, {KVRING}, v{T+3}", wr=[T+3], rd=[T+3])
    for j in range(8):
        p.valu(f"v_xor_b32 v{aK+j}, {j*32}, v{T+3}", wr=[aK+j], rd=[T+3])
    p.valu(f"v_bfe_u32 v{T+4}, v0, 2, 2", wr=[T+4], rd=[0])
    p.valu(f"v_lshl_add_u32 v{T+5}, v{T+2}, 2, v{T+4}", wr=[T+5], rd=[T+2, T+4])
    p.valu(f"v_lshlrev_b32 v{T+5}, 8, v{T+5}", wr=[T+5], rd=[T+5])
    p.valu(f"v_bfe_u32 v{T+6}, v0, 4, 1", wr=[T+6], rd=[0])
    p.valu(f"v_lshl_add_u32 v{T+5}, v{T+6}, 5, v{T+5}", wr=[T+5], rd=[T+6, T+5])
    p.valu(f"v_and_b32 v{T+6}, 3, v0", wr=[T+6], rd=[0])
    p.valu(f"v_lshl_add_u32 v{T+5}, v{T+6}, 3, v{T+5}", wr=[T+5], rd=[T+6, T+5])
    p.valu(f"v_add_u32 v{T+5}, {KVRING + 16384}, v{T+5}", wr=[T+5], rd=[T+5])
    for b in range(4):
        p.valu(f"v_xor_b32 v{T+6}, {b}, v{T+4}", wr=[T+6], rd=[T+4])
        p.valu(f"v_lshl_add_u32 v{aV+b}, v{T+6}, 6, v{T+5}", wr=[aV+b], rd=[T+6, T+5])
    p.valu(f"v_bfe_u32 v{T+6}, v0, 4, 1", wr=[T+6], rd=[0])
    p.valu(f"v_lshlrev_b32 v{T+6}, 17, v{T+6}", wr=[T+6], rd=[T+6])
    p.valu(f"v_lshl_add_u32 v{T+6}, v{T+1}, 4, v{T+6}", wr=[T+6], rd=[T+1, T+6])
    p.valu(f"v_lshl_add_u32 v{voO}, v{T+2}, 8, v{T+6}", wr=[voO], rd=[T+2, T+6])
    p.salu("s_lshl_b32 s34, s7, 3"); p.salu("s_lshl_b32 s33, s3, 1"); p.salu("s_add_u32 s34, s34, s33")
    p.salu("s_lshl_b32 s34, s34, 7"); p.salu("s_lshl_b32 s33, s6, 2"); p.salu("s_add_u32 s34, s34, s33")
    p.salu("s_add_u32 s34, s34, 64"); p.salu("s_lshl_b32 s34, s34, 10")
    p.salu("s_lshl_b32 s33, s3, 13")
    p.valu(f"v_lshlrev_b32 v{aH}, 4, v0", wr=[aH], rd=[0])
    p.valu(f"v_add_u32 v{aH}, s33, v{aH}", wr=[aH], rd=[aH])
    p.valu(f"v_add_u32 v{aOH}, {OHAND}, v{aH}", wr=[aOH], rd=[aH])
    p.salu("s_mov_b32 s49, -65536"); p.salu("s_mov_b32 s50, 32768")
    p.salu("s_mov_b32 s35, 0")
    p.salu("s_mov_b32 s46, 0")
    head("A")
    st(1); st.cyc(5)
    B = [KF, VF]
    def sm_half(S, P, half):
        ops = []
        b0 = 8 * half
        def addcvt(k):
            ops.append(lambda k=k: p.valu(f"v_add_f32 v{LS}, v{LS}, v{S+k}", wr=[LS], rd=[LS, S+k]))
            ops.append(lambda k=k: p.valu(f"v_add_f32 v{LS+1}, v{LS+1}, v{S+k+1}", wr=[LS+1], rd=[LS+1, S+k+1]))
            ops.append(lambda k=k: p.valu(f"v_cvt_pk_bf16_f32 v{P+k//2}, v{S+k}, v{S+k+1}", wr=[P+k//2], rd=[S+k, S+k+1]))
        for i in range(b0, b0 + 8, 2):
            ops.append(lambda i=i: p.trans(f"v_exp_f32 v{S+i}, v{S+i}", wr=[S+i], rd=[S+i]))
            ops.append(lambda i=i: p.trans(f"v_exp_f32 v{S+i+1}, v{S+i+1}", wr=[S+i+1], rd=[S+i+1]))
            if i >= b0 + 2: addcvt(i - 2)
        addcvt(b0 + 6)
        return ops
    def vread(bank, t, n):
        ks2, blk = n >> 2, n & 3
        d = bank + 4 * n
        ks = 2 * t + ks2
        p.ds_read("ds_read_b64_tr_b16", d, 2, aV + blk, off=ks * 4096)
        p.ds_read("ds_read_b64_tr_b16", d + 2, 2, aV + blk, off=ks * 4096 + 2048)
    def spread(ops, slots, i):
        for _ in range(slots[i]):
            if ops: ops.pop(0)()
    def step(first, par):
        KB = B[par]; VB = B[1 - par]
        p.barrier()
        p.reset_tracking()
        if first:
            p.salu("s_cmp_eq_u32 s46, 0")
            p.branch(f"s_cbranch_scc1 {name}_noq")
            for j in range(8):
                p.ds_read("ds_read_b128", Q + 4*j, 4, aH, off=QHAND + j * 1024)
            p.wait(lgkm=0)
            p.label(f"{name}_noq")
        for j in range(8):
            p.ds_read("ds_read_b128", KB + 4*j, 4, aK + j)
        if first:
            p.valu(f"v_mov_b32 v{LS}, 0", wr=[LS]); p.valu(f"v_mov_b32 v{LS+1}, 0", wr=[LS+1])
            sm = []
        else:
            sm = sm_half(S1, P1, 1)
            for _ in range(12): sm.pop(0)()
        for j in range(8):
            if j == 0: p.wait(lgkm=4)
            if j == 4: p.wait(lgkm=4)
            if j == 0:
                if first: p.mfma32(S0, KB, Q, czero=True)
                else: p.mfma32(S0, KB, Q, C=C)
            else:
                p.mfma32(S0, KB + 4*j, Q + 4*j)
            p.ds_read("ds_read_b128", KB + 4*j, 4, aK + j, off=8192)
            spread(sm, [2, 2, 2, 2, 0, 0, 0, 0], j)
        while sm: sm.pop(0)()
        if first:
            p.valu(f"v_max3_f32 v{T}, v{S0}, v{S0+1}, v{S0+2}", wr=[T], rd=[S0, S0+1, S0+2])
            for i in range(3, 15, 2):
                p.valu(f"v_max3_f32 v{T}, v{T}, v{S0+i}, v{S0+i+1}", wr=[T], rd=[T, S0+i, S0+i+1])
            p.valu(f"v_max_f32 v{T}, v{T}, v{S0+15}", wr=[T], rd=[T, S0+15])
            p.valu(f"v_mov_b32 v{T+1}, v{T}", wr=[T+1], rd=[T])
            p.perm(f"v_permlane32_swap_b32 v{T}, v{T+1}", [T, T+1])
            p.valu(f"v_max_f32 v{T}, v{T}, v{T+1}", wr=[T], rd=[T, T+1])
            for i in range(16):
                p.valu(f"v_sub_f32 v{C+i}, 0, v{T}", wr=[C+i], rd=[T])
            for i in range(16):
                p.valu(f"v_sub_f32 v{S0+i}, v{S0+i}, v{T}", wr=[S0+i], rd=[S0+i, T])
        sm = sm_half(S0, P0, 0)
        for n in range(8):
            if n in (2, 5): p.wait(lgkm=(4 if n == 2 else 6))
            if not first:
                p.mfma32(O + 16*(n & 3), VB + 4*n, P1 + 4*(n >> 2))
            vread(VB, 0, n)
            spread(sm, [0, 0, 4, 4, 3, 3, 3, 3], n)
        while sm: sm.pop(0)()
        sm = sm_half(S0, P0, 1)
        for j in range(8):
            if j in (0, 3, 6): p.wait(lgkm=6)
            if j == 0: p.mfma32(S1, KB, Q, C=C)
            else: p.mfma32(S1, KB + 4*j, Q + 4*j)
            vread(KB, 1, j)
            spread(sm, [3, 3, 3, 3, 2, 2, 2, 2], j)
        while sm: sm.pop(0)()
        p.salu("s_add_u32 s35, s35, 1")
        p.salu("s_cmp_eq_u32 s35, 3")
        p.salu("s_cselect_b32 s33, s49, s50")
        p.salu("s_cselect_b32 s35, 0, s35")
        sm = sm_half(S1, P1, 0)
        adv = [(lambda r=r: p.valu(f"v_add_u32 v{r}, s33, v{r}", wr=[r], rd=[r])) for r in list(range(aK, aK+8)) + list(range(aV, aV+4))]
        for n in range(8):
            if first and n < 4: p.mfma32(O + 16*(n & 3), VB + 4*n, P0 + 4*(n >> 2), czero=True)
            else: p.mfma32(O + 16*(n & 3), VB + 4*n, P0 + 4*(n >> 2))
            if n < 2:
                spread(adv, [6, 6], n)
            spread(sm, [0, 0, 4, 4, 3, 3, 3, 3], n)
        while sm: sm.pop(0)()
        p.wait(lgkm=0)
    p.label(f"{name}_Apair")
    step(True, 0)
    p.salu("s_mov_b32 s47, 8")
    p.label(f"{name}_Aloop")
    step(False, 1)
    p.salu("s_cmp_lt_u32 s47, 8")
    p.branch(f"s_cbranch_scc1 {name}_Anw")
    p.raw("    s_waitcnt vmcnt(0)")
    p.label(f"{name}_Anw")
    p.salu("s_sub_u32 s47, s47, 1")
    p.salu("s_cmp_eq_u32 s47, 0")
    p.branch(f"s_cbranch_scc1 {name}_Aepi")
    step(False, 0)
    p.branch(f"s_branch {name}_Aloop")
    p.label(f"{name}_Aepi")
    p.out.append(Ins("s_nop 0", "nop", states=1))
    sm = sm_half(S1, P1, 1)
    while sm: sm.pop(0)()
    for n in range(8):
        p.mfma32(O + 16*(n & 3), B[1] + 4*n, P1 + 4*(n >> 2))
    p.nop(12)
    p.valu(f"v_add_f32 v{LS}, v{LS}, v{LS+1}", wr=[LS], rd=[LS, LS+1])
    p.valu(f"v_mov_b32 v{T}, v{LS}", wr=[T], rd=[LS])
    p.perm(f"v_permlane32_swap_b32 v{LS}, v{T}", [LS, T])
    p.valu(f"v_add_f32 v{LS}, v{LS}, v{T}", wr=[LS], rd=[LS, T])
    p.salu(f"s_mov_b32 s33, {hex(f2u(2.0**30))}")
    p.valu(f"v_cmp_nlt_f32 vcc, v{LS}, s33", rd=[LS], swr=["vcc"]) if False else p.raw(f"    v_cmp_nlt_f32_e64 vcc, v{LS}, s33")
    p.nop(5)
    p.branch(f"s_cbranch_vccnz {name}_Aslow")
    p.label(f"{name}_Anorm")
    p.out.append(Ins("s_nop 0", "nop", states=25))
    p.reset_tracking()
    p.trans(f"v_rcp_f32 v{T}, v{LS}", wr=[T], rd=[LS])
    for blk in range(4):
        for u in range(2):
            for i in range(8):
                r = O + 16*blk + 8*u + i
                p.valu(f"v_mul_f32 v{r}, v{r}, v{T}", wr=[r], rd=[r, T])
            d = S0 + (blk * 2 + u) * 4
            for i in range(4):
                r = O + 16*blk + 8*u + 2*i
                p.valu(f"v_cvt_pk_bf16_f32 v{d+i}, v{r}, v{r+1}", wr=[d+i], rd=[r, r+1])
    p.salu("s_cmp_eq_u32 s46, 1")
    p.branch(f"s_cbranch_scc1 {name}_Afin")
    p.salu(f"s_sub_u32 s33, s34, {64*1024}")
    for u in range(8):
        p.bstore(S0 + 4*u, 4, voO, "s[24:27]", "s33", off=(u >> 1) * 1024 + (u & 1) * 512, tag="ost", flags=STF)
    p.salu("s_mov_b32 s46, 1")
    p.nop(2)
    st(2); st.cyc(6)
    p.branch(f"s_branch {name}_Apair")
    p.label(f"{name}_Afin")
    st(3); st.cyc(7)
    for u in range(8):
        p.bstore(S0 + 4*u, 4, voO, "s[24:27]", "s34", off=(u >> 1) * 1024 + (u & 1) * 512, tag="ost", flags=STF)
    p.raw("    s_waitcnt vmcnt(0)")
    st(4)
    srd(p, 16, 58, 256)
    p.valu("v_mov_b32 v228, 0", wr=[228]); p.valu("v_mov_b32 v231, 1", wr=[231])
    p.salu("s_mov_b64 exec, 1")
    p.raw("    ds_add_u32 v228, v231 offset:12\n    s_waitcnt lgkmcnt(0)")
    p.salu("s_mov_b64 exec, -1")
    p.salu("s_cmp_lg_u32 s3, 0")
    p.branch(f"s_cbranch_scc1 {name}_nosigB")
    p.label(f"{name}_spB")
    p.raw("    ds_read_b32 v229, v228 offset:12\n    s_waitcnt lgkmcnt(0)\n    v_readfirstlane_b32 s33, v229\n    s_nop 3")
    p.salu("s_cmp_ge_u32 s33, 4")
    p.branch(f"s_cbranch_scc1 {name}_spBd")
    p.raw("    s_sleep 1")
    p.branch(f"s_branch {name}_spB")
    p.label(f"{name}_spBd")
    p.salu("s_mov_b64 exec, 1")
    p.salu("s_lshl_b32 s33, s7, 2"); p.salu("s_add_u32 s33, s33, 128")
    p.raw("    buffer_atomic_add v231, v228, s[16:19], s33 offen sc1")
    p.salu("s_mov_b64 exec, -1")
    p.label(f"{name}_nosigB")
    for r in range(80): p.valu(f"v_mov_b32 v{64+r}, 0", wr=[64+r])
    p.label(f"{name}_Tail")
    p.out.append(Ins("s_nop 0", "nop", states=25))
    p.reset_tracking()
    ACC = 64; STG = 144; voB = 2; vZ = 6; vP = 8
    srd(p, 24, 44, 0x2000000)
    srd(p, 20, 56, 2048 * 640 * 2)
    out_map()
    p.valu(f"v_mbcnt_lo_u32_b32 v{voB}, -1, 0", wr=[voB])
    p.valu(f"v_mbcnt_hi_u32_b32 v{voB}, -1, v{voB}", wr=[voB], rd=[voB])
    p.valu(f"v_mov_b32 v0, v{voB}", wr=[0], rd=[voB])
    p.valu(f"v_lshlrev_b32 v{voB}, 4, v{voB}", wr=[voB], rd=[voB])
    p.valu(f"v_add_u32 v{voB+1}, 4096, v{voB}", wr=[voB+1], rd=[voB])
    p.valu(f"v_mov_b32 v{vZ}, 0", wr=[vZ])
    ZF = vZ + 1
    def set_zf(off):
        p.salu("s_lshr_b32 s51, s4, 1"); p.salu("s_lshl_b32 s51, s51, 2"); p.salu(f"s_add_u32 s51, s51, {off}")
        p.valu(f"v_cmp_eq_u32 vcc, 0, v0", rd=[0], swr=["vcc"])
        p.valu(f"v_mov_b32 v{ZF}, s51", wr=[ZF])
        p.nop(2)
        p.valu(f"v_cndmask_b32 v{ZF}, v{ZF}, v{vZ}, vcc", wr=[ZF], rd=[ZF, vZ])
    gid = [0]
    def gate(goff, ldsoff, poller=0):
        g = f"{name}_g{gid[0]}"; gid[0] += 1
        p.salu(f"s_cmp_lg_u32 s3, {poller}")
        p.branch(f"s_cbranch_scc1 {g}o")
        set_zf(goff)
        p.salu("s_mov_b32 s63, 0")
        p.label(f"{g}p")
        p.salu("s_mov_b64 exec, 3")
        p.raw(f"    buffer_load_dword v{vP}, v{ZF}, s[16:19], 0 offen sc1")
        p.salu("s_mov_b64 exec, -1")
        p.raw("    s_waitcnt vmcnt(0)")
        p.raw(f"    v_readlane_b32 s33, v{vP}, 0\n    v_readlane_b32 s35, v{vP}, 1\n    s_nop 3")
        p.salu("s_cmp_ge_u32 s33, 256"); p.salu("s_cselect_b32 s61, 1, 0")
        p.salu("s_cmp_ge_u32 s35, 16"); p.salu("s_cselect_b32 s61, s61, 0")
        p.salu("s_cmp_lg_u32 s61, 0")
        p.branch(f"s_cbranch_scc1 {g}s")
        p.raw(f"    s_sleep {opts.get('tsleep', 16)}")
        p.salu("s_add_u32 s63, s63, 1"); p.salu("s_cmp_lt_u32 s63, 0x80000")
        p.branch(f"s_cbranch_scc1 {g}p")
        p.label(f"{g}s")
        p.raw(f"    v_mov_b32 v{vP}, 1\n    ds_write_b32 v{vZ}, v{vP} offset:{ldsoff}\n    s_waitcnt lgkmcnt(0)")
        p.branch(f"s_branch {g}d")
        p.label(f"{g}o")
        p.salu("s_mov_b32 s63, 0")
        p.label(f"{g}oo")
        p.raw(f"    ds_read_b32 v{vP}, v{vZ} offset:{ldsoff}\n    s_waitcnt lgkmcnt(0)\n    v_readfirstlane_b32 s61, v{vP}\n    s_nop 3")
        p.salu("s_cmp_lg_u32 s61, 0")
        p.branch(f"s_cbranch_scc1 {g}d")
        p.raw("    s_sleep 2")
        p.salu("s_add_u32 s63, s63, 1"); p.salu("s_cmp_lt_u32 s63, 0x800000")
        p.branch(f"s_cbranch_scc1 {g}oo")
        p.label(f"{g}d")
    def seq(n1, n2, base1_ops, base2_ops, need_r1):
        N = n1 + n2
        p.reset_tracking()
        if need_r1: gate(64, 8, 4)
        def bases(ops):
            for o in ops: p.salu(o)
            frag_bases("s62")
        def vo(li): return voB + (li >> 2)
        def issueA(i):
            li = i if i < n1 else i - n1
            base = STG + (i % 3) * 36
            for nb in range(5):
                p.bload(base + 4*nb, 4, vo(li), "s[24:27]", f"s{sAr[nb]}", off=(li & 3) * 1024, tag=f"a{i}", flags=" sc1")
        def issueB(i):
            li = i if i < n1 else i - n1
            base = STG + (i % 3) * 36
            for q in range(4):
                p.bload(base + 20 + 4*q, 4, vo(li), "s[24:27]", f"s{36+q}", off=(li & 3) * 1024, tag=f"b{i}", flags=" sc1")
        def issue(i):
            if i == n1:
                vmsave = list(p.vm)
                gate(128, 4, 4)
                p.vm = vmsave
                bases(base2_ops)
            issueA(i); issueB(i)
        if n1: bases(base1_ops)
        issue(0); issue(1)
        for i in range(N):
            base = STG + (i % 3) * 36
            if i + 2 < N: issue(i + 2)
            for nb in range(5):
                for q in range(4):
                    p.mfma16(ACC + (nb*4 + q)*4, base + 4*nb, base + 20 + 4*q)
    p.valu(f"v_add_u32 v{voB+2}, 8192, v{voB}", wr=[voB+2], rd=[voB])
    p.valu(f"v_add_u32 v{voB+3}, 12288, v{voB}", wr=[voB+3], rd=[voB])
    st(8)
    np1 = opts.get("np1", 10); na1 = 16 - np1
    p.salu("s_cmp_ge_u32 s3, 4")
    p.branch(f"s_cbranch_scc1 {name}_TVP")
    seq(na1, 8, [f"s_mul_i32 s62, s3, {na1}", f"s_add_u32 s62, s62, {4*np1}"], ["s_lshl_b32 s62, s3, 3", "s_add_u32 s62, s62, 64"], True)
    p.branch(f"s_branch {name}_Tred")
    p.label(f"{name}_TVP")
    seq(np1, 8, ["s_sub_u32 s62, s3, 4", f"s_mul_i32 s62, s62, {np1}"], ["s_lshl_b32 s62, s3, 3", "s_add_u32 s62, s62, 64"], True)
    p.label(f"{name}_Tred")
    p.out.append(Ins("s_nop 7", "nop", states=25))
    p.reset_tracking()
    p.barrier()
    st(9)
    T = 8
    p.salu("s_mul_i32 s33, s3, 20480")
    p.valu(f"v_add_u32 v{T}, s33, v{voB}", wr=[T], rd=[voB])
    for t in range(20):
        p.ds_write("ds_write_b128", T, ACC + 4*t, 4, off=t*1024)
    p.wait(lgkm=0)
    p.barrier()
    p.valu(f"v_and_b32 v{T+1}, 15, v0", wr=[T+1], rd=[0])
    p.valu(f"v_mul_u32_u24 v{T+1}, 1280, v{T+1}", wr=[T+1], rd=[T+1])
    p.valu(f"v_lshrrev_b32 v{T+2}, 4, v0", wr=[T+2], rd=[0])
    p.valu(f"v_lshl_add_u32 v{T+1}, v{T+2}, 3, v{T+1}", wr=[T+1], rd=[T+2, T+1])
    p.salu(f"s_mul_i32 s34, s4, {64*1280}")
    p.salu("s_mul_i32 s33, s5, 160"); p.salu("s_add_u32 s34, s34, s33")
    p.salu("s_lshl_b32 s35, s3, 10")
    p.valu(f"v_add_u32 v{T+3}, s35, v{voB}", wr=[T+3], rd=[voB])
    for rnd in range(3):
        if rnd == 2:
            p.salu("s_cmp_ge_u32 s3, 4")
            p.branch(f"s_cbranch_scc1 {name}_fin")
        p.salu(f"s_add_u32 s40, s3, {8*rnd}")
        p.salu("s_lshr_b32 s41, s40, 2"); p.salu("s_and_b32 s42, s40, 3")
        p.salu("s_lshl_b32 s41, s41, 5")
        p.salu(f"s_mul_i32 s42, s42, {16*1280}")
        p.salu("s_add_u32 s41, s41, s42"); p.salu("s_add_u32 s41, s41, s34")
        for w in range(8):
            off = w * 20480 + rnd * 8192
            if off < 65536:
                p.ds_read("ds_read_b128", ACC + 4*w, 4, T + 3, off=off)
            else:
                p.valu(f"v_add_u32 v{T+4}, {off}, v{T+3}", wr=[T+4], rd=[T+3])
                p.ds_read("ds_read_b128", ACC + 4*w, 4, T + 4)
        for w in range(1, 8):
            for r in range(4):
                p.valu(f"v_add_f32 v{ACC+r}, v{ACC+r}, v{ACC+4*w+r}", wr=[ACC+r], rd=[ACC+r, ACC+4*w+r])
        p.valu(f"v_cvt_pk_bf16_f32 v{ACC+40}, v{ACC}, v{ACC+1}", wr=[ACC+40], rd=[ACC, ACC+1])
        p.valu(f"v_cvt_pk_bf16_f32 v{ACC+41}, v{ACC+2}, v{ACC+3}", wr=[ACC+41], rd=[ACC+2, ACC+3])
        p.bstore(ACC + 40, 2, T + 1, "s[20:23]", "s41", flags=["", " nt", " sc1", " sc0 sc1"][opts.get("outf", 0)])
        p.nop(2)
    p.label(f"{name}_fin")
    if st.on:
        p.raw("    s_waitcnt vmcnt(0)")
        st(10); st.dump("s3")
    p.branch(f"s_branch {name}_done")
    p.label(f"{name}_Aslow")
    p.out.append(Ins("s_nop 0", "nop", states=25))
    p.reset_tracking()
    O = 64; S0 = 128; P0 = 160; KF = 176; VF = 208; Q = 32; LS = 2; T = 4
    M = 5; AL = 6; vK = 7; vV = 8; TM = 9; TN = 10
    srd(p, 8, 38, 0x8000000); srd(p, 12, 40, 0x8000000)
    p.salu("s_lshl_b32 s36, s7, 5"); p.salu("s_add_u32 s36, s36, s6"); p.salu("s_lshl_b32 s33, s46, 4"); p.salu("s_add_u32 s36, s36, s33"); p.salu("s_lshl_b32 s36, s36, 18")
    p.valu(f"v_mbcnt_lo_u32_b32 v{TM}, -1, 0", wr=[TM])
    p.valu(f"v_mbcnt_hi_u32_b32 v{TM}, -1, v{TM}", wr=[TM], rd=[TM])
    p.valu(f"v_and_b32 v{TN}, 31, v{TM}", wr=[TN], rd=[TM])
    p.valu(f"v_lshrrev_b32 v{TM}, 5, v{TM}", wr=[TM], rd=[TM])
    p.valu(f"v_lshlrev_b32 v{vK}, 8, v{TN}", wr=[vK], rd=[TN])
    p.valu(f"v_lshl_add_u32 v{vK}, v{TM}, 4, v{vK}", wr=[vK], rd=[TM, vK])
    p.valu(f"v_lshlrev_b32 v{vV}, 1, v{TN}", wr=[vV], rd=[TN])
    p.valu(f"v_lshl_add_u32 v{vV}, v{TM}, 10, v{vV}", wr=[vV], rd=[TM, vV])
    for r in range(64): p.valu(f"v_mov_b32 v{O+r}, 0", wr=[O+r])
    p.valu(f"v_mov_b32 v{LS}, 0", wr=[LS])
    p.valu(f"v_mov_b32 v{M}, 0xff7fffff", wr=[M])
    p.salu("s_mov_b32 s37, 0")
    p.label(f"{name}_Asl")
    p.reset_tracking()
    for j in range(8): p.bload(KF + 4*j, 4, vK, "s[8:11]", "s36", off=j*32)
    TV = 144
    for ks2 in range(2):
        for bp in range(2):
            for bb in range(2):
                blk = 2*bp + bb
                for i in range(8):
                    key = 16*ks2 + (i if i < 4 else 8 + i - 4)
                    p.salu(f"s_add_u32 s33, s36, {key*256 + blk*64}")
                    p.raw(f"    buffer_load_ushort v{TV + 8*bb + i}, v{vV}, s[12:15], s33 offen")
            p.raw("    s_waitcnt vmcnt(0)")
            for bb in range(2):
                d = VF + (ks2*4 + 2*bp + bb)*4
                for r in range(4):
                    p.valu(f"v_lshl_or_b32 v{d+r}, v{TV+8*bb+2*r+1}, 16, v{TV+8*bb+2*r}", wr=[d+r], rd=[TV+8*bb+2*r+1, TV+8*bb+2*r])
    p.raw("    s_waitcnt vmcnt(0)")
    p.reset_tracking()
    for j in range(8):
        if j == 0: p.mfma32(S0, KF, Q, czero=True)
        else: p.mfma32(S0, KF + 4*j, Q + 4*j)
    p.valu(f"v_max3_f32 v{TM}, v{S0}, v{S0+1}, v{S0+2}", wr=[TM], rd=[S0, S0+1, S0+2])
    for i in range(3, 15, 2): p.valu(f"v_max3_f32 v{TM}, v{TM}, v{S0+i}, v{S0+i+1}", wr=[TM], rd=[TM, S0+i, S0+i+1])
    p.valu(f"v_max_f32 v{TM}, v{TM}, v{S0+15}", wr=[TM], rd=[TM, S0+15])
    p.valu(f"v_mov_b32 v{TN}, v{TM}", wr=[TN], rd=[TM])
    p.perm(f"v_permlane32_swap_b32 v{TM}, v{TN}", [TM, TN])
    p.valu(f"v_max3_f32 v{TM}, v{TM}, v{TN}, v{M}", wr=[TM], rd=[TM, TN, M])
    p.valu(f"v_sub_f32 v{AL}, v{M}, v{TM}", wr=[AL], rd=[M, TM])
    p.trans(f"v_exp_f32 v{AL}, v{AL}", wr=[AL], rd=[AL])
    p.valu(f"v_mov_b32 v{M}, v{TM}", wr=[M], rd=[TM])
    p.valu(f"v_mul_f32 v{LS}, v{LS}, v{AL}", wr=[LS], rd=[LS, AL])
    for r in range(64): p.valu(f"v_mul_f32 v{O+r}, v{O+r}, v{AL}", wr=[O+r], rd=[O+r, AL])
    for i in range(16):
        p.valu(f"v_sub_f32 v{S0+i}, v{S0+i}, v{M}", wr=[S0+i], rd=[S0+i, M])
        p.trans(f"v_exp_f32 v{S0+i}, v{S0+i}", wr=[S0+i], rd=[S0+i])
    for i in range(16): p.valu(f"v_add_f32 v{LS}, v{LS}, v{S0+i}", wr=[LS], rd=[LS, S0+i])
    for i in range(8): p.valu(f"v_cvt_pk_bf16_f32 v{P0+i}, v{S0+2*i}, v{S0+2*i+1}", wr=[P0+i], rd=[S0+2*i, S0+2*i+1])
    for n in range(8): p.mfma32(O + 16*(n & 3), VF + 4*n, P0 + 4*(n >> 2))
    p.nop(16)
    p.salu("s_add_u32 s36, s36, 8192")
    p.salu("s_add_u32 s37, s37, 1")
    p.salu("s_cmp_lt_u32 s37, 32")
    p.branch(f"s_cbranch_scc1 {name}_Asl")
    p.valu(f"v_mov_b32 v{T}, v{LS}", wr=[T], rd=[LS])
    p.perm(f"v_permlane32_swap_b32 v{LS}, v{T}", [LS, T])
    p.valu(f"v_add_f32 v{LS}, v{LS}, v{T}", wr=[LS], rd=[LS, T])
    p.nop(2)
    p.branch(f"s_branch {name}_Anorm")
    p.label(f"{name}_done")
    p.raw("    s_endpgm")
    return p, name

def gen_k2(opts):
    p = Prog()
    name = opts.get("name", "k2_kernel")
    K2F = ["", " nt", " sc1", " sc0 sc1", " sc0"][opts.get("k2nt", 0)]
    st = Stamps(p, opts, key="wgt2")
    p.raw(f".globl {name}\n.p2align 8\n.type {name},@function\n{name}:")
    p.salu("s_cmp_ge_u32 s2, 256")
    p.branch(f"s_cbranch_scc1 {name}_done")
    p.salu("s_load_dwordx2 s[38:39], s[0:1], 40")
    p.salu("s_load_dwordx2 s[44:45], s[0:1], 56")
    p.valu("v_lshrrev_b32 v1, 6, v0", wr=[1], rd=[0])
    p.valu("v_and_b32 v0, 63, v0", wr=[0], rd=[0])
    p.rfl("s3", 1)
    p.salu("s_and_b32 s4, s2, 7")
    p.salu("s_lshr_b32 s5, s2, 3")
    p.salu("s_lshr_b32 s6, s4, 1"); p.salu("s_lshl_b32 s6, s6, 3"); p.salu("s_lshr_b32 s7, s5, 2"); p.salu("s_add_u32 s6, s6, s7")
    p.salu("s_and_b32 s7, s4, 1"); p.salu("s_lshl_b32 s7, s7, 2"); p.salu("s_and_b32 s5, s5, 3"); p.salu("s_add_u32 s7, s7, s5")
    ACC = 64; ST = 144; voB = 2; T = 4
    p.valu(f"v_lshlrev_b32 v{voB}, 4, v0", wr=[voB], rd=[0])
    p.salu("s_lshl_b32 s29, s6, 9"); p.salu("s_lshl_b32 s33, s3, 4"); p.salu("s_add_u32 s29, s29, s33"); p.salu("s_lshl_b32 s29, s29, 10")
    for q in range(4): p.salu(f"s_add_u32 s{48+q}, s29, {q*131072}")
    p.salu("s_mul_i32 s29, s7, 640"); p.salu("s_add_u32 s29, s29, s33"); p.salu("s_lshl_b32 s29, s29, 10")
    for nb in range(5): p.salu(f"s_add_u32 s{52+nb}, s29, {WOT + nb*131072}")
    p.raw("    s_waitcnt lgkmcnt(0)")
    if st.on:
        for k in range(16): p.raw(f"    s_mov_b32 s{70+k}, 0")
    st(0)
    srd(p, 24, 44, 0x2000000)
    srd(p, 12, 38, 2048 * 640 * 2)
    def issue(i):
        base = ST + (i % 3) * 36
        for nb in range(5):
            p.bload(base + 4*nb, 4, voB + (i >> 2), "s[24:27]", f"s{52+nb}", off=(i & 3) * 1024, tag=f"a{i}", flags=K2F)
        for q in range(4):
            p.bload(base + 20 + 4*q, 4, voB + (i >> 2), "s[24:27]", f"s{48+q}", off=(i & 3) * 1024, tag=f"b{i}", flags=K2F)
    for j in range(1, 4): p.valu(f"v_add_u32 v{voB+j}, {4096*j}, v{voB}", wr=[voB+j], rd=[voB])
    issue(0); issue(1)
    for i in range(16):
        p.comment(f"kstep {i}")
        base = ST + (i % 3) * 36
        if i + 2 < 16: issue(i + 2)
        if i == 1: st(1)
        if i == 8: st(2)
        for nb in range(5):
            for q in range(4):
                if i == 0: p.mfma16(ACC + (nb*4 + q)*4, base + 4*nb, base + 20 + 4*q, czero=True)
                else: p.mfma16(ACC + (nb*4 + q)*4, base + 4*nb, base + 20 + 4*q)
    st(3)
    T = 8
    p.salu("s_mul_i32 s33, s3, 20480")
    p.valu(f"v_add_u32 v{T}, s33, v{voB}", wr=[T], rd=[voB])
    for t in range(20):
        p.ds_write("ds_write_b128", T, ACC + 4*t, 4, off=t*1024)
    p.wait(lgkm=0)
    p.barrier()
    p.valu(f"v_and_b32 v{T+1}, 15, v0", wr=[T+1], rd=[0])
    p.valu(f"v_mul_u32_u24 v{T+1}, 1280, v{T+1}", wr=[T+1], rd=[T+1])
    p.valu(f"v_lshrrev_b32 v{T+2}, 4, v0", wr=[T+2], rd=[0])
    p.valu(f"v_lshl_add_u32 v{T+1}, v{T+2}, 3, v{T+1}", wr=[T+1], rd=[T+2, T+1])
    p.salu(f"s_mul_i32 s34, s6, {64*1280}")
    p.salu("s_mul_i32 s33, s7, 160"); p.salu("s_add_u32 s34, s34, s33")
    p.salu("s_lshl_b32 s35, s3, 10")
    p.valu(f"v_add_u32 v{T+3}, s35, v{voB}", wr=[T+3], rd=[voB])
    st(4)
    for rnd in range(3):
        if rnd == 2:
            p.salu("s_cmp_ge_u32 s3, 4")
            p.branch(f"s_cbranch_scc1 {name}_done")
        p.salu(f"s_add_u32 s40, s3, {8*rnd}")
        p.salu("s_lshr_b32 s41, s40, 2"); p.salu("s_and_b32 s42, s40, 3")
        p.salu("s_lshl_b32 s41, s41, 5")
        p.salu(f"s_mul_i32 s42, s42, {16*1280}")
        p.salu("s_add_u32 s41, s41, s42"); p.salu("s_add_u32 s41, s41, s34")
        for w in range(8):
            off = w * 20480 + rnd * 8192
            if off < 65536:
                p.ds_read("ds_read_b128", ACC + 4*w, 4, T + 3, off=off)
            else:
                p.valu(f"v_add_u32 v{T+4}, {off}, v{T+3}", wr=[T+4], rd=[T+3])
                p.ds_read("ds_read_b128", ACC + 4*w, 4, T + 4)
        for w in range(1, 8):
            for r in range(4):
                p.valu(f"v_add_f32 v{ACC+r}, v{ACC+r}, v{ACC+4*w+r}", wr=[ACC+r], rd=[ACC+r, ACC+4*w+r])
        p.valu(f"v_cvt_pk_bf16_f32 v{ACC+40}, v{ACC}, v{ACC+1}", wr=[ACC+40], rd=[ACC, ACC+1])
        p.valu(f"v_cvt_pk_bf16_f32 v{ACC+41}, v{ACC+2}, v{ACC+3}", wr=[ACC+41], rd=[ACC+2, ACC+3])
        p.bstore(ACC + 40, 2, T + 1, "s[12:15]", "s41", flags=["", " nt", " sc1", " sc0 sc1"][opts.get("outf", 0)])
        p.nop(2)
    if st.on:
        p.raw("    s_waitcnt vmcnt(0)")
        st(5); st.dump("s3")
    p.label(f"{name}_done")
    p.raw("    s_endpgm")
    return p, name

def build(path, opts={}):
    KN = "standalone__mha_block_cached__near_ridge_kernel"
    k1, n1 = gen_k1(dict(opts, name=KN))
    hdr = open("standalone__mha_block_cached__near_ridge.s.ref").read().split("; Override")[0]
    o = [hdr.rstrip()]
    o.append("; @launch grid=(256,1,1) block=(512,1,1) lds=163840")
    o += """; Design (one persistent workgroup per CU, 8 waves = team A (waves 0-3) + team P (waves 4-7)):
;  head : both q-projections of this workgroup (heads h and h+16, same batch); x / wq tiles staged by LDS-DMA,
;         scale log2(e)/sqrt(128) folded into q in fp32 before the bf16 rounding.
;  pairs: team P streams K/V tiles (64 keys) into a 3-slot LDS ring, team A computes S^T = K q^T, p = exp2(S - m),
;         O^T += V^T p^T.  m is the true row max of the first 32 keys (fed through the MFMA C operand);
;         at the end of the row the sum l is checked (l < 2^30, not NaN): if the stand-in max could have been
;         unsafe the wave recomputes its rows with an exact online (running true max) softmax (label *_Aslow).
;  O (bf16) and a fragment-ordered copy of wo go to d_ws with write-through stores; counters in d_debug
;         (zero at launch) publish them.  tail: each workgroup owns a 64x80 output tile, K split over its 8 waves,
;         partial sums reduced through LDS.""".split("\n")
    o.append('.amdgcn_target "amdgcn-amd-amdhsa--gfx950"\n.text')
    o.append(k1.text())
    o.append('.section .rodata,"a"\n.p2align 6')
    o.append(KD.format(name=n1, vgpr=256, sgpr=96, acc=256))
    open(path, "w").write("\n".join(o) + "\n")
    print("nops", k1.nops, "lines", len(k1.out))

if __name__ == "__main__":
    opts = {}
    for a in sys.argv[2:]:
        k, v = a.split("="); opts[k] = int(v)
    build(sys.argv[1], opts)
```

```python
import sys, struct
from fw import *

LOG2E = 1.4426950408889634
QSCALE = LOG2E / (128 ** 0.5)
def f2u(f): return struct.unpack("<I", struct.pack("<f", f))[0]

KVRING = 65536
QHAND = 0
OHAND = 32768
WOT = 0x1800000

def srd(p, dst, ptr, size):
    p.salu(f"s_mov_b32 s{dst}, s{ptr}")
    p.salu(f"s_and_b32 s{dst+1}, s{ptr+1}, 0xffff")
    p.salu(f"s_mov_b32 s{dst+2}, {hex(size)}")
    p.salu(f"s_mov_b32 s{dst+3}, 0x20000")

class Stamps:
    def __init__(s, p, opts, base=0x2000000, key="wgt"): s.p = p; s.on = opts.get(key, 0); s.base = base
    def __call__(s, k):
        if not s.on: return
        s.p.raw(f"    s_memrealtime s[68:69]\n    s_waitcnt lgkmcnt(0)\n    s_mov_b32 s{70+k}, s68")
        s.p.lg = []
    def cyc(s, k):
        if not s.on: return
        s.p.raw(f"    s_memtime s[68:69]\n    s_waitcnt lgkmcnt(0)\n    s_mov_b32 s{70+k}, s68")
        s.p.lg = []
    def dump(s, wavereg):
        if not s.on: return
        t = """    s_waitcnt vmcnt(0)
    s_mov_b32 s60, s44
    s_and_b32 s61, s45, 0xffff
    s_mov_b32 s62, 0x4000000
    s_mov_b32 s63, 0x20000
    s_lshl_b32 s64, s2, 3
    s_add_u32 s64, s64, %s
    s_lshl_b32 s64, s64, 6
    s_add_u32 s64, s64, %s
    v_mov_b32 v20, 0
""" % (wavereg, hex(s.base))
        for q in range(4):
            for i in range(4): t += f"    v_mov_b32 v{16+i}, s{70+4*q+i}\n"
            t += f"    s_nop 1\n    buffer_store_dwordx4 v[16:19], v20, s[60:63], s64 offen offset:{16*q}\n    s_nop 2\n"
        s.p.raw(t + "    s_waitcnt vmcnt(0)")

def gen_k1(opts):
    p = Prog()
    st = Stamps(p, opts)
    NT = [" nt", " sc1 nt", " sc0 nt", "", " sc1"][opts.get("kvf", 0)]
    WN = [" nt" if opts.get("wnt0", 0) else "", " nt" if opts.get("wnt1", 0) else ""]
    XNT = " nt" if opts.get("xnt", 0) else ""
    cur = [0]
    STF = ["", " nt", " sc1", " sc0 sc1", " sc1 nt", " sc0 sc1 nt"][opts.get("stnt", 3)]
    name = opts.get("name", "k1_kernel")
    p.raw(f".globl {name}\n.p2align 8\n.type {name},@function\n{name}:")
    p.salu("s_cmp_ge_u32 s2, 256")
    p.branch(f"s_cbranch_scc1 {name}_done")
    p.salu("s_load_dwordx8 s[36:43], s[0:1], 0")
    p.salu("s_load_dwordx2 s[44:45], s[0:1], 56")
    p.salu("s_load_dwordx2 s[52:53], s[0:1], 32")
    p.salu("s_load_dwordx4 s[56:59], s[0:1], 40")
    p.valu("v_lshrrev_b32 v1, 6, v0", wr=[1], rd=[0])
    p.valu("v_and_b32 v0, 63, v0", wr=[0], rd=[0])
    p.rfl("s3", 1)
    p.salu("s_and_b32 s4, s2, 7")
    p.salu("s_lshr_b32 s5, s2, 3")
    mp = opts.get("map", 0)
    if mp == 0:
        p.salu("s_lshr_b32 s6, s4, 1"); p.salu("s_lshl_b32 s6, s6, 2"); p.salu("s_and_b32 s7, s5, 3"); p.salu("s_add_u32 s6, s6, s7")
        p.salu("s_and_b32 s7, s4, 1"); p.salu("s_lshl_b32 s7, s7, 3"); p.salu("s_lshr_b32 s5, s5, 2"); p.salu("s_add_u32 s7, s7, s5")
    elif mp == 1:
        p.salu("s_and_b32 s6, s5, 15"); p.salu("s_lshl_b32 s7, s4, 1"); p.salu("s_lshr_b32 s5, s5, 4"); p.salu("s_add_u32 s7, s7, s5")
    elif mp == 2:
        p.salu("s_and_b32 s6, s4, 1"); p.salu("s_lshl_b32 s6, s6, 3"); p.salu("s_and_b32 s7, s5, 7"); p.salu("s_add_u32 s6, s6, s7")
        p.salu("s_lshr_b32 s7, s4, 1"); p.salu("s_lshl_b32 s7, s7, 2"); p.salu("s_lshr_b32 s5, s5, 3"); p.salu("s_add_u32 s7, s7, s5")
    if st.on:
        for k in range(16): p.raw(f"    s_mov_b32 s{70+k}, 0")
    p.raw("    s_waitcnt lgkmcnt(0)")
    st(0)
    p.salu("s_cmp_lt_u32 s3, 4")
    p.branch(f"s_cbranch_scc1 {name}_A")

    HS = 49152
    def head(team, kv_ops=None, run=None):
        A_ = team == "A"
        HA = 64 if A_ else 0
        HW = 176 if A_ else 192
        HX = 208 if A_ else 160
        aWh = 128 if A_ else 96
        aXh = aWh + 12
        voWh = 152 if A_ else 240
        voXh = 250
        T = 4
        DST = 32 if A_ else 128
        wofs = 0 if A_ else 16384
        srd(p, 16, 42, 640 * 4096 * 2)
        if not A_: srd(p, 20, 36, 16 * 128 * 640 * 2)
        p.valu(f"v_lshrrev_b32 v{T}, 4, v0", wr=[T], rd=[0])
        p.valu(f"v_and_b32 v{T+1}, 15, v0", wr=[T+1], rd=[0])
        p.valu(f"v_lshlrev_b32 v{T+2}, 2, v{T}", wr=[T+2], rd=[T])
        p.valu(f"v_xor_b32 v{T+2}, v{T+2}, v{T+1}", wr=[T+2], rd=[T+2, T+1])
        p.valu(f"v_lshlrev_b32 v{T+2}, 4, v{T+2}", wr=[T+2], rd=[T+2])
        p.valu(f"v_lshl_add_u32 v{voWh}, v{T}, 13, v{T+2}", wr=[voWh], rd=[T, T+2])
        if not A_:
            p.valu(f"v_lshl_add_u32 v249, v{T}, 8, v{T+2}", wr=[249], rd=[T, T+2])
            p.valu(f"v_lshrrev_b32 v{T+2}, 3, v0", wr=[T+2], rd=[0])
            p.valu(f"v_mul_u32_u24 v{T+2}, 1280, v{T+2}", wr=[T+2], rd=[T+2])
            p.valu(f"v_and_b32 v{T+3}, 7, v0", wr=[T+3], rd=[0])
            for e in range(2):
                p.valu(f"v_add_u32 v{T+4}, {4*e}, v{T}", wr=[T+4], rd=[T])
                p.valu(f"v_xor_b32 v{T+4}, v{T+4}, v{T+3}", wr=[T+4], rd=[T+4, T+3])
                p.valu(f"v_lshl_add_u32 v{voXh+e}, v{T+4}, 4, v{T+2}", wr=[voXh+e], rd=[T+4, T+2])
        p.salu("s_lshl_b32 s28, s3, 17"); p.salu("s_lshl_b32 s33, s6, 8"); p.salu("s_add_u32 s28, s28, s33")
        if not A_:
            p.salu("s_add_u32 s28, s28, 4096")
            p.salu("s_mul_i32 s29, s7, 163840"); p.salu(f"s_mul_i32 s33, s3, {32*1280}"); p.salu("s_add_u32 s29, s29, s33")
        p.salu("s_lshl_b32 s30, s3, 12")
        HF = " nt" if opts.get("hnt", 0) else ""
        def tile_ops(j):
            ops = []
            sb = (j % 3) * HS
            def fw(i):
                p.salu(f"s_add_u32 m0, s30, {sb + wofs + i*1024}", swr=["m0"])
                p.salu(f"s_add_u32 s33, s28, {(64*j + 4*i) * 8192}")
                p.dma(voWh, "s[16:19]", "s33", tag=f"h{j}", flags=HF)
            def fx(i):
                p.salu(f"s_add_u32 m0, s30, {sb + 32768 + i*1024}", swr=["m0"])
                p.salu(f"s_add_u32 s33, s29, {j*128 + i*10240}")
                p.dma(voXh + (i & 1), "s[20:23]", "s33", tag=f"h{j}", flags=HF)
            if opts.get("nohld"): return ops
            if not A_:
                for i in range(4): ops.append(lambda i=i: fx(i))
            for i in range(4): ops.append(lambda i=i: fw(i))
            return ops
        for j in range(1 if opts.get("t0first", 1) else 3):
            for o in tile_ops(j): o()
        if opts.get("touch", 0):
            D = 252 if A_ else 252
            TT = T + 7
            p.salu("s_lshr_b32 s33, s2, 6"); p.salu("s_mul_i32 s33, s33, 112"); p.salu("s_lshl_b32 s51, s3, 5"); p.salu("s_add_u32 s33, s33, s51")
            p.salu("s_add_u32 s33, s33, 192"); p.salu("s_lshl_b32 s33, s33, 13"); p.salu("s_lshl_b32 s51, s6, 8"); p.salu("s_add_u32 s33, s33, s51")
            if not A_: p.salu("s_add_u32 s33, s33, 4096")
            p.valu(f"v_lshrrev_b32 v{TT}, 1, v0", wr=[TT], rd=[0])
            p.valu(f"v_lshlrev_b32 v{TT}, 13, v{TT}", wr=[TT], rd=[TT])
            p.valu(f"v_and_b32 v{TT+1}, 1, v0", wr=[TT+1], rd=[0])
            p.valu(f"v_lshl_add_u32 v{TT}, v{TT+1}, 7, v{TT}", wr=[TT], rd=[TT+1, TT])
            p.bload(D, 1, TT, "s[16:19]", "s33", flags=HF, tag="touch")
            if not A_:
                p.salu("s_lshr_b32 s33, s2, 3"); p.salu("s_and_b32 s33, s33, 7"); p.salu("s_lshl_b32 s33, s33, 4")
                p.salu("s_lshl_b32 s35, s3, 3"); p.salu("s_add_u32 s33, s33, s35"); p.salu("s_mul_i32 s33, s33, 1280")
                p.salu("s_mul_i32 s35, s7, 163840"); p.salu("s_add_u32 s33, s33, s35"); p.salu("s_add_u32 s33, s33, 384")
                p.salu("s_cmp_ge_u32 s3, 2"); p.salu("s_cselect_b32 s33, 0x8000000, s33")
                p.valu(f"v_lshrrev_b32 v{TT}, 3, v0", wr=[TT], rd=[0])
                p.valu(f"v_mul_u32_u24 v{TT}, 1280, v{TT}", wr=[TT], rd=[TT])
                p.valu(f"v_and_b32 v{TT+1}, 7, v0", wr=[TT+1], rd=[0])
                p.valu(f"v_lshl_add_u32 v{TT}, v{TT+1}, 7, v{TT}", wr=[TT], rd=[TT+1, TT])
                p.bload(D + 1, 1, TT, "s[20:23]", "s33", flags=HF, tag="touch")
        L = 0
        p.valu(f"v_lshrrev_b32 v{T+2}, 5, v{L}", wr=[T+2], rd=[L])
        p.valu(f"v_bfe_u32 v{T+4}, v{L}, 2, 2", wr=[T+4], rd=[L])
        p.valu(f"v_lshl_add_u32 v{T+5}, v{T+2}, 3, v{T+4}", wr=[T+5], rd=[T+2, T+4])
        p.valu(f"v_lshlrev_b32 v{T+5}, 8, v{T+5}", wr=[T+5], rd=[T+5])
        p.valu(f"v_bfe_u32 v{T+6}, v{L}, 4, 1", wr=[T+6], rd=[L])
        p.valu(f"v_lshl_add_u32 v{T+5}, v{T+6}, 5, v{T+5}", wr=[T+5], rd=[T+6, T+5])
        p.valu(f"v_and_b32 v{T+6}, 1, v{L}", wr=[T+6], rd=[L])
        p.valu(f"v_lshl_add_u32 v{T+5}, v{T+6}, 4, v{T+5}", wr=[T+5], rd=[T+6, T+5])
        p.valu(f"v_bfe_u32 v{T+6}, v{L}, 1, 1", wr=[T+6], rd=[L])
        p.valu(f"v_lshl_add_u32 v{T+5}, v{T+6}, 3, v{T+5}", wr=[T+5], rd=[T+6, T+5])
        p.valu(f"v_add_u32 v{T+5}, {wofs}, v{T+5}", wr=[T+5], rd=[T+5])
        for b in range(4):
            p.valu(f"v_xor_b32 v{T+6}, {b}, v{T+4}", wr=[T+6], rd=[T+4])
            p.valu(f"v_lshl_add_u32 v{aWh+b}, v{T+6}, 6, v{T+5}", wr=[aWh+b], rd=[T+6, T+5])
            for sl in (1, 2): p.valu(f"v_add_u32 v{aWh+4*sl+b}, {sl*HS}, v{aWh+b}", wr=[aWh+4*sl+b], rd=[aWh+b])
        p.valu(f"v_and_b32 v{T+4}, 31, v{L}", wr=[T+4], rd=[L])
        p.valu(f"v_bfe_u32 v{T+5}, v{L}, 1, 3", wr=[T+5], rd=[L])
        p.valu(f"v_xor_b32 v{T+5}, v{T+5}, v{T+2}", wr=[T+5], rd=[T+5, T+2])
        p.valu(f"v_lshlrev_b32 v{T+5}, 4, v{T+5}", wr=[T+5], rd=[T+5])
        p.valu(f"v_lshl_add_u32 v{T+5}, v{T+4}, 7, v{T+5}", wr=[T+5], rd=[T+4, T+5])
        p.salu("s_add_u32 s33, s30, 32768")
        p.valu(f"v_add_u32 v{T+5}, s33, v{T+5}", wr=[T+5], rd=[T+5])
        for ks in range(4):
            p.valu(f"v_xor_b32 v{aXh+ks}, {ks*32}, v{T+5}", wr=[aXh+ks], rd=[T+5])
            for sl in (1, 2): p.valu(f"v_add_u32 v{aXh+4*sl+ks}, {sl*HS}, v{aXh+ks}", wr=[aXh+4*sl+ks], rd=[aXh+ks])
        if opts.get("t0first", 1):
            for j in (1, 2):
                for o in tile_ops(j): o()
        p.salu(f"s_mov_b32 s48, {hex(f2u(QSCALE))}")
        if not A_: kv_setup()
        for j in range(10):
            p.comment(f"head {team} step {j}")
            p.wait_tag(f"h{j}")
            p.barrier()
            if j == 0: st(1)
            sl = j % 3
            ops = tile_ops(j + 2) if 1 <= j <= 7 else []
            if not A_:
                if j == 8: ops = ops + kv_ops()
                if j == 9: ops = ops + kv_ops() + kv_ops()
            def wread(ks, blk):
                d = HW + (ks % 2) * 16 + blk * 4
                p.ds_read("ds_read_b64_tr_b16", d, 2, aWh + 4*sl + blk, off=ks*4096)
                p.ds_read("ds_read_b64_tr_b16", d + 2, 2, aWh + 4*sl + blk, off=ks*4096 + 1024)
            HB = opts.get("hb", 1)
            p.ds_read("ds_read_b128", HX, 4, aXh + 4*sl)
            for blk in range(4): wread(0, blk)
            n = len(ops); k = 0; cnt = 0
            def emit_ops(upto):
                nonlocal k
                tgt = -(-upto * n // 16)
                while k < min(n, tgt):
                    ops[k](); k += 1
            if HB and j > 0:
                for blk in range(4):
                    p.mfma32(HA + 16*blk, HW + 16 + blk*4, HX + 12)
                    cnt += 1; emit_ops(cnt)
            for ks in range(1, 4): p.ds_read("ds_read_b128", HX + 4*ks, 4, aXh + 4*sl + ks)
            for ks in range(4):
                if ks + 1 < 4:
                    if ks == 0: p.wait(lgkm=3)
                    for blk in range(4): wread(ks + 1, blk)
                    if ks > 0: p.wait(lgkm=8)
                else:
                    p.wait(lgkm=0)
                    if HB and j < 9: break
                for blk in range(4):
                    if j == 0 and ks == 0: p.mfma32(HA + 16*blk, HW + blk*4, HX, czero=True)
                    else: p.mfma32(HA + 16*blk, HW + (ks % 2)*16 + blk*4, HX + ks*4)
                    cnt += 1; emit_ops(cnt)
            while k < n: ops[k](); k += 1
        st(2)
        for blk in range(4):
            for u in range(2):
                base = HA + 16*blk + 8*u
                for i in range(8):
                    p.valu(f"v_mul_f32 v{base+i}, s48, v{base+i}", wr=[base+i], rd=[base+i])
                for i in range(4):
                    p.valu(f"v_cvt_pk_bf16_f32 v{DST+(blk*2+u)*4+i}, v{base+2*i}, v{base+2*i+1}", wr=[DST+(blk*2+u)*4+i], rd=[base+2*i, base+2*i+1])

    QA = 0; XR = 64; WF = 224; voW = 240; aW = 241; voK = 245; voV = 249; voX = 250; aXlo = 252; aWhi = 192; aXhi = 196
    T = 4
    p.salu("s_sub_u32 s3, s3, 4")
    QP = 128
    def kv_setup():
        srd(p, 8, 38, 0x8000000)
        srd(p, 12, 40, 0x8000000)
        srd(p, 24, 44, 0x2000000)
        T = 4
        for i in range(4):
            p.valu(f"v_add_u32 v{T+2}, {4*i}, v{T}", wr=[T+2], rd=[T])
            p.valu(f"v_xor_b32 v{T+2}, v{T+2}, v{T+1}", wr=[T+2], rd=[T+2, T+1])
            p.valu(f"v_lshlrev_b32 v{T+2}, 4, v{T+2}", wr=[T+2], rd=[T+2])
            p.valu(f"v_lshl_add_u32 v{voK+i}, v{T}, 8, v{T+2}", wr=[voK+i], rd=[T, T+2])
        p.salu("s_lshl_b32 s31, s7, 5"); p.salu("s_add_u32 s31, s31, s6"); p.salu("s_lshl_b32 s31, s31, 18"); p.salu("s_add_u32 s31, s31, s30")
        p.salu(f"s_add_u32 s32, s30, {KVRING}")
        p.salu("s_mov_b32 s34, 0")
    kvn = [0]
    def kv_ops(tag=None):
        ops = []
        tg = tag if tag else f"kv{kvn[0]}"
        kvn[0] += 1
        def k(i):
            if i == 0: p.salu("s_mov_b32 m0, s32", swr=["m0"])
            if not opts.get("nokv"): p.dma(voK + i, "s[8:11]", "s31", off=i * 1024, flags=NT, tag=tg)
        def v(i):
            if i == 0: p.salu("s_add_u32 m0, s32, 16384", swr=["m0"])
            if not opts.get("nokv"): p.dma(voV, "s[12:15]", "s31", off=i * 1024, flags=NT, tag=tg)
            if i == 3:
                p.salu("s_add_u32 s31, s31, 16384")
                p.salu("s_add_u32 s34, s34, 1")
                p.salu("s_cmp_eq_u32 s34, 16")
                p.salu(f"s_cselect_b32 s33, {hex(15 * 262144)}, 0")
                p.salu("s_add_u32 s31, s31, s33")
                p.salu("s_cmp_ge_u32 s34, 32")
                p.salu("s_cselect_b32 s31, 0x8000000, s31")
                p.salu("s_add_u32 s32, s32, 32768")
                p.salu(f"s_cmp_ge_u32 s32, {KVRING + 3*32768}")
                p.salu("s_cselect_b32 s33, 98304, 0")
                p.salu("s_sub_u32 s32, s32, s33")
        for i in range(4): ops.append(lambda i=i: k(i))
        for i in range(4): ops.append(lambda i=i: v(i))
        return ops
    def run(ops):
        for o in ops: o()
    def lane_addr(dst, base_s_text):
        p.valu(f"v_mbcnt_lo_u32_b32 v{dst}, -1, 0", wr=[dst])
        p.valu(f"v_mbcnt_hi_u32_b32 v{dst}, -1, v{dst}", wr=[dst], rd=[dst])
        p.valu(f"v_lshlrev_b32 v{dst}, 4, v{dst}", wr=[dst], rd=[dst])
        p.valu(f"v_add_u32 v{dst}, s33, v{dst}", wr=[dst], rd=[dst])
    def q2_write():
        aHW = WF
        p.salu("s_lshl_b32 s33, s3, 13")
        p.salu(f"s_add_u32 s33, s33, {QHAND}")
        lane_addr(aHW, None)
        for u in range(8): p.ds_write("ds_write_b128", aHW, QP + 4*u, 4, off=u * 1024)
        p.wait(lgkm=0)
    head("P", kv_ops, run)
    if opts.get("prio"): p.salu(f"s_setprio {opts.get('prio')}")
    p.wait_tag("kv0")
    st(3)
    cur[0] = 1
    ACC = 64
    stage = [[144 + 4*i for i in range(18)], [4*i for i in range(16)] + [216, 220]]
    voB = 224; vZ = 228; vP = 229; vOne = 231; vPo = 232
    def out_map():
        p.salu("s_and_b32 s4, s2, 7"); p.salu("s_lshr_b32 s5, s2, 3")
        p.salu("s_lshr_b32 s33, s4, 1"); p.salu("s_lshl_b32 s33, s33, 3"); p.salu("s_lshr_b32 s35, s5, 2"); p.salu("s_add_u32 s33, s33, s35")
        p.salu("s_and_b32 s4, s4, 1"); p.salu("s_lshl_b32 s4, s4, 2"); p.salu("s_and_b32 s5, s5, 3"); p.salu("s_add_u32 s5, s4, s5")
        p.salu("s_mov_b32 s4, s33")
    def frag_bases(kstep0_reg):
        p.salu("s_lshl_b32 s33, s4, 9"); p.salu(f"s_add_u32 s33, s33, {kstep0_reg}"); p.salu("s_lshl_b32 s33, s33, 10")
        for q in range(4): p.salu(f"s_add_u32 s{36+q}, s33, {q*131072}")
        p.salu("s_mul_i32 s33, s5, 640"); p.salu(f"s_add_u32 s33, s33, {kstep0_reg}"); p.salu("s_lshl_b32 s33, s33, 10")
        for nb in range(5): p.salu(f"s_add_u32 s{sAr[nb]}, s33, {WOT + nb*131072}")
    sAr = [40, 41, 42, 43, 46]
    LDF = " sc1"
    def sig(off_ops):
        p.salu("s_cmp_lg_u32 s3, 0")
        lb = f"{name}_ns{len(p.out)}"
        p.branch(f"s_cbranch_scc1 {lb}")
        for o in off_ops: p.salu(o)
        p.salu("s_mov_b64 exec, 1")
        p.raw(f"    buffer_atomic_add v{vOne}, v{vZ}, s[16:19], s33 offen sc1")
        p.salu("s_mov_b64 exec, -1")
        p.label(lb)
    def signal_w():
        srd(p, 16, 58, 256)
        p.valu(f"v_mov_b32 v{vZ}, 0", wr=[vZ]); p.valu(f"v_mov_b32 v{vOne}, 1", wr=[vOne])
        sig(["s_mov_b32 s33, 0"])
    def signal_and_setup():
        sig(["s_lshl_b32 s33, s7, 2", "s_add_u32 s33, s33, 64"])
        for r in range(80): p.valu(f"v_mov_b32 v{ACC+r}, 0", wr=[ACC+r])
    def poll_issue():
        p.salu("s_mov_b64 exec, 3")
        p.raw(f"    buffer_load_dword v{vP}, v{vPo}, s[16:19], 0 offen sc1")
        p.salu("s_mov_b64 exec, -1")
    def poll_check(dst):
        p.raw(f"    v_readlane_b32 s33, v{vP}, 0\n    v_readlane_b32 s35, v{vP}, 1\n    s_nop 3")
        p.salu("s_cmp_ge_u32 s33, 256"); p.salu("s_cselect_b32 s33, 1, 0")
        p.salu("s_cmp_ge_u32 s35, 16"); p.salu(f"s_cselect_b32 {dst}, s33, 0")
    def o1_issue(par):
        st_ = stage[par]
        for kk in range(2):
            for nb in range(5):
                p.bload(st_[kk*9 + nb], 4, voB, "s[24:27]", f"s{sAr[nb]}", off=kk*1024, flags=LDF)
            for q in range(4):
                p.bload(st_[kk*9 + 5 + q], 4, voB, "s[24:27]", f"s{36+q}", off=kk*1024, flags=LDF)
        for r in sAr + [36, 37, 38, 39]: p.salu(f"s_add_u32 s{r}, s{r}, 2048")
    def o1_compute(par):
        st_ = stage[par]
        p.out.append(Ins("s_nop 0", "nop", states=25))
        for kk in range(2):
            for nb in range(5):
                for q in range(4):
                    p.mfma16(ACC + (nb*4 + q)*4, st_[kk*9 + nb], st_[kk*9 + 5 + q])
    def ohand_store():
        p.comment("O handoff store")
        aO = WF; voO = WF + 1
        p.salu("s_lshl_b32 s33, s3, 13"); p.salu(f"s_add_u32 s33, s33, {OHAND}")
        lane_addr(aO, None)
        for u in range(8): p.ds_read("ds_read_b128", XR + 4*u, 4, aO, off=u * 1024)
        p.valu(f"v_mbcnt_lo_u32_b32 v{voO+1}, -1, 0", wr=[voO+1])
        p.valu(f"v_mbcnt_hi_u32_b32 v{voO+1}, -1, v{voO+1}", wr=[voO+1], rd=[voO+1])
        p.valu(f"v_bfe_u32 v{voO}, v{voO+1}, 4, 1", wr=[voO], rd=[voO+1])
        p.valu(f"v_lshlrev_b32 v{voO}, 17, v{voO}", wr=[voO], rd=[voO])
        p.valu(f"v_and_b32 v{voO+2}, 15, v{voO+1}", wr=[voO+2], rd=[voO+1])
        p.valu(f"v_lshl_add_u32 v{voO}, v{voO+2}, 4, v{voO}", wr=[voO], rd=[voO+2, voO])
        p.valu(f"v_lshrrev_b32 v{voO+2}, 5, v{voO+1}", wr=[voO+2], rd=[voO+1])
        p.valu(f"v_lshl_add_u32 v{voO}, v{voO+2}, 8, v{voO}", wr=[voO], rd=[voO+2, voO])
        p.salu("s_lshl_b32 s35, s7, 3"); p.salu("s_lshl_b32 s33, s3, 1"); p.salu("s_add_u32 s35, s35, s33")
        p.salu("s_lshl_b32 s35, s35, 7"); p.salu("s_lshl_b32 s33, s6, 2"); p.salu("s_add_u32 s35, s35, s33"); p.salu("s_lshl_b32 s35, s35, 10")
        for u in range(8):
            if not opts.get("nost"): p.bstore(XR + 4*u, 4, voO, "s[24:27]", "s35", off=(u >> 1) * 1024 + (u & 1) * 512, tag="ost", flags=STF)
    def wot_issue():
        srd(p, 16, 52, 4096 * 640 * 2)
        Tm = XR
        p.valu(f"v_mbcnt_lo_u32_b32 v{Tm+8}, -1, 0", wr=[Tm+8])
        p.valu(f"v_mbcnt_hi_u32_b32 v{Tm+8}, -1, v{Tm+8}", wr=[Tm+8], rd=[Tm+8])
        p.salu("s_mov_b32 s33, 0x1999999a")
        for i in range(5):
            p.valu(f"v_add_u32 v{Tm+5}, {64*i}, v{Tm+8}", wr=[Tm+5], rd=[Tm+8])
            p.valu(f"v_mul_hi_u32 v{Tm+6}, v{Tm+5}, s33", wr=[Tm+6], rd=[Tm+5])
            p.valu(f"v_mul_u32_u24 v{Tm+7}, 10, v{Tm+6}", wr=[Tm+7], rd=[Tm+6])
            p.valu(f"v_sub_u32 v{Tm+7}, v{Tm+5}, v{Tm+7}", wr=[Tm+7], rd=[Tm+5, Tm+7])
            p.valu(f"v_mul_u32_u24 v{Tm+6}, 1280, v{Tm+6}", wr=[Tm+6], rd=[Tm+6])
            p.valu(f"v_lshl_add_u32 v{Tm+i}, v{Tm+7}, 4, v{Tm+6}", wr=[Tm+i], rd=[Tm+7, Tm+6])
        p.salu("s_lshr_b32 s35, s2, 1"); p.salu(f"s_mul_i32 s35, s35, {32*1280}")
        p.salu("s_and_b32 s33, s2, 1"); p.salu("s_mul_i32 s33, s33, 640"); p.salu("s_add_u32 s35, s35, s33")
        p.salu("s_mul_i32 s33, s3, 160"); p.salu("s_add_u32 s35, s35, s33")
        p.salu("s_mul_i32 s51, s3, 5120"); p.salu(f"s_add_u32 s51, s51, {OHAND}")
        for k in range(5):
            p.salu(f"s_add_u32 m0, s51, {k*1024}", swr=["m0"])
            p.dma(Tm + k, "s[16:19]", "s35", tag="wot", flags=(" nt" if opts.get("wof", 0) else ""))
    def wot_store():
        Tm = XR
        p.wait_tag("wot")
        L = Tm + 8
        p.valu(f"v_lshrrev_b32 v{Tm}, 5, v{L}", wr=[Tm], rd=[L])
        p.valu(f"v_bfe_u32 v{Tm+1}, v{L}, 4, 1", wr=[Tm+1], rd=[L])
        p.valu(f"v_bfe_u32 v{Tm+2}, v{L}, 2, 2", wr=[Tm+2], rd=[L])
        p.valu(f"v_lshl_add_u32 v{Tm+2}, v{Tm+1}, 2, v{Tm+2}", wr=[Tm+2], rd=[Tm+1, Tm+2])
        p.valu(f"v_lshl_add_u32 v{Tm+2}, v{Tm}, 4, v{Tm+2}", wr=[Tm+2], rd=[Tm, Tm+2])
        p.valu(f"v_mul_u32_u24 v{Tm+2}, 160, v{Tm+2}", wr=[Tm+2], rd=[Tm+2])
        p.valu(f"v_and_b32 v{Tm+1}, 3, v{L}", wr=[Tm+1], rd=[L])
        p.valu(f"v_lshl_add_u32 v{Tm+2}, v{Tm+1}, 3, v{Tm+2}", wr=[Tm+2], rd=[Tm+1, Tm+2])
        p.valu(f"v_add_u32 v{Tm+2}, s51, v{Tm+2}", wr=[Tm+2], rd=[Tm+2])
        for nb in range(5):
            d = Tm + 16 + nb*4
            p.ds_read("ds_read_b64_tr_b16", d, 2, Tm + 2, off=nb*32)
            p.ds_read("ds_read_b64_tr_b16", d + 2, 2, Tm + 2, off=nb*32 + 1280)
        p.valu(f"v_lshlrev_b32 v{Tm+3}, 4, v{L}", wr=[Tm+3], rd=[L])
        p.salu("s_and_b32 s33, s2, 1"); p.salu("s_mul_i32 s33, s33, 20"); p.salu("s_mul_i32 s35, s3, 5"); p.salu("s_add_u32 s33, s33, s35")
        p.salu("s_lshl_b32 s33, s33, 7"); p.salu("s_lshr_b32 s35, s2, 1"); p.salu("s_add_u32 s33, s33, s35"); p.salu("s_lshl_b32 s33, s33, 10")
        p.salu(f"s_add_u32 s35, s33, {hex(WOT)}")
        for nb in range(5):
            p.salu(f"s_add_u32 s33, s35, {nb*131072}")
            p.bstore(Tm + 16 + nb*4, 4, Tm + 3, "s[24:27]", "s33", tag="wotst", flags=STF)
    for t in range(19):
        p.comment(f"P step t={t}")
        p.barrier()
        if t in (16, 17): st({16: 6, 17: 7}[t])
        groups = []
        WT = opts.get("wott", 13)
        if t == WT: wot_issue()
        if t == WT + 1: wot_store()
        if t == 16: signal_w()
        if t == 18: signal_and_setup()
        if t >= 1: groups.append(kv_ops())
        for g in groups: run(g)
        if t == 14: q2_write()
        p.wait_tag(f"kv{t+1}")
    st(4)
    st(4)
    p.salu("s_mov_b32 s47, 19")
    p.label(f"{name}_Ploop")
    p.barrier()
    p.reset_tracking()
    run(kv_ops("kvn"))
    p.raw("    s_waitcnt vmcnt(8)")
    p.salu("s_add_u32 s47, s47, 1")
    p.salu("s_cmp_lt_u32 s47, 30")
    p.branch(f"s_cbranch_scc1 {name}_Ploop")
    p.barrier()
    p.reset_tracking()
    p.raw(f"    ds_write_b32 v{vZ}, v{vZ} offset:4\n    ds_write_b32 v{vZ}, v{vZ} offset:8\n    ds_write_b32 v{vZ}, v{vZ} offset:12\n    s_waitcnt vmcnt(0) lgkmcnt(0)")
    p.barrier()
    st(5)
    p.salu("s_add_u32 s3, s3, 4")
    p.branch(f"s_branch {name}_Tail")

    p.label(f"{name}_A")
    p.out.append(Ins("s_nop 4", "nop", states=25))
    p.reset_tracking()
    O = 64; S0 = 128; S1 = 144; P0 = 160; P1 = 168; KF = 176; VF = 208; Q = 32; C = 16
    aK = 240; aV = 248; LS = 2; T = 4; aH = 14; voO = 15; aOH = 1
    def a_touch():
        TF = " nt"
        D = 200
        k0 = opts.get("touchk0", 4)
        nrow = (10 - k0) * 64
        q = nrow // 4
        srd(p, 16, 42, 640 * 4096 * 2); srd(p, 20, 36, 16 * 128 * 640 * 2)
        ninst = -(-2*q // 64)
        p.salu("s_lshr_b32 s33, s2, 6"); p.salu(f"s_mul_i32 s33, s33, {q}"); p.salu(f"s_add_u32 s33, s33, {k0*64}")
        p.salu("s_lshl_b32 s28, s3, 5"); p.salu("s_add_u32 s33, s33, s28"); p.salu("s_lshl_b32 s33, s33, 13")
        p.salu("s_lshl_b32 s28, s6, 8"); p.salu("s_add_u32 s33, s33, s28")
        p.valu(f"v_lshrrev_b32 v{T}, 1, v0", wr=[T], rd=[0])
        p.valu(f"v_lshlrev_b32 v{T}, 13, v{T}", wr=[T], rd=[T])
        p.valu(f"v_and_b32 v{T+1}, 1, v0", wr=[T+1], rd=[0])
        p.valu(f"v_lshl_add_u32 v{T}, v{T+1}, 7, v{T}", wr=[T], rd=[T+1, T])
        p.bload(D, 1, T, "s[16:19]", "s33", flags=TF)
        if ninst > 4:
            p.salu(f"s_add_u32 s33, s33, {128 << 13}")
            p.bload(D + 1, 1, T, "s[16:19]", "s33", flags=TF)
        p.salu("s_lshr_b32 s33, s2, 3"); p.salu("s_and_b32 s33, s33, 7"); p.salu("s_lshl_b32 s33, s33, 4")
        p.salu("s_lshl_b32 s28, s3, 3"); p.salu("s_add_u32 s33, s33, s28"); p.salu("s_mul_i32 s33, s33, 1280")
        p.salu("s_mul_i32 s28, s7, 163840"); p.salu("s_add_u32 s33, s33, s28"); p.salu(f"s_add_u32 s33, s33, {k0*128}")
        p.salu("s_cmp_ge_u32 s3, 2"); p.salu("s_cselect_b32 s33, 0x8000000, s33")
        p.valu(f"v_lshrrev_b32 v{T}, 3, v0", wr=[T], rd=[0])
        p.valu(f"v_mul_u32_u24 v{T}, 1280, v{T}", wr=[T], rd=[T])
        p.valu(f"v_and_b32 v{T+1}, 7, v0", wr=[T+1], rd=[0])
        p.valu(f"v_lshl_add_u32 v{T}, v{T+1}, 7, v{T}", wr=[T], rd=[T+1, T])
        p.bload(D + 2, 1, T, "s[20:23]", "s33", flags=TF)
        p.reset_tracking()
    srd(p, 24, 44, 128 * 128 * 1024)
    p.valu(f"v_and_b32 v{T+1}, 15, v0", wr=[T+1], rd=[0])
    p.valu(f"v_and_b32 v{T}, 31, v0", wr=[T], rd=[0])
    p.valu(f"v_lshrrev_b32 v{T+2}, 5, v0", wr=[T+2], rd=[0])
    p.valu(f"v_xor_b32 v{T+3}, v{T+2}, v{T+1}", wr=[T+3], rd=[T+2, T+1])
    p.valu(f"v_lshlrev_b32 v{T+3}, 4, v{T+3}", wr=[T+3], rd=[T+3])
    p.valu(f"v_lshl_add_u32 v{T+3}, v{T}, 8, v{T+3}", wr=[T+3], rd=[T, T+3])
    p.valu(f"v_add_u32 v{T+3}, {KVRING}, v{T+3}", wr=[T+3], rd=[T+3])
    for j in range(8):
        p.valu(f"v_xor_b32 v{aK+j}, {j*32}, v{T+3}", wr=[aK+j], rd=[T+3])
    p.valu(f"v_bfe_u32 v{T+4}, v0, 2, 2", wr=[T+4], rd=[0])
    p.valu(f"v_lshl_add_u32 v{T+5}, v{T+2}, 2, v{T+4}", wr=[T+5], rd=[T+2, T+4])
    p.valu(f"v_lshlrev_b32 v{T+5}, 8, v{T+5}", wr=[T+5], rd=[T+5])
    p.valu(f"v_bfe_u32 v{T+6}, v0, 4, 1", wr=[T+6], rd=[0])
    p.valu(f"v_lshl_add_u32 v{T+5}, v{T+6}, 5, v{T+5}", wr=[T+5], rd=[T+6, T+5])
    p.valu(f"v_and_b32 v{T+6}, 3, v0", wr=[T+6], rd=[0])
    p.valu(f"v_lshl_add_u32 v{T+5}, v{T+6}, 3, v{T+5}", wr=[T+5], rd=[T+6, T+5])
    p.valu(f"v_add_u32 v{T+5}, {KVRING + 16384}, v{T+5}", wr=[T+5], rd=[T+5])
    for b in range(4):
        p.valu(f"v_xor_b32 v{T+6}, {b}, v{T+4}", wr=[T+6], rd=[T+4])
        p.valu(f"v_lshl_add_u32 v{aV+b}, v{T+6}, 6, v{T+5}", wr=[aV+b], rd=[T+6, T+5])
    p.valu(f"v_bfe_u32 v{T+6}, v0, 4, 1", wr=[T+6], rd=[0])
    p.valu(f"v_lshlrev_b32 v{T+6}, 17, v{T+6}", wr=[T+6], rd=[T+6])
    p.valu(f"v_lshl_add_u32 v{T+6}, v{T+1}, 4, v{T+6}", wr=[T+6], rd=[T+1, T+6])
    p.valu(f"v_lshl_add_u32 v{voO}, v{T+2}, 8, v{T+6}", wr=[voO], rd=[T+2, T+6])
    p.salu("s_lshl_b32 s34, s7, 3"); p.salu("s_lshl_b32 s33, s3, 1"); p.salu("s_add_u32 s34, s34, s33")
    p.salu("s_lshl_b32 s34, s34, 7"); p.salu("s_lshl_b32 s33, s6, 2"); p.salu("s_add_u32 s34, s34, s33")
    p.salu("s_add_u32 s34, s34, 64"); p.salu("s_lshl_b32 s34, s34, 10")
    p.salu("s_lshl_b32 s33, s3, 13")
    p.valu(f"v_lshlrev_b32 v{aH}, 4, v0", wr=[aH], rd=[0])
    p.valu(f"v_add_u32 v{aH}, s33, v{aH}", wr=[aH], rd=[aH])
    p.valu(f"v_add_u32 v{aOH}, {OHAND}, v{aH}", wr=[aOH], rd=[aH])
    p.salu("s_mov_b32 s49, -65536"); p.salu("s_mov_b32 s50, 32768")
    p.salu("s_mov_b32 s35, 0")
    p.salu("s_mov_b32 s46, 0")
    head("A")
    st(1); st.cyc(5)
    B = [KF, VF]
    def sm_half(S, P, half):
        ops = []
        b0 = 8 * half
        def addcvt(k):
            ops.append(lambda k=k: p.valu(f"v_add_f32 v{LS}, v{LS}, v{S+k}", wr=[LS], rd=[LS, S+k]))
            ops.append(lambda k=k: p.valu(f"v_add_f32 v{LS+1}, v{LS+1}, v{S+k+1}", wr=[LS+1], rd=[LS+1, S+k+1]))
            ops.append(lambda k=k: p.valu(f"v_cvt_pk_bf16_f32 v{P+k//2}, v{S+k}, v{S+k+1}", wr=[P+k//2], rd=[S+k, S+k+1]))
        for i in range(b0, b0 + 8, 2):
            ops.append(lambda i=i: p.trans(f"v_exp_f32 v{S+i}, v{S+i}", wr=[S+i], rd=[S+i]))
            ops.append(lambda i=i: p.trans(f"v_exp_f32 v{S+i+1}, v{S+i+1}", wr=[S+i+1], rd=[S+i+1]))
            if i >= b0 + 2: addcvt(i - 2)
        addcvt(b0 + 6)
        return ops
    def vread(bank, t, n):
        ks2, blk = n >> 2, n & 3
        d = bank + 4 * n
        ks = 2 * t + ks2
        p.ds_read("ds_read_b64_tr_b16", d, 2, aV + blk, off=ks * 4096)
        p.ds_read("ds_read_b64_tr_b16", d + 2, 2, aV + blk, off=ks * 4096 + 2048)
    def spread(ops, slots, i):
        for _ in range(slots[i]):
            if ops: ops.pop(0)()
    def step(first, par):
        KB = B[par]; VB = B[1 - par]
        p.barrier()
        p.reset_tracking()
        if first:
            p.salu("s_cmp_eq_u32 s46, 0")
            p.branch(f"s_cbranch_scc1 {name}_noq")
            for j in range(8):
                p.ds_read("ds_read_b128", Q + 4*j, 4, aH, off=QHAND + j * 1024)
            p.wait(lgkm=0)
            p.label(f"{name}_noq")
        for j in range(8):
            p.ds_read("ds_read_b128", KB + 4*j, 4, aK + j)
        if first:
            p.valu(f"v_mov_b32 v{LS}, 0", wr=[LS]); p.valu(f"v_mov_b32 v{LS+1}, 0", wr=[LS+1])
            sm = []
        else:
            sm = sm_half(S1, P1, 1)
            for _ in range(12): sm.pop(0)()
        for j in range(8):
            if j == 0: p.wait(lgkm=4)
            if j == 4: p.wait(lgkm=4)
            if j == 0:
                if first: p.mfma32(S0, KB, Q, czero=True)
                else: p.mfma32(S0, KB, Q, C=C)
            else:
                p.mfma32(S0, KB + 4*j, Q + 4*j)
            p.ds_read("ds_read_b128", KB + 4*j, 4, aK + j, off=8192)
            spread(sm, [2, 2, 2, 2, 0, 0, 0, 0], j)
        while sm: sm.pop(0)()
        if first:
            p.valu(f"v_max3_f32 v{T}, v{S0}, v{S0+1}, v{S0+2}", wr=[T], rd=[S0, S0+1, S0+2])
            for i in range(3, 15, 2):
                p.valu(f"v_max3_f32 v{T}, v{T}, v{S0+i}, v{S0+i+1}", wr=[T], rd=[T, S0+i, S0+i+1])
            p.valu(f"v_max_f32 v{T}, v{T}, v{S0+15}", wr=[T], rd=[T, S0+15])
            p.valu(f"v_mov_b32 v{T+1}, v{T}", wr=[T+1], rd=[T])
            p.perm(f"v_permlane32_swap_b32 v{T}, v{T+1}", [T, T+1])
            p.valu(f"v_max_f32 v{T}, v{T}, v{T+1}", wr=[T], rd=[T, T+1])
            for i in range(16):
                p.valu(f"v_sub_f32 v{C+i}, 0, v{T}", wr=[C+i], rd=[T])
            for i in range(16):
                p.valu(f"v_sub_f32 v{S0+i}, v{S0+i}, v{T}", wr=[S0+i], rd=[S0+i, T])
        sm = sm_half(S0, P0, 0)
        for n in range(8):
            if n in (2, 5): p.wait(lgkm=(4 if n == 2 else 6))
            if not first:
                p.mfma32(O + 16*(n & 3), VB + 4*n, P1 + 4*(n >> 2))
            vread(VB, 0, n)
            spread(sm, [0, 0, 4, 4, 3, 3, 3, 3], n)
        while sm: sm.pop(0)()
        sm = sm_half(S0, P0, 1)
        for j in range(8):
            if j in (0, 3, 6): p.wait(lgkm=6)
            if j == 0: p.mfma32(S1, KB, Q, C=C)
            else: p.mfma32(S1, KB + 4*j, Q + 4*j)
            vread(KB, 1, j)
            spread(sm, [3, 3, 3, 3, 2, 2, 2, 2], j)
        while sm: sm.pop(0)()
        p.salu("s_add_u32 s35, s35, 1")
        p.salu("s_cmp_eq_u32 s35, 3")
        p.salu("s_cselect_b32 s33, s49, s50")
        p.salu("s_cselect_b32 s35, 0, s35")
        sm = sm_half(S1, P1, 0)
        adv = [(lambda r=r: p.valu(f"v_add_u32 v{r}, s33, v{r}", wr=[r], rd=[r])) for r in list(range(aK, aK+8)) + list(range(aV, aV+4))]
        for n in range(8):
            if first and n < 4: p.mfma32(O + 16*(n & 3), VB + 4*n, P0 + 4*(n >> 2), czero=True)
            else: p.mfma32(O + 16*(n & 3), VB + 4*n, P0 + 4*(n >> 2))
            if n < 2:
                spread(adv, [6, 6], n)
            spread(sm, [0, 0, 4, 4, 3, 3, 3, 3], n)
        while sm: sm.pop(0)()
        p.wait(lgkm=0)
    p.label(f"{name}_Apair")
    step(True, 0)
    p.salu("s_mov_b32 s47, 8")
    p.label(f"{name}_Aloop")
    step(False, 1)
    p.salu("s_cmp_lt_u32 s47, 8")
    p.branch(f"s_cbranch_scc1 {name}_Anw")
    p.raw("    s_waitcnt vmcnt(0)")
    p.label(f"{name}_Anw")
    p.salu("s_sub_u32 s47, s47, 1")
    p.salu("s_cmp_eq_u32 s47, 0")
    p.branch(f"s_cbranch_scc1 {name}_Aepi")
    step(False, 0)
    p.branch(f"s_branch {name}_Aloop")
    p.label(f"{name}_Aepi")
    p.out.append(Ins("s_nop 0", "nop", states=1))
    sm = sm_half(S1, P1, 1)
    while sm: sm.pop(0)()
    for n in range(8):
        p.mfma32(O + 16*(n & 3), B[1] + 4*n, P1 + 4*(n >> 2))
    p.nop(12)
    p.valu(f"v_add_f32 v{LS}, v{LS}, v{LS+1}", wr=[LS], rd=[LS, LS+1])
    p.valu(f"v_mov_b32 v{T}, v{LS}", wr=[T], rd=[LS])
    p.perm(f"v_permlane32_swap_b32 v{LS}, v{T}", [LS, T])
    p.valu(f"v_add_f32 v{LS}, v{LS}, v{T}", wr=[LS], rd=[LS, T])
    p.salu(f"s_mov_b32 s33, {hex(f2u(2.0**30))}")
    p.valu(f"v_cmp_nlt_f32 vcc, v{LS}, s33", rd=[LS], swr=["vcc"]) if False else p.raw(f"    v_cmp_nlt_f32_e64 vcc, v{LS}, s33")
    p.nop(5)
    p.branch(f"s_cbranch_vccnz {name}_Aslow")
    p.label(f"{name}_Anorm")
    p.out.append(Ins("s_nop 0", "nop", states=25))
    p.reset_tracking()
    p.trans(f"v_rcp_f32 v{T}, v{LS}", wr=[T], rd=[LS])
    for blk in range(4):
        for u in range(2):
            for i in range(8):
                r = O + 16*blk + 8*u + i
                p.valu(f"v_mul_f32 v{r}, v{r}, v{T}", wr=[r], rd=[r, T])
            d = S0 + (blk * 2 + u) * 4
            for i in range(4):
                r = O + 16*blk + 8*u + 2*i
                p.valu(f"v_cvt_pk_bf16_f32 v{d+i}, v{r}, v{r+1}", wr=[d+i], rd=[r, r+1])
    p.salu("s_cmp_eq_u32 s46, 1")
    p.branch(f"s_cbranch_scc1 {name}_Afin")
    p.salu(f"s_sub_u32 s33, s34, {64*1024}")
    for u in range(8):
        p.bstore(S0 + 4*u, 4, voO, "s[24:27]", "s33", off=(u >> 1) * 1024 + (u & 1) * 512, tag="ost", flags=STF)
    p.salu("s_mov_b32 s46, 1")
    p.nop(2)
    st(2); st.cyc(6)
    p.branch(f"s_branch {name}_Apair")
    p.label(f"{name}_Afin")
    st(3); st.cyc(7)
    for u in range(8):
        p.bstore(S0 + 4*u, 4, voO, "s[24:27]", "s34", off=(u >> 1) * 1024 + (u & 1) * 512, tag="ost", flags=STF)
    p.raw("    s_waitcnt vmcnt(0)")
    st(4)
    srd(p, 16, 58, 256)
    p.valu("v_mov_b32 v228, 0", wr=[228]); p.valu("v_mov_b32 v231, 1", wr=[231])
    p.salu("s_mov_b64 exec, 1")
    p.raw("    ds_add_u32 v228, v231 offset:12\n    s_waitcnt lgkmcnt(0)")
    p.salu("s_mov_b64 exec, -1")
    p.salu("s_cmp_lg_u32 s3, 0")
    p.branch(f"s_cbranch_scc1 {name}_nosigB")
    p.label(f"{name}_spB")
    p.raw("    ds_read_b32 v229, v228 offset:12\n    s_waitcnt lgkmcnt(0)\n    v_readfirstlane_b32 s33, v229\n    s_nop 3")
    p.salu("s_cmp_ge_u32 s33, 4")
    p.branch(f"s_cbranch_scc1 {name}_spBd")
    p.raw("    s_sleep 1")
    p.branch(f"s_branch {name}_spB")
    p.label(f"{name}_spBd")
    p.salu("s_mov_b64 exec, 1")
    p.salu("s_lshl_b32 s33, s7, 2"); p.salu("s_add_u32 s33, s33, 128")
    p.raw("    buffer_atomic_add v231, v228, s[16:19], s33 offen sc1")
    p.salu("s_mov_b64 exec, -1")
    p.label(f"{name}_nosigB")
    for r in range(80): p.valu(f"v_mov_b32 v{64+r}, 0", wr=[64+r])
    p.label(f"{name}_Tail")
    p.out.append(Ins("s_nop 0", "nop", states=25))
    p.reset_tracking()
    ACC = 64; STG = 144; voB = 2; vZ = 6; vP = 8
    srd(p, 24, 44, 0x2000000)
    srd(p, 20, 56, 2048 * 640 * 2)
    out_map()
    p.valu(f"v_mbcnt_lo_u32_b32 v{voB}, -1, 0", wr=[voB])
    p.valu(f"v_mbcnt_hi_u32_b32 v{voB}, -1, v{voB}", wr=[voB], rd=[voB])
    p.valu(f"v_mov_b32 v0, v{voB}", wr=[0], rd=[voB])
    p.valu(f"v_lshlrev_b32 v{voB}, 4, v{voB}", wr=[voB], rd=[voB])
    p.valu(f"v_add_u32 v{voB+1}, 4096, v{voB}", wr=[voB+1], rd=[voB])
    p.valu(f"v_mov_b32 v{vZ}, 0", wr=[vZ])
    ZF = vZ + 1
    def set_zf(off):
        p.salu("s_lshr_b32 s51, s4, 1"); p.salu("s_lshl_b32 s51, s51, 2"); p.salu(f"s_add_u32 s51, s51, {off}")
        p.valu(f"v_cmp_eq_u32 vcc, 0, v0", rd=[0], swr=["vcc"])
        p.valu(f"v_mov_b32 v{ZF}, s51", wr=[ZF])
        p.nop(2)
        p.valu(f"v_cndmask_b32 v{ZF}, v{ZF}, v{vZ}, vcc", wr=[ZF], rd=[ZF, vZ])
    gid = [0]
    def gate(goff, ldsoff, poller=0):
        g = f"{name}_g{gid[0]}"; gid[0] += 1
        p.salu(f"s_cmp_lg_u32 s3, {poller}")
        p.branch(f"s_cbranch_scc1 {g}o")
        set_zf(goff)
        p.salu("s_mov_b32 s63, 0")
        p.label(f"{g}p")
        p.salu("s_mov_b64 exec, 3")
        p.raw(f"    buffer_load_dword v{vP}, v{ZF}, s[16:19], 0 offen sc1")
        p.salu("s_mov_b64 exec, -1")
        p.raw("    s_waitcnt vmcnt(0)")
        p.raw(f"    v_readlane_b32 s33, v{vP}, 0\n    v_readlane_b32 s35, v{vP}, 1\n    s_nop 3")
        p.salu("s_cmp_ge_u32 s33, 256"); p.salu("s_cselect_b32 s61, 1, 0")
        p.salu("s_cmp_ge_u32 s35, 16"); p.salu("s_cselect_b32 s61, s61, 0")
        p.salu("s_cmp_lg_u32 s61, 0")
        p.branch(f"s_cbranch_scc1 {g}s")
        p.raw(f"    s_sleep {opts.get('tsleep', 16)}")
        p.salu("s_add_u32 s63, s63, 1"); p.salu("s_cmp_lt_u32 s63, 0x80000")
        p.branch(f"s_cbranch_scc1 {g}p")
        p.label(f"{g}s")
        p.raw(f"    v_mov_b32 v{vP}, 1\n    ds_write_b32 v{vZ}, v{vP} offset:{ldsoff}\n    s_waitcnt lgkmcnt(0)")
        p.branch(f"s_branch {g}d")
        p.label(f"{g}o")
        p.salu("s_mov_b32 s63, 0")
        p.label(f"{g}oo")
        p.raw(f"    ds_read_b32 v{vP}, v{vZ} offset:{ldsoff}\n    s_waitcnt lgkmcnt(0)\n    v_readfirstlane_b32 s61, v{vP}\n    s_nop 3")
        p.salu("s_cmp_lg_u32 s61, 0")
        p.branch(f"s_cbranch_scc1 {g}d")
        p.raw("    s_sleep 2")
        p.salu("s_add_u32 s63, s63, 1"); p.salu("s_cmp_lt_u32 s63, 0x800000")
        p.branch(f"s_cbranch_scc1 {g}oo")
        p.label(f"{g}d")
    def seq(n1, n2, base1_ops, base2_ops, need_r1):
        N = n1 + n2
        p.reset_tracking()
        if need_r1: gate(64, 8, 4)
        def bases(ops):
            for o in ops: p.salu(o)
            frag_bases("s62")
        def vo(li): return voB + (li >> 2)
        def issueA(i):
            li = i if i < n1 else i - n1
            base = STG + (i % 3) * 36
            for nb in range(5):
                p.bload(base + 4*nb, 4, vo(li), "s[24:27]", f"s{sAr[nb]}", off=(li & 3) * 1024, tag=f"a{i}", flags=" sc1")
        def issueB(i):
            li = i if i < n1 else i - n1
            base = STG + (i % 3) * 36
            for q in range(4):
                p.bload(base + 20 + 4*q, 4, vo(li), "s[24:27]", f"s{36+q}", off=(li & 3) * 1024, tag=f"b{i}", flags=" sc1")
        def issue(i):
            if i == n1:
                vmsave = list(p.vm)
                gate(128, 4, 4)
                p.vm = vmsave
                bases(base2_ops)
            issueA(i); issueB(i)
        if n1: bases(base1_ops)
        issue(0); issue(1)
        for i in range(N):
            base = STG + (i % 3) * 36
            if i + 2 < N: issue(i + 2)
            for nb in range(5):
                for q in range(4):
                    p.mfma16(ACC + (nb*4 + q)*4, base + 4*nb, base + 20 + 4*q)
    p.valu(f"v_add_u32 v{voB+2}, 8192, v{voB}", wr=[voB+2], rd=[voB])
    p.valu(f"v_add_u32 v{voB+3}, 12288, v{voB}", wr=[voB+3], rd=[voB])
    st(8)
    np1 = opts.get("np1", 10); na1 = 16 - np1
    p.salu("s_cmp_ge_u32 s3, 4")
    p.branch(f"s_cbranch_scc1 {name}_TVP")
    seq(na1, 8, [f"s_mul_i32 s62, s3, {na1}", f"s_add_u32 s62, s62, {4*np1}"], ["s_lshl_b32 s62, s3, 3", "s_add_u32 s62, s62, 64"], True)
    p.branch(f"s_branch {name}_Tred")
    p.label(f"{name}_TVP")
    seq(np1, 8, ["s_sub_u32 s62, s3, 4", f"s_mul_i32 s62, s62, {np1}"], ["s_lshl_b32 s62, s3, 3", "s_add_u32 s62, s62, 64"], True)
    p.label(f"{name}_Tred")
    p.out.append(Ins("s_nop 7", "nop", states=25))
    p.reset_tracking()
    p.barrier()
    st(9)
    T = 8
    p.salu("s_mul_i32 s33, s3, 20480")
    p.valu(f"v_add_u32 v{T}, s33, v{voB}", wr=[T], rd=[voB])
    for t in range(20):
        p.ds_write("ds_write_b128", T, ACC + 4*t, 4, off=t*1024)
    p.wait(lgkm=0)
    p.barrier()
    p.valu(f"v_and_b32 v{T+1}, 15, v0", wr=[T+1], rd=[0])
    p.valu(f"v_mul_u32_u24 v{T+1}, 1280, v{T+1}", wr=[T+1], rd=[T+1])
    p.valu(f"v_lshrrev_b32 v{T+2}, 4, v0", wr=[T+2], rd=[0])
    p.valu(f"v_lshl_add_u32 v{T+1}, v{T+2}, 3, v{T+1}", wr=[T+1], rd=[T+2, T+1])
    p.salu(f"s_mul_i32 s34, s4, {64*1280}")
    p.salu("s_mul_i32 s33, s5, 160"); p.salu("s_add_u32 s34, s34, s33")
    p.salu("s_lshl_b32 s35, s3, 10")
    p.valu(f"v_add_u32 v{T+3}, s35, v{voB}", wr=[T+3], rd=[voB])
    for rnd in range(3):
        if rnd == 2:
            p.salu("s_cmp_ge_u32 s3, 4")
            p.branch(f"s_cbranch_scc1 {name}_fin")
        p.salu(f"s_add_u32 s40, s3, {8*rnd}")
        p.salu("s_lshr_b32 s41, s40, 2"); p.salu("s_and_b32 s42, s40, 3")
        p.salu("s_lshl_b32 s41, s41, 5")
        p.salu(f"s_mul_i32 s42, s42, {16*1280}")
        p.salu("s_add_u32 s41, s41, s42"); p.salu("s_add_u32 s41, s41, s34")
        for w in range(8):
            off = w * 20480 + rnd * 8192
            if off < 65536:
                p.ds_read("ds_read_b128", ACC + 4*w, 4, T + 3, off=off)
            else:
                p.valu(f"v_add_u32 v{T+4}, {off}, v{T+3}", wr=[T+4], rd=[T+3])
                p.ds_read("ds_read_b128", ACC + 4*w, 4, T + 4)
        for w in range(1, 8):
            for r in range(4):
                p.valu(f"v_add_f32 v{ACC+r}, v{ACC+r}, v{ACC+4*w+r}", wr=[ACC+r], rd=[ACC+r, ACC+4*w+r])
        p.valu(f"v_cvt_pk_bf16_f32 v{ACC+40}, v{ACC}, v{ACC+1}", wr=[ACC+40], rd=[ACC, ACC+1])
        p.valu(f"v_cvt_pk_bf16_f32 v{ACC+41}, v{ACC+2}, v{ACC+3}", wr=[ACC+41], rd=[ACC+2, ACC+3])
        p.bstore(ACC + 40, 2, T + 1, "s[20:23]", "s41", flags=["", " nt", " sc1", " sc0 sc1"][opts.get("outf", 0)])
        p.nop(2)
    p.label(f"{name}_fin")
    if st.on:
        p.raw("    s_waitcnt vmcnt(0)")
        st(10); st.dump("s3")
    p.branch(f"s_branch {name}_done")
    p.label(f"{name}_Aslow")
    p.out.append(Ins("s_nop 0", "nop", states=25))
    p.reset_tracking()
    O = 64; S0 = 128; P0 = 160; KF = 176; VF = 208; Q = 32; LS = 2; T = 4
    M = 5; AL = 6; vK = 7; vV = 8; TM = 9; TN = 10
    srd(p, 8, 38, 0x8000000); srd(p, 12, 40, 0x8000000)
    p.salu("s_lshl_b32 s36, s7, 5"); p.salu("s_add_u32 s36, s36, s6"); p.salu("s_lshl_b32 s33, s46, 4"); p.salu("s_add_u32 s36, s36, s33"); p.salu("s_lshl_b32 s36, s36, 18")
    p.valu(f"v_mbcnt_lo_u32_b32 v{TM}, -1, 0", wr=[TM])
    p.valu(f"v_mbcnt_hi_u32_b32 v{TM}, -1, v{TM}", wr=[TM], rd=[TM])
    p.valu(f"v_and_b32 v{TN}, 31, v{TM}", wr=[TN], rd=[TM])
    p.valu(f"v_lshrrev_b32 v{TM}, 5, v{TM}", wr=[TM], rd=[TM])
    p.valu(f"v_lshlrev_b32 v{vK}, 8, v{TN}", wr=[vK], rd=[TN])
    p.valu(f"v_lshl_add_u32 v{vK}, v{TM}, 4, v{vK}", wr=[vK], rd=[TM, vK])
    p.valu(f"v_lshlrev_b32 v{vV}, 1, v{TN}", wr=[vV], rd=[TN])
    p.valu(f"v_lshl_add_u32 v{vV}, v{TM}, 10, v{vV}", wr=[vV], rd=[TM, vV])
    for r in range(64): p.valu(f"v_mov_b32 v{O+r}, 0", wr=[O+r])
    p.valu(f"v_mov_b32 v{LS}, 0", wr=[LS])
    p.valu(f"v_mov_b32 v{M}, 0xff7fffff", wr=[M])
    p.salu("s_mov_b32 s37, 0")
    p.label(f"{name}_Asl")
    p.reset_tracking()
    for j in range(8): p.bload(KF + 4*j, 4, vK, "s[8:11]", "s36", off=j*32)
    TV = 144
    for ks2 in range(2):
        for bp in range(2):
            for bb in range(2):
                blk = 2*bp + bb
                for i in range(8):
                    key = 16*ks2 + (i if i < 4 else 8 + i - 4)
                    p.salu(f"s_add_u32 s33, s36, {key*256 + blk*64}")
                    p.raw(f"    buffer_load_ushort v{TV + 8*bb + i}, v{vV}, s[12:15], s33 offen")
            p.raw("    s_waitcnt vmcnt(0)")
            for bb in range(2):
                d = VF + (ks2*4 + 2*bp + bb)*4
                for r in range(4):
                    p.valu(f"v_lshl_or_b32 v{d+r}, v{TV+8*bb+2*r+1}, 16, v{TV+8*bb+2*r}", wr=[d+r], rd=[TV+8*bb+2*r+1, TV+8*bb+2*r])
    p.raw("    s_waitcnt vmcnt(0)")
    p.reset_tracking()
    for j in range(8):
        if j == 0: p.mfma32(S0, KF, Q, czero=True)
        else: p.mfma32(S0, KF + 4*j, Q + 4*j)
    p.valu(f"v_max3_f32 v{TM}, v{S0}, v{S0+1}, v{S0+2}", wr=[TM], rd=[S0, S0+1, S0+2])
    for i in range(3, 15, 2): p.valu(f"v_max3_f32 v{TM}, v{TM}, v{S0+i}, v{S0+i+1}", wr=[TM], rd=[TM, S0+i, S0+i+1])
    p.valu(f"v_max_f32 v{TM}, v{TM}, v{S0+15}", wr=[TM], rd=[TM, S0+15])
    p.valu(f"v_mov_b32 v{TN}, v{TM}", wr=[TN], rd=[TM])
    p.perm(f"v_permlane32_swap_b32 v{TM}, v{TN}", [TM, TN])
    p.valu(f"v_max3_f32 v{TM}, v{TM}, v{TN}, v{M}", wr=[TM], rd=[TM, TN, M])
    p.valu(f"v_sub_f32 v{AL}, v{M}, v{TM}", wr=[AL], rd=[M, TM])
    p.trans(f"v_exp_f32 v{AL}, v{AL}", wr=[AL], rd=[AL])
    p.valu(f"v_mov_b32 v{M}, v{TM}", wr=[M], rd=[TM])
    p.valu(f"v_mul_f32 v{LS}, v{LS}, v{AL}", wr=[LS], rd=[LS, AL])
    for r in range(64): p.valu(f"v_mul_f32 v{O+r}, v{O+r}, v{AL}", wr=[O+r], rd=[O+r, AL])
    for i in range(16):
        p.valu(f"v_sub_f32 v{S0+i}, v{S0+i}, v{M}", wr=[S0+i], rd=[S0+i, M])
        p.trans(f"v_exp_f32 v{S0+i}, v{S0+i}", wr=[S0+i], rd=[S0+i])
    for i in range(16): p.valu(f"v_add_f32 v{LS}, v{LS}, v{S0+i}", wr=[LS], rd=[LS, S0+i])
    for i in range(8): p.valu(f"v_cvt_pk_bf16_f32 v{P0+i}, v{S0+2*i}, v{S0+2*i+1}", wr=[P0+i], rd=[S0+2*i, S0+2*i+1])
    for n in range(8): p.mfma32(O + 16*(n & 3), VF + 4*n, P0 + 4*(n >> 2))
    p.nop(16)
    p.salu("s_add_u32 s36, s36, 8192")
    p.salu("s_add_u32 s37, s37, 1")
    p.salu("s_cmp_lt_u32 s37, 32")
    p.branch(f"s_cbranch_scc1 {name}_Asl")
    p.valu(f"v_mov_b32 v{T}, v{LS}", wr=[T], rd=[LS])
    p.perm(f"v_permlane32_swap_b32 v{LS}, v{T}", [LS, T])
    p.valu(f"v_add_f32 v{LS}, v{LS}, v{T}", wr=[LS], rd=[LS, T])
    p.nop(2)
    p.branch(f"s_branch {name}_Anorm")
    p.label(f"{name}_done")
    p.raw("    s_endpgm")
    return p, name

def gen_k2(opts):
    p = Prog()
    name = opts.get("name", "k2_kernel")
    K2F = ["", " nt", " sc1", " sc0 sc1", " sc0"][opts.get("k2nt", 0)]
    st = Stamps(p, opts, key="wgt2")
    p.raw(f".globl {name}\n.p2align 8\n.type {name},@function\n{name}:")
    p.salu("s_cmp_ge_u32 s2, 256")
    p.branch(f"s_cbranch_scc1 {name}_done")
    p.salu("s_load_dwordx2 s[38:39], s[0:1], 40")
    p.salu("s_load_dwordx2 s[44:45], s[0:1], 56")
    p.valu("v_lshrrev_b32 v1, 6, v0", wr=[1], rd=[0])
    p.valu("v_and_b32 v0, 63, v0", wr=[0], rd=[0])
    p.rfl("s3", 1)
    p.salu("s_and_b32 s4, s2, 7")
    p.salu("s_lshr_b32 s5, s2, 3")
    p.salu("s_lshr_b32 s6, s4, 1"); p.salu("s_lshl_b32 s6, s6, 3"); p.salu("s_lshr_b32 s7, s5, 2"); p.salu("s_add_u32 s6, s6, s7")
    p.salu("s_and_b32 s7, s4, 1"); p.salu("s_lshl_b32 s7, s7, 2"); p.salu("s_and_b32 s5, s5, 3"); p.salu("s_add_u32 s7, s7, s5")
    ACC = 64; ST = 144; voB = 2; T = 4
    p.valu(f"v_lshlrev_b32 v{voB}, 4, v0", wr=[voB], rd=[0])
    p.salu("s_lshl_b32 s29, s6, 9"); p.salu("s_lshl_b32 s33, s3, 4"); p.salu("s_add_u32 s29, s29, s33"); p.salu("s_lshl_b32 s29, s29, 10")
    for q in range(4): p.salu(f"s_add_u32 s{48+q}, s29, {q*131072}")
    p.salu("s_mul_i32 s29, s7, 640"); p.salu("s_add_u32 s29, s29, s33"); p.salu("s_lshl_b32 s29, s29, 10")
    for nb in range(5): p.salu(f"s_add_u32 s{52+nb}, s29, {WOT + nb*131072}")
    p.raw("    s_waitcnt lgkmcnt(0)")
    if st.on:
        for k in range(16): p.raw(f"    s_mov_b32 s{70+k}, 0")
    st(0)
    srd(p, 24, 44, 0x2000000)
    srd(p, 12, 38, 2048 * 640 * 2)
    def issue(i):
        base = ST + (i % 3) * 36
        for nb in range(5):
            p.bload(base + 4*nb, 4, voB + (i >> 2), "s[24:27]", f"s{52+nb}", off=(i & 3) * 1024, tag=f"a{i}", flags=K2F)
        for q in range(4):
            p.bload(base + 20 + 4*q, 4, voB + (i >> 2), "s[24:27]", f"s{48+q}", off=(i & 3) * 1024, tag=f"b{i}", flags=K2F)
    for j in range(1, 4): p.valu(f"v_add_u32 v{voB+j}, {4096*j}, v{voB}", wr=[voB+j], rd=[voB])
    issue(0); issue(1)
    for i in range(16):
        p.comment(f"kstep {i}")
        base = ST + (i % 3) * 36
        if i + 2 < 16: issue(i + 2)
        if i == 1: st(1)
        if i == 8: st(2)
        for nb in range(5):
            for q in range(4):
                if i == 0: p.mfma16(ACC + (nb*4 + q)*4, base + 4*nb, base + 20 + 4*q, czero=True)
                else: p.mfma16(ACC + (nb*4 + q)*4, base + 4*nb, base + 20 + 4*q)
    st(3)
    T = 8
    p.salu("s_mul_i32 s33, s3, 20480")
    p.valu(f"v_add_u32 v{T}, s33, v{voB}", wr=[T], rd=[voB])
    for t in range(20):
        p.ds_write("ds_write_b128", T, ACC + 4*t, 4, off=t*1024)
    p.wait(lgkm=0)
    p.barrier()
    p.valu(f"v_and_b32 v{T+1}, 15, v0", wr=[T+1], rd=[0])
    p.valu(f"v_mul_u32_u24 v{T+1}, 1280, v{T+1}", wr=[T+1], rd=[T+1])
    p.valu(f"v_lshrrev_b32 v{T+2}, 4, v0", wr=[T+2], rd=[0])
    p.valu(f"v_lshl_add_u32 v{T+1}, v{T+2}, 3, v{T+1}", wr=[T+1], rd=[T+2, T+1])
    p.salu(f"s_mul_i32 s34, s6, {64*1280}")
    p.salu("s_mul_i32 s33, s7, 160"); p.salu("s_add_u32 s34, s34, s33")
    p.salu("s_lshl_b32 s35, s3, 10")
    p.valu(f"v_add_u32 v{T+3}, s35, v{voB}", wr=[T+3], rd=[voB])
    st(4)
    for rnd in range(3):
        if rnd == 2:
            p.salu("s_cmp_ge_u32 s3, 4")
            p.branch(f"s_cbranch_scc1 {name}_done")
        p.salu(f"s_add_u32 s40, s3, {8*rnd}")
        p.salu("s_lshr_b32 s41, s40, 2"); p.salu("s_and_b32 s42, s40, 3")
        p.salu("s_lshl_b32 s41, s41, 5")
        p.salu(f"s_mul_i32 s42, s42, {16*1280}")
        p.salu("s_add_u32 s41, s41, s42"); p.salu("s_add_u32 s41, s41, s34")
        for w in range(8):
            off = w * 20480 + rnd * 8192
            if off < 65536:
                p.ds_read("ds_read_b128", ACC + 4*w, 4, T + 3, off=off)
            else:
                p.valu(f"v_add_u32 v{T+4}, {off}, v{T+3}", wr=[T+4], rd=[T+3])
                p.ds_read("ds_read_b128", ACC + 4*w, 4, T + 4)
        for w in range(1, 8):
            for r in range(4):
                p.valu(f"v_add_f32 v{ACC+r}, v{ACC+r}, v{ACC+4*w+r}", wr=[ACC+r], rd=[ACC+r, ACC+4*w+r])
        p.valu(f"v_cvt_pk_bf16_f32 v{ACC+40}, v{ACC}, v{ACC+1}", wr=[ACC+40], rd=[ACC, ACC+1])
        p.valu(f"v_cvt_pk_bf16_f32 v{ACC+41}, v{ACC+2}, v{ACC+3}", wr=[ACC+41], rd=[ACC+2, ACC+3])
        p.bstore(ACC + 40, 2, T + 1, "s[12:15]", "s41", flags=["", " nt", " sc1", " sc0 sc1"][opts.get("outf", 0)])
        p.nop(2)
    if st.on:
        p.raw("    s_waitcnt vmcnt(0)")
        st(5); st.dump("s3")
    p.label(f"{name}_done")
    p.raw("    s_endpgm")
    return p, name

def build(path, opts={}):
    KN = "standalone__mha_block_cached__near_ridge_kernel"
    k1, n1 = gen_k1(dict(opts, name=KN))
    hdr = open("standalone__mha_block_cached__near_ridge.s.ref").read().split("; Override")[0]
    o = [hdr.rstrip()]
    o.append("; @launch grid=(256,1,1) block=(512,1,1) lds=163840")
    o += """; Design (one persistent workgroup per CU, 8 waves = team A (waves 0-3) + team P (waves 4-7)):
;  head : both q-projections of this workgroup (heads h and h+16, same batch); x / wq tiles staged by LDS-DMA,
;         scale log2(e)/sqrt(128) folded into q in fp32 before the bf16 rounding.
;  pairs: team P streams K/V tiles (64 keys) into a 3-slot LDS ring, team A computes S^T = K q^T, p = exp2(S - m),
;         O^T += V^T p^T.  m is the true row max of the first 32 keys (fed through the MFMA C operand);
;         at the end of the row the sum l is checked (l < 2^30, not NaN): if the stand-in max could have been
;         unsafe the wave recomputes its rows with an exact online (running true max) softmax (label *_Aslow).
;  O (bf16) and a fragment-ordered copy of wo go to d_ws with write-through stores; counters in d_debug
;         (zero at launch) publish them.  tail: each workgroup owns a 64x80 output tile, K split over its 8 waves,
;         partial sums reduced through LDS.""".split("\n")
    o.append('.amdgcn_target "amdgcn-amd-amdhsa--gfx950"\n.text')
    o.append(k1.text())
    o.append('.section .rodata,"a"\n.p2align 6')
    o.append(KD.format(name=n1, vgpr=256, sgpr=96, acc=256))
    open(path, "w").write("\n".join(o) + "\n")
    print("nops", k1.nops, "lines", len(k1.out))

if __name__ == "__main__":
    opts = {}
    for a in sys.argv[2:]:
        k, v = a.split("="); opts[k] = int(v)
    build(sys.argv[1], opts)
```
